```python
import torch

def _softmax(x, axis=-1):
    return torch.softmax(x, dim=axis)
def _gelu(x):
    return torch.nn.functional.gelu(x, approximate="tanh")
def _silu(x):
    return torch.nn.functional.silu(x)
def _sigmoid(x):
    return torch.sigmoid(x)
def _layernorm(x, axis=-1, eps=1e-5):
    m = x.mean(dim=axis, keepdim=True)
    v = x.var(dim=axis, keepdim=True, unbiased=False)
    return (x - m) / torch.sqrt(v + eps)
def _scatter_add(tgt, idx, src, axis=0):
    return tgt.clone().index_add_(axis, idx, src)
def _segment_sum(src, seg, n):
    out = torch.zeros((n,) + src.shape[1:], dtype=src.dtype)
    return out.index_add_(0, seg, src)
def _pad(x, pw):
    flat = tuple(v for pair in reversed(pw) for v in pair)
    return torch.nn.functional.pad(x, flat)

kernel_name = 'parallel_sum__softmax_full_mha__mixer_channel_mlp__prompt'

def setup_inputs():

    _w = (lambda a: (lambda t: t.to(torch.bfloat16) if t.is_floating_point() else t)(torch.as_tensor(a)))
    def _A_setup():
        B, S, D = 1, 2048, 640
        return {
            "x": _w((lambda *s: torch.randn(*s, dtype=torch.bfloat16) * 0.05)(B, S, D)),
            "wqkv": _w((lambda *s: torch.randn(*s, dtype=torch.bfloat16) * 0.05)(D, 3 * D)),
            "wo": _w((lambda *s: torch.randn(*s, dtype=torch.bfloat16) * 0.05)(D, D)),
        }
    _A_in = _A_setup()

    def _B_setup():
        B, S, D, F = 1, 2048, 640, 1536
        return {
            "x": _w((lambda *s: torch.randn(*s, dtype=torch.bfloat16) * 0.05)(B, S, D)),
            "w1": _w((lambda *s: torch.randn(*s, dtype=torch.bfloat16) * 3.2)(D, F) * (D ** -0.5)),
            "b1": _w((lambda *s: torch.randn(*s, dtype=torch.bfloat16) * 1.6)(F)),
            "w2": _w((lambda *s: torch.randn(*s, dtype=torch.bfloat16) * 0.1)(F, D) * (F ** -0.5)),
            "b2": _w((lambda *s: torch.randn(*s, dtype=torch.bfloat16) * 0.2)(D)),
        }
    _B_in = _B_setup()

    return {
        "A_x": _A_in["x"],
        "A_wqkv": _A_in["wqkv"],
        "A_wo": _A_in["wo"],
        "B_x": _B_in["x"],
        "B_w1": _B_in["w1"],
        "B_b1": _B_in["b1"],
        "B_w2": _B_in["w2"],
        "B_b2": _B_in["b2"],
    }

def reference(A_x, A_wqkv, A_wo, B_x, B_w1, B_b1, B_w2, B_b2):
    def _A_ref(x, wqkv, wo):
        B, S, D = x.shape
        H = 32; Dh = D // H
        qkv = (lambda x, *d: x.permute(*d))((x @ wqkv).reshape(B, S, 3, H, Dh), 2, 0, 3, 1, 4)
        q, k, v = qkv[0], qkv[1], qkv[2]
        scale = Dh ** -0.5
        scores = torch.einsum("bhqd,bhkd->bhqk", q, k) * scale
        p = _softmax(scores, axis=-1)
        o = torch.einsum("bhqk,bhkd->bhqd", p, v)
        return (lambda x, *d: x.permute(*d))(o, 0, 2, 1, 3).reshape(B, S, D) @ wo

    def _B_ref(x, w1, b1, w2, b2):
        y = _layernorm(x, axis=-1)
        h = _gelu(torch.einsum("bsd,df->bsf", y, w1) + b1)
        return torch.einsum("bsf,fd->bsd", h, w2) + b2

    x = A_x
    xn = _layernorm(x, axis=-1)
    return x + _A_ref(xn, A_wqkv, A_wo) + _B_ref(xn, B_w1, B_b1, B_w2, B_b2)
```

```python
import struct


def f32bits(x):
    return struct.unpack("<I", struct.pack("<f", x))[0]


def hexf(x):
    return "0x%08x" % f32bits(x)


class Asm:
    def __init__(self):
        self.lines = []
        self._uid = 0

    def __call__(self, s, *more):
        for t in (s,) + more:
            for ln in t.split("\n"):
                ln = ln.strip()
                if ln:
                    self.lines.append("    " + ln)

    def label(self, name):
        self.lines.append(name + ":")

    def comment(self, s):
        self.lines.append("    ; " + s)

    def raw(self, s):
        self.lines.append(s)

    def uid(self, base="L"):
        self._uid += 1
        return f"{base}_{self._uid}"

    def text(self):
        return "\n".join(self.lines) + "\n"


def vr(base, n=1):
    if n == 1:
        return f"v{base}"
    return f"v[{base}:{base + n - 1}]"


def sr(base, n=1):
    if n == 1:
        return f"s{base}"
    return f"s[{base}:{base + n - 1}]"


class Regs:
    def __init__(self, start=0, limit=256):
        self.next = start
        self.limit = limit
        self.names = {}
        self.hw = start

    def alloc(self, name, n=1, align=1):
        b = (self.next + align - 1) // align * align
        self.next = b + n
        assert self.next <= self.limit, f"out of registers allocating {name}: {self.next} > {self.limit}"
        self.names[name] = b
        self.hw = max(self.hw, self.next)
        return b

    def mark(self):
        return self.next

    def release(self, mark):
        self.next = mark


def srd(a, d, ptr, nbytes):
    a(f"s_mov_b32 s{d}, s{ptr}")
    a(f"s_and_b32 s{d+1}, s{ptr+1}, 0xffff")
    a(f"s_mov_b32 s{d+2}, {nbytes}")
    a(f"s_mov_b32 s{d+3}, 0x00020000")


def kernel_header(a, name):
    a.raw(".text")
    a.raw(f".globl {name}")
    a.raw(".p2align 8")
    a.raw(f".type {name},@function")
    a.label(name)


def kernel_desc(a, name, vgpr, sgpr=102):
    if isinstance(vgpr, tuple):
        vgpr, acc = vgpr
    else:
        acc = (vgpr + 3) // 4 * 4
    a.raw('.section .rodata,"a"')
    a.raw(".p2align 6")
    a.raw(f".amdhsa_kernel {name}")
    a.raw(f"  .amdhsa_next_free_vgpr {vgpr}")
    a.raw(f"  .amdhsa_next_free_sgpr {sgpr}")
    a.raw(f"  .amdhsa_accum_offset {acc}")
    a.raw("  .amdhsa_group_segment_fixed_size 0")
    a.raw("  .amdhsa_kernarg_size 88")
    a.raw("  .amdhsa_user_sgpr_count 2")
    a.raw("  .amdhsa_user_sgpr_kernarg_segment_ptr 1")
    a.raw("  .amdhsa_system_sgpr_workgroup_id_x 1")
    a.raw("  .amdhsa_float_denorm_mode_32 3")
    a.raw(".end_amdhsa_kernel")


STAMP = False
WS_STAMP = 0x4000000
def stamp(a, idx, real=False):
    if not STAMP:
        return
    a(f"s_mem{'real' if real else ''}time s[{64+2*idx}:{65+2*idx}]")

def stamp_flush(a, n, wsrd, kidx, vt0, vt1):
    if not STAMP:
        return
    a("s_waitcnt lgkmcnt(0) vmcnt(0)")
    a(f"s_memrealtime s[{64+2*n}:{65+2*n}]")
    a("s_waitcnt lgkmcnt(0)")
    a("s_lshl_b32 s62, s2, 4")
    a("s_add_u32 s62, s62, s3")
    a("s_lshl_b32 s62, s62, 6")
    a(f"s_add_u32 s62, s62, {WS_STAMP + kidx*0x100000}")
    a("s_mov_b64 exec, 1")
    a(f"v_mov_b32 v{vt0}, 0")
    for i in range(n+1):
        a(f"v_mov_b32 v{vt1}, s{64+2*i}")
        a(f"buffer_store_dword v{vt1}, v{vt0}, s[{wsrd}:{wsrd+3}], s62 offen offset:{4*i}")
        a("s_nop 1")
```

```python
import math
from asmlib import *
import asmlib

WS_QKV = 0
WS_VT = 0x600000
WS_H = 0xA00000
WS_O = 0x1000000
WS_WF = 0x1300000
WS_BYTES = 268435456

LX = 0
LQ = 49152
L1 = 98304
LSTAT = 135168
LCS = 136192
LB1 = 137088
K1_LDS = 137472

QSCALE = (20 ** -0.5) * math.log2(math.e)
EPS = 1e-5
NOCOMP = False
NODMA = False
NODOT = False
ROT = False
NODOT2 = False
NOVST = False


def dot(a, s):
    if NODOT: return
    if NODOT2 and 'dot2' in s: return
    if NOVST and 'dot2' not in s: return
    a(s)


def rbf(a, d, s):
    a(f"v_cvt_pk_bf16_f32 v{d}, v{s}, v{s}")
    a(f"v_lshlrev_b32 v{d}, 16, v{d}")


def xhalf_add(a, v, t0, t1):
    a(f"v_mov_b32 v{t0}, v{v}")
    a(f"v_mov_b32 v{t1}, v{v}")
    a("s_nop 1")
    a(f"v_permlane32_swap_b32 v{t0}, v{t1}")
    a("s_nop 1")
    a(f"v_add_f32 v{v}, v{t0}, v{t1}")


def gen_k1(a, name):
    kernel_header(a, name)
    done = f"{name}_done"
    a("s_cmp_ge_u32 s2, 256")
    a(f"s_cbranch_scc1 {done}")
    stamp(a, 0, True)
    stamp(a, 1)
    a("s_load_dwordx4 s[24:27], s[0:1], 0")
    a("s_load_dwordx4 s[28:31], s[0:1], 32")
    a("s_load_dwordx2 s[32:33], s[0:1], 80")
    a("s_load_dwordx2 s[34:35], s[0:1], 16")
    a("s_load_dwordx2 s[60:61], s[0:1], 48")
    a("v_lshrrev_b32 v2, 6, v0")
    a("v_and_b32 v1, 63, v0")
    a("s_nop 0")
    a("v_readfirstlane_b32 s3, v2")
    a("s_and_b32 s40, s2, 7")
    a("s_lshr_b32 s41, s2, 3")
    a("s_and_b32 s42, s41, 7")
    a("s_lshr_b32 s43, s41, 3")
    a("s_and_b32 s44, s40, 1")
    a("s_lshl_b32 s44, s44, 3")
    a("s_add_u32 s36, s44, s42")
    a("s_lshr_b32 s44, s40, 1")
    a("s_lshl_b32 s44, s44, 2")
    a("s_add_u32 s37, s44, s43")
    a("s_mul_i32 s44, s43, 3")
    a("s_add_u32 s38, s44, s42")
    a("s_cmp_ge_u32 s38, 10")
    a("s_cselect_b32 s44, 10, 0")
    a("s_sub_u32 s38, s38, s44")
    if not ROT: a("s_mov_b32 s38, 0")
    a("s_waitcnt lgkmcnt(0)")
    srd(a, 4, 24, 2048 * 640 * 2)
    srd(a, 8, 26, 640 * 1920 * 2)
    srd(a, 12, 28, 640 * 1536 * 2)
    srd(a, 20, 30, 1536 * 2)
    srd(a, 16, 32, WS_BYTES)
    a("v_and_b32 v2, 31, v1")
    a("v_lshrrev_b32 v3, 5, v1")
    a("s_cmp_ge_u32 s3, 8")
    a(f"s_cbranch_scc1 {name}_dma")
    a("s_cmp_ge_u32 s3, 4")
    a(f"s_cbranch_scc1 {name}_mlp")
    gen_qkv_wave(a, name)
    a.label(f"{name}_mlp")
    gen_mlp_wave(a, name)
    a.label(f"{name}_dma")
    gen_dma_wave(a, name)
    a.label(done)
    a("s_endpgm")


def x_addrs(a, vxa, rowreg, tmp):
    a(f"v_lshrrev_b32 v{tmp}, 1, v{rowreg}")
    a(f"v_and_b32 v{tmp}, 7, v{tmp}")
    a(f"v_xor_b32 v{tmp}, v{tmp}, v3")
    a(f"v_lshlrev_b32 v{tmp}, 4, v{tmp}")
    a(f"v_lshl_add_u32 v{vxa}, v{rowreg}, 7, v{tmp}")
    for kk in range(1, 4):
        a(f"v_xor_b32 v{vxa+kk}, {kk << 5}, v{vxa}")


def tr_lane_parts(a, vr_, vc, vnh, vh2):
    a(f"v_bfe_u32 v{vr_}, v1, 2, 2")
    a(f"v_and_b32 v{vc}, 3, v1")
    a(f"v_bfe_u32 v{vnh}, v1, 4, 1")
    a(f"v_lshrrev_b32 v{vh2}, 5, v1")


def main_loop(a, reads, nreads, compute, pre):
    if NOCOMP:
        reads = lambda s: None
        compute = lambda s: None
        pre = lambda s: None
    a("s_barrier")
    stamp(a, 2)
    if asmlib.STAMP: a("s_waitcnt lgkmcnt(0)")
    reads(0)
    for step in range(40):
        if step % 2 == 1:
            a("s_waitcnt lgkmcnt(0)")
            if step + 1 < 40 and (step + 1) % 4 == 0:
                a("s_barrier")
                if step + 1 in (4, 20):
                    stamp(a, 3 if step + 1 == 4 else 4)
                    if asmlib.STAMP: a("s_waitcnt lgkmcnt(0)")
            pre(step)
            if step + 1 < 40:
                reads(step + 1)
        else:
            reads(step + 1)
            a(f"s_waitcnt lgkmcnt({nreads})")
        compute(step)


def gen_qkv_wave(a, name):
    R = Regs(4, 168)
    vxa = R.alloc("vxa", 4)
    vwa = R.alloc("vwa", 2)
    cs = R.alloc("cs")
    t = [R.alloc(f"t{i}") for i in range(8)]
    acc = R.alloc("acc", 64, 4)
    X = R.alloc("X", 16, 4)
    W = R.alloc("W", 16, 4)
    a("s_and_b32 s45, s3, 1")
    a("s_lshr_b32 s46, s3, 1")
    a("s_lshl_b32 s47, s45, 6")
    a(f"v_add_u32 v{t[0]}, s47, v2")
    x_addrs(a, vxa, t[0], t[1])
    tr_lane_parts(a, t[0], t[1], t[2], t[3])
    a("s_mul_i32 s47, s46, 120")
    a(f"v_lshlrev_b32 v{t[4]}, 5, v{t[2]}")
    a(f"v_lshl_add_u32 v{t[4]}, v{t[1]}, 3, v{t[4]}")
    a(f"v_add_u32 v{t[4]}, s47, v{t[4]}")
    a(f"v_lshl_add_u32 v{t[5]}, v{t[3]}, 3, v{t[0]}")
    a(f"v_lshlrev_b32 v{t[5]}, 8, v{t[5]}")
    a(f"v_add_u32 v{t[5]}, {LQ}, v{t[5]}")
    for tt in range(2):
        a(f"s_xor_b32 s47, s45, {tt}")
        a("s_lshl_b32 s47, s47, 6")
        a(f"v_add_u32 v{t[6]}, s47, v{t[4]}")
        a(f"v_lshrrev_b32 v{t[7]}, 6, v{t[6]}")
        a(f"v_xor_b32 v{t[7]}, v{t[7]}, v{t[0]}")
        a(f"v_and_b32 v{t[6]}, 63, v{t[6]}")
        a(f"v_lshl_add_u32 v{t[6]}, v{t[7]}, 6, v{t[6]}")
        a(f"v_add_u32 v{vwa+tt}, v{t[6]}, v{t[5]}")
    a(f"v_mov_b32 v{cs}, 0")
    for i in range(64):
        a(f"v_mov_b32 v{acc+i}, 0")
    a("s_mov_b32 s48, 0x3f803f80")

    def reads(step):
        st, kk, p = step // 4, step % 4, step % 2
        buf = st % 3
        for rt in range(2):
            a(f"ds_read_b128 {vr(X + p*8 + rt*4, 4)}, v{vxa+kk} offset:{buf*16384 + rt*4096}")
        for tt in range(2):
            for h in range(2):
                a(f"ds_read_b64_tr_b16 {vr(W + p*8 + tt*4 + h*2, 2)}, v{vwa+tt} offset:{buf*16384 + kk*4096 + h*1024}")

    def compute(step):
        p = step % 2
        for tt in range(2):
            for rt in range(2):
                c = acc + (tt * 2 + rt) * 16
                a(f"v_mfma_f32_32x32x16_bf16 {vr(c,16)}, {vr(W + p*8 + tt*4, 4)}, {vr(X + p*8 + rt*4, 4)}, {vr(c,16)}")

    def pre(step):
        if step % 2 == 1:
            for pp in range(2):
                for k in range(4):
                    dot(a, f"v_dot2c_f32_bf16 v{cs}, s48, v{W + pp*8 + k}")

    main_loop(a, reads, 6, compute, pre)
    stamp(a, 5)
    a("s_nop 3")
    xhalf_add(a, cs, t[0], t[1])
    a("s_lshl_b32 s47, s46, 8")
    a("s_lshl_b32 s49, s45, 7")
    a("s_add_u32 s47, s47, s49")
    a(f"s_add_u32 s47, s47, {LCS}")
    a(f"v_lshl_add_u32 v{t[0]}, v2, 2, s47")
    a(f"ds_write_b32 v{t[0]}, v{cs}")
    a("s_waitcnt lgkmcnt(0)")
    a("s_barrier")
    st = R.alloc("st", 4, 2)
    rs = R.alloc("rs", 8)
    csr = X
    pk = R.alloc("pk", 4, 2)
    tmp = R.alloc("tmp", 8)
    sa = R.alloc("sa", 2)
    a("s_lshl_b32 s47, s45, 9")
    a(f"s_add_u32 s47, s47, {LSTAT}")
    a(f"v_lshl_add_u32 v{t[0]}, v2, 3, s47")
    a(f"ds_read_b64 {vr(st,2)}, v{t[0]}")
    a(f"ds_read_b64 {vr(st+2,2)}, v{t[0]} offset:256")
    a("s_lshl_b32 s47, s46, 8")
    a(f"s_add_u32 s47, s47, {LCS}")
    a(f"v_lshl_add_u32 v{t[1]}, v3, 4, s47")
    for tp in range(2):
        for q in range(4):
            a(f"ds_read_b128 {vr(csr + tp*16 + q*4, 4)}, v{t[1]} offset:{tp*128 + q*32}")
    a("s_mul_i32 s50, s37, 6")
    a("s_mul_i32 s47, s46, 3")
    a("s_add_u32 s50, s50, s47")
    a(f"s_mov_b32 s47, {hexf(QSCALE)}")
    for g in range(3):
        a(f"s_add_u32 s49, s50, {g}")
        a("s_cmp_lt_u32 s49, 32")
        a(f"s_cselect_b32 s{51+g}, s47, 1.0")
    a("s_mul_i32 s47, s3, 12288")
    a(f"v_mul_u32_u24 v{t[2]}, 48, v2")
    a(f"v_add_u32 v{t[2]}, s47, v{t[2]}")
    a(f"v_lshl_add_u32 v{sa}, v3, 3, v{t[2]}")
    a(f"v_mul_u32_u24 v{t[3]}, 3040, v3")
    a(f"v_add_u32 v{sa+1}, v{t[3]}, v{t[2]}")
    a("v_cmp_eq_u32 vcc, 1, v3")
    a("s_waitcnt lgkmcnt(0)")
    for rt in range(2):
        for g in range(3):
            a(f"v_mul_f32 v{rs + rt*4 + g}, s{51+g}, v{st + rt*2 + 1}")
        a(f"v_cndmask_b32 v{rs + rt*4 + 3}, v{rs + rt*4}, v{rs + rt*4 + 1}, vcc")
    lab1 = f"{name}_q_rh1"
    labj = f"{name}_q_join"
    a("s_cmp_eq_u32 s45, 1")
    a(f"s_cbranch_scc1 {lab1}")
    for rh in range(2):
        if rh == 1:
            a.label(lab1)
        for tt in range(2):
            tp = tt ^ rh
            for rt in range(2):
                c = acc + (tt * 2 + rt) * 16
                for q in range(4):
                    pc0 = 8 * tp + 2 * q
                    g, d4 = pc0 // 5, pc0 % 5
                    wrap = d4 == 4
                    rsel = rs + rt * 4 + (3 if (wrap and g == 0) else g)
                    tb = tmp + (q % 2) * 4
                    for i in range(4):
                        a(f"v_fma_f32 v{tb+i}, v{st + rt*2}, v{csr + tp*16 + q*4 + i}, v{c + q*4 + i}")
                    for i in range(4):
                        a(f"v_mul_f32 v{tb+i}, v{tb+i}, v{rsel}")
                    pb = pk + (q % 2) * 2
                    a(f"v_cvt_pk_bf16_f32 v{pb}, v{tb}, v{tb+1}")
                    a(f"v_cvt_pk_bf16_f32 v{pb+1}, v{tb+2}, v{tb+3}")
                    off = g * 3072 + rt * 32 * 48 + d4 * 8
                    a(f"ds_write_b64 v{sa + (1 if wrap else 0)}, {vr(pb,2)} offset:{off}")
        if rh == 0:
            a(f"s_branch {labj}")
    a.label(labj)
    a("s_mul_i32 s47, s3, 12288")
    a(f"v_mul_u32_u24 v{t[2]}, 48, v1")
    a(f"v_add_u32 v{t[2]}, s47, v{t[2]}")
    a(f"v_mov_b32 v{pk}, 0x3f803f80")
    a(f"v_mov_b32 v{pk+1}, 0x3f80")
    for g in range(3):
        a(f"ds_write_b64 v{t[2]}, {vr(pk,2)} offset:{g*3072 + 40}")
    a(f"v_lshl_add_u32 v{t[3]}, v1, 4, s47")
    a(f"v_bfe_u32 v{t[5]}, v1, 2, 2")
    a(f"v_lshl_add_u32 v{t[5]}, v3, 3, v{t[5]}")
    a(f"v_mul_u32_u24 v{t[5]}, 48, v{t[5]}")
    a(f"v_bfe_u32 v{t[6]}, v1, 4, 1")
    a(f"v_lshl_add_u32 v{t[5]}, v{t[6]}, 5, v{t[5]}")
    a(f"v_and_b32 v{t[6]}, 3, v1")
    a(f"v_lshl_add_u32 v{t[5]}, v{t[6]}, 3, v{t[5]}")
    a(f"v_add_u32 v{t[5]}, s47, v{t[5]}")
    a(f"v_lshlrev_b32 v{t[4]}, 4, v1")
    a("s_lshl_b32 s49, s36, 1")
    a("s_add_u32 s49, s49, s45")
    a("s_waitcnt lgkmcnt(0)")
    for g in range(3):
        lv = f"{name}_v{g}"
        le = f"{name}_ve{g}"
        a(f"s_add_u32 s54, s50, {g}")
        a("s_cmp_ge_u32 s54, 64")
        a(f"s_cbranch_scc1 {lv}")
        for e in range(3):
            a(f"ds_read_b128 {vr(acc + g*16 + e*4, 4)}, v{t[3]} offset:{g*3072 + e*1024}")
        a("s_mul_i32 s47, s54, 98304")
        a("s_mul_i32 s55, s49, 3072")
        a("s_add_u32 s47, s47, s55")
        if WS_QKV:
            a(f"s_add_u32 s47, s47, {WS_QKV}")
        for e in range(3):
            a(f"s_waitcnt lgkmcnt({2-e})")
            a(f"buffer_store_dwordx4 {vr(acc + g*16 + e*4, 4)}, v{t[4]}, s[16:19], s47 offen offset:{e*1024}")
        a(f"s_branch {le}")
        a.label(lv)
        for e in range(4):
            for h in range(2):
                a(f"ds_read_b64_tr_b16 {vr(acc + g*16 + e*4 + h*2, 2)}, v{t[5]} offset:{g*3072 + e*768 + h*192}")
        a("s_sub_u32 s47, s54, 64")
        a("s_lshl_b32 s47, s47, 17")
        a("s_lshl_b32 s55, s49, 12")
        a("s_add_u32 s47, s47, s55")
        a(f"s_add_u32 s47, s47, {WS_VT}")
        for e in range(4):
            a(f"s_waitcnt lgkmcnt({6-2*e})")
            a(f"buffer_store_dwordx4 {vr(acc + g*16 + e*4, 4)}, v{t[4]}, s[16:19], s47 offen offset:{e*1024}")
        a.label(le)
    stamp(a, 6)
    stamp_flush(a, 7, 16, 0, 4, 5)
    a("s_endpgm")
    return R.hw


def gen_mlp_wave(a, name):
    R = Regs(4, 168)
    vxa = R.alloc("vxa", 4)
    vwa = R.alloc("vwa", 3)
    cs = R.alloc("cs")
    sm = R.alloc("sm")
    sq = R.alloc("sq")
    sm2 = R.alloc("sm2")
    sq2 = R.alloc("sq2")
    un = R.alloc("un", 4)
    t = [R.alloc(f"t{i}") for i in range(10)]
    acc = R.alloc("acc", 48, 4)
    X = R.alloc("X", 8, 4)
    W = R.alloc("W", 24, 4)
    a("s_setprio 2")
    a("s_sub_u32 s45, s3, 4")
    a("s_lshl_b32 s47, s45, 5")
    a(f"v_add_u32 v{t[0]}, s47, v2")
    x_addrs(a, vxa, t[0], t[1])
    tr_lane_parts(a, t[0], t[1], t[2], t[3])
    a(f"v_lshl_add_u32 v{t[5]}, v{t[3]}, 3, v{t[0]}")
    a(f"v_mul_u32_u24 v{t[5]}, 192, v{t[5]}")
    a(f"v_lshl_add_u32 v{t[5]}, v{t[2]}, 5, v{t[5]}")
    a(f"v_lshl_add_u32 v{t[5]}, v{t[1]}, 3, v{t[5]}")
    a(f"v_add_u32 v{t[5]}, {L1}, v{t[5]}")
    for tt in range(3):
        a(f"s_add_u32 s{51+tt}, s45, {tt}")
        a(f"s_cmp_ge_u32 s{51+tt}, 3")
        a("s_cselect_b32 s47, 3, 0")
        a(f"s_sub_u32 s{51+tt}, s{51+tt}, s47")
        a(f"s_lshl_b32 s47, s{51+tt}, 6")
        a(f"v_add_u32 v{vwa+tt}, s47, v{t[5]}")
    for r in (cs, sm, sq, sm2, sq2):
        a(f"v_mov_b32 v{r}, 0")
    for i in range(48):
        a(f"v_mov_b32 v{acc+i}, 0")
    a("s_mov_b32 s48, 0x3f803f80")

    def reads(step):
        st, kk, p = step // 4, step % 4, step % 2
        buf = st % 3
        a(f"ds_read_b128 {vr(X + p*4, 4)}, v{vxa+kk} offset:{buf*16384}")
        for tt in range(3):
            for h in range(2):
                a(f"ds_read_b64_tr_b16 {vr(W + p*12 + tt*4 + h*2, 2)}, v{vwa+tt} offset:{buf*12288 + kk*3072 + h*768}")

    def compute(step):
        p = step % 2
        ops = []
        for i in range(4):
            x = X + p * 4 + i
            lo, hi = un + 2 * (i % 2), un + 2 * (i % 2) + 1
            ops += [f"v_lshlrev_b32 v{lo}, 16, v{x}", f"v_and_b32 v{hi}, 0xffff0000, v{x}",
                    f"v_add_f32 v{sm}, v{sm}, v{lo}", f"v_fmac_f32 v{sq}, v{lo}, v{lo}",
                    f"v_add_f32 v{sm2}, v{sm2}, v{hi}", f"v_fmac_f32 v{sq2}, v{hi}, v{hi}"]
        for tt in range(3):
            c = acc + tt * 16
            a(f"v_mfma_f32_32x32x16_bf16 {vr(c,16)}, {vr(W + p*12 + tt*4, 4)}, {vr(X + p*4, 4)}, {vr(c,16)}")
            for o in ops[tt * 8:(tt + 1) * 8]:
                dot(a, o)

    def pre(step):
        if step % 2 == 1:
            for pp in range(2):
                for k in range(4):
                    dot(a, f"v_dot2c_f32_bf16 v{cs}, s48, v{W + pp*12 + k}")

    main_loop(a, reads, 7, compute, pre)
    a(f"v_add_f32 v{sm}, v{sm}, v{sm2}")
    a(f"v_add_f32 v{sq}, v{sq}, v{sq2}")
    stamp(a, 5)
    a("s_nop 3")
    xhalf_add(a, cs, t[0], t[1])
    xhalf_add(a, sm, t[0], t[1])
    xhalf_add(a, sq, t[0], t[1])
    a("s_lshl_b32 s47, s51, 7")
    a(f"s_add_u32 s47, s47, {LCS + 512}")
    a(f"v_lshl_add_u32 v{t[0]}, v2, 2, s47")
    a(f"ds_write_b32 v{t[0]}, v{cs}")
    mean, var, mbf, s1, r1, m2, s2 = t[0], t[1], t[2], t[3], t[4], t[5], t[6]
    tmp = t[7]
    a(f"s_mov_b32 s47, {hexf(1.0/640)}")
    a(f"s_mov_b32 s49, {hexf(EPS)}")
    a(f"v_mul_f32 v{mean}, s47, v{sm}")
    a(f"v_mul_f32 v{var}, s47, v{sq}")
    a(f"v_fma_f32 v{var}, -v{mean}, v{mean}, v{var}")
    a(f"v_max_f32 v{var}, 0, v{var}")
    rbf(a, mbf, mean)
    rbf(a, tmp, var)
    a(f"v_add_f32 v{tmp}, s49, v{tmp}")
    rbf(a, tmp, tmp)
    a(f"v_sqrt_f32 v{tmp}, v{tmp}")
    a("s_nop 0")
    rbf(a, s1, tmp)
    a(f"v_rcp_f32 v{r1}, v{s1}")
    a("s_nop 0")
    a(f"v_sub_f32 v{tmp}, v{mean}, v{mbf}")
    a(f"v_mul_f32 v{tmp}, v{tmp}, v{r1}")
    rbf(a, m2, tmp)
    a(f"v_mul_f32 v{tmp}, v{var}, v{r1}")
    a(f"v_mul_f32 v{tmp}, v{tmp}, v{r1}")
    rbf(a, tmp, tmp)
    a(f"v_add_f32 v{tmp}, s49, v{tmp}")
    rbf(a, tmp, tmp)
    a(f"v_sqrt_f32 v{tmp}, v{tmp}")
    a("s_nop 0")
    rbf(a, s2, tmp)
    st = R.alloc("st", 2, 2)
    rs2 = R.alloc("rs2")
    nm2 = R.alloc("nm2")
    a(f"v_sub_f32 v{st}, 0, v{mbf}")
    a(f"v_mov_b32 v{st+1}, v{r1}")
    a(f"v_mul_f32 v{tmp}, v{s1}, v{s2}")
    a(f"v_rcp_f32 v{rs2}, v{tmp}")
    a(f"v_fma_f32 v{tmp}, v{m2}, v{s1}, v{mbf}")
    a(f"v_mul_f32 v{nm2}, v{tmp}, v{rs2}")
    a(f"v_sub_f32 v{nm2}, 0, v{nm2}")
    a("s_lshl_b32 s47, s45, 8")
    a(f"s_add_u32 s47, s47, {LSTAT}")
    a(f"v_lshl_add_u32 v{t[8]}, v2, 3, s47")
    a(f"ds_write_b64 v{t[8]}, {vr(st,2)}")
    a("s_waitcnt lgkmcnt(0)")
    a("s_barrier")
    csr = X
    assert W == X + 8
    b1r = X + 16
    u = R.alloc("u", 16, 4)
    w = R.alloc("w", 16, 4)
    pk = R.alloc("pk", 8, 4)
    k0 = -2.0 * math.log2(math.e) * math.sqrt(2.0 / math.pi)
    k1 = k0 * 0.044715
    a(f"s_mov_b32 s54, {hexf(k1)}")
    a(f"v_mov_b32 v{t[9]}, {hexf(k0)}")
    a("s_lshl_b32 s47, s36, 2")
    a("s_add_u32 s47, s47, s45")
    a("s_mul_i32 s47, s47, 96")
    a("s_mul_i32 s49, s37, 6")
    a("s_add_u32 s47, s47, s49")
    a("s_lshl_b32 s47, s47, 10")
    a(f"s_add_u32 s55, s47, {WS_H}")
    a(f"v_lshlrev_b32 v{t[7]}, 4, v1")
    for tt in range(3):
        a(f"s_lshl_b32 s47, s{51+tt}, 7")
        a(f"v_lshl_add_u32 v{t[0]}, v3, 4, s47")
        a(f"v_add_u32 v{t[1]}, {LCS + 512}, v{t[0]}")
        a(f"v_add_u32 v{t[2]}, {LB1}, v{t[0]}")
        for q in range(4):
            a(f"ds_read_b128 {vr(csr + q*4, 4)}, v{t[1]} offset:{q*32}")
            a(f"ds_read_b128 {vr(b1r + q*4, 4)}, v{t[2]} offset:{q*32}")
        a(f"s_lshl_b32 s47, s{51+tt}, 11")
        a("s_add_u32 s47, s47, s55")
        a("s_waitcnt lgkmcnt(0)")
        c = acc + tt * 16
        for i in range(16):
            a(f"v_fma_f32 v{u+i}, v{nm2}, v{csr+i}, v{b1r+i}")
        for i in range(16):
            a(f"v_fma_f32 v{u+i}, v{c+i}, v{rs2}, v{u+i}")
        for i in range(16):
            a(f"v_mul_f32 v{w+i}, v{u+i}, v{u+i}")
        for i in range(16):
            a(f"v_fma_f32 v{w+i}, v{w+i}, s54, v{t[9]}")
        for i in range(16):
            a(f"v_mul_f32 v{w+i}, v{w+i}, v{u+i}")
        for i in range(16):
            a(f"v_exp_f32 v{w+i}, v{w+i}")
        for i in range(16):
            a(f"v_add_f32 v{w+i}, 1.0, v{w+i}")
        for i in range(16):
            a(f"v_rcp_f32 v{w+i}, v{w+i}")
        for i in range(16):
            a(f"v_mul_f32 v{u+i}, v{u+i}, v{w+i}")
        if tt:
            a("s_nop 1")
        for i in range(8):
            a(f"v_cvt_pk_bf16_f32 v{pk+i}, v{u+2*i}, v{u+2*i+1}")
        a(f"buffer_store_dwordx4 {vr(pk,4)}, v{t[7]}, s[16:19], s47 offen")
        a(f"buffer_store_dwordx4 {vr(pk+4,4)}, v{t[7]}, s[16:19], s47 offen offset:1024")
    stamp(a, 6)
    stamp_flush(a, 7, 16, 0, 4, 5)
    a("s_endpgm")
    return R.hw


def gen_dma_wave(a, name):
    R = Regs(4, 168)
    vx = R.alloc("vx", 4)
    vq = R.alloc("vq", 4)
    v1_ = R.alloc("v1", 3)
    t = [R.alloc(f"t{i}") for i in range(8)]
    bb = R.alloc("bb", 2, 2)
    a("s_setprio 3")
    a("s_sub_u32 s45, s3, 8")
    a("s_mul_i32 s47, s37, 192")
    a(f"v_lshlrev_b32 v{t[7]}, 2, v1")
    a(f"buffer_load_dword v{t[6]}, v{t[7]}, s[20:23], s47 offen")
    a(f"v_lshrrev_b32 v{t[0]}, 3, v1")
    a(f"v_mul_u32_u24 v{t[0]}, 1280, v{t[0]}")
    a(f"v_and_b32 v{t[1]}, 7, v1")
    a(f"v_lshrrev_b32 v{t[2]}, 4, v1")
    a(f"v_xor_b32 v{t[3]}, v{t[1]}, v{t[2]}")
    a(f"v_xor_b32 v{t[4]}, 4, v{t[3]}")
    for e in range(4):
        a(f"v_lshl_add_u32 v{vx+e}, v{t[3 + (e%2)]}, 4, v{t[0]}")
        if e:
            a(f"v_add_u32 v{vx+e}, {e*(10240-1024)}, v{vx+e}")
    a(f"v_mul_u32_u24 v{t[0]}, 3840, v{t[2]}")
    a(f"v_and_b32 v{t[1]}, 15, v1")
    a(f"v_lshlrev_b32 v{t[3]}, 2, v{t[2]}")
    a(f"v_xor_b32 v{t[1]}, v{t[1]}, v{t[3]}")
    a(f"v_lshl_add_u32 v{vq}, v{t[1]}, 4, v{t[0]}")
    for e in range(1, 4):
        a(f"v_add_u32 v{vq+e}, {e*(4*3840-1024)}, v{vq}")
    for e in range(3):
        a(f"v_add_u32 v{t[0]}, {64*e}, v1")
        a(f"v_mul_u32_u24 v{t[1]}, 43691, v{t[0]}")
        a(f"v_lshrrev_b32 v{t[1]}, 19, v{t[1]}")
        a(f"v_mul_u32_u24 v{t[2]}, 12, v{t[1]}")
        a(f"v_sub_u32 v{t[2]}, v{t[0]}, v{t[2]}")
        a(f"v_mul_u32_u24 v{t[1]}, 3072, v{t[1]}")
        a(f"v_lshl_add_u32 v{v1_+e}, v{t[2]}, 4, v{t[1]}")
        if e:
            a(f"v_subrev_u32 v{v1_+e}, {1024*e}, v{v1_+e}")
    a("s_lshl_b32 s47, s36, 2")
    a("s_add_u32 s47, s47, s45")
    a("s_mul_i32 s50, s47, 40960")
    a("s_mul_i32 s51, s45, 61440")
    a("s_mul_i32 s47, s37, 240")
    a("s_add_u32 s51, s51, s47")
    a("s_mul_i32 s52, s45, 49152")
    a("s_mul_i32 s47, s37, 192")
    a("s_add_u32 s52, s52, s47")
    a("s_lshl_b32 s53, s45, 12")
    a("s_mul_i32 s54, s45, 3072")

    def issue(stg):
        if NODMA: return
        buf = stg % 3
        a("s_lshl_b32 s55, s38, 7")
        a("s_add_u32 s55, s55, s50")
        a("s_mul_i32 s56, s38, 245760")
        a("s_add_u32 s56, s56, s51")
        a("s_mul_i32 s57, s38, 196608")
        a("s_add_u32 s57, s57, s52")
        a(f"s_add_u32 m0, s53, {LX + buf*16384}")
        a("s_add_u32 s38, s38, 1")
        for e in range(4):
            a(f"buffer_load_dwordx4 v{vx+e}, s[4:7], s55 offen offset:{e*1024} lds")
        a(f"s_add_u32 m0, s53, {LQ + buf*16384}")
        a("s_cmp_eq_u32 s38, 10")
        for e in range(4):
            a(f"buffer_load_dwordx4 v{vq+e}, s[8:11], s56 offen offset:{e*1024} lds")
        a(f"s_add_u32 m0, s54, {L1 + buf*12288}")
        a("s_cmp_eq_u32 s38, 10")
        for e in range(3):
            a(f"buffer_load_dwordx4 v{v1_+e}, s[12:15], s57 offen offset:{e*1024} lds")
        a("s_cselect_b32 s38, 0, s38")

    stamp(a, 2)
    for s in range(2):
        issue(s)
    stamp(a, 3)
    for stg in range(10):
        if stg <= 8:
            a("s_waitcnt vmcnt(11)")
        else:
            a("s_waitcnt vmcnt(0)")
        if stg == 0:
            stamp(a, 4)
        a("s_barrier")
        if stg == 0:
            a(f"v_lshlrev_b32 v{bb}, 16, v{t[6]}")
            a(f"v_and_b32 v{bb+1}, 0xffff0000, v{t[6]}")
            a(f"v_lshlrev_b32 v{t[0]}, 3, v1")
            a(f"v_add_u32 v{t[0]}, {LB1}, v{t[0]}")
            a("v_cmp_gt_u32 vcc, 48, v1")
            a("s_and_saveexec_b64 s[58:59], vcc")
            a(f"ds_write_b64 v{t[0]}, {vr(bb,2)}")
            a("s_mov_b64 exec, s[58:59]")
        if stg <= 7:
            issue(stg + 2)
    stamp(a, 5)
    a("s_waitcnt lgkmcnt(0)")
    a("s_barrier")
    gen_wtrans(a, name, R)
    stamp(a, 6)
    stamp_flush(a, 7, 16, 0, 4, 5)
    return R.hw


def gen_wtrans(a, name, R):
    D = R.alloc("D", 12, 4)
    E = R.alloc("E", 24)
    va = R.alloc("va")
    vb = R.alloc("vb")
    vs = R.alloc("vs")
    vs2 = R.alloc("vs2")
    a(f"v_lshlrev_b32 v{vs}, 4, v1")
    a(f"v_and_b32 v{vs2}, 15, v1")
    a(f"v_lshl_add_u32 v{vs2}, v3, 4, v{vs2}")
    a(f"v_lshlrev_b32 v{vs2}, 4, v{vs2}")
    a("v_cmp_gt_u32 s[62:63], 16, v2")

    def unit(srd_, sa, sb, sdst):
        for tt in range(3):
            for j in range(8):
                v = va if j < 4 else vb
                so = sa if j < 4 else sb
                a(f"buffer_load_ushort v{E + tt*8 + j}, v{v}, s[{srd_}:{srd_+3}], {so} offen offset:{(j%4)*1280 + tt*64}")
        a("s_waitcnt vmcnt(0)")
        for i in range(12):
            a(f"v_lshl_or_b32 v{D+i}, v{E+2*i+1}, 16, v{E+2*i}")
        a(f"buffer_store_dwordx4 {vr(D,4)}, v{vs}, s[16:19], {sdst} offen")
        a(f"buffer_store_dwordx4 {vr(D+4,4)}, v{vs}, s[16:19], {sdst} offen offset:1024")
        a("s_mov_b64 exec, s[62:63]")
        a(f"buffer_store_dwordx4 {vr(D+8,4)}, v{vs2}, s[16:19], {sdst} offen offset:2048")
        a("s_mov_b64 exec, -1")

    lw = f"{name}_wt_wo"
    le = f"{name}_wt_end"
    a(f"v_mul_u32_u24 v{va}, 5120, v3")
    a(f"v_lshl_add_u32 v{va}, v2, 1, v{va}")
    a(f"v_mov_b32 v{vb}, v{va}")
    a("s_cmp_eq_u32 s45, 3")
    a(f"s_cbranch_scc1 {lw}")
    srd(a, 4, 60, 1536 * 640 * 2)
    a("s_mul_i32 s47, s2, 3")
    a("s_add_u32 s47, s47, s45")
    a("s_lshr_b32 s48, s47, 3")
    a("s_and_b32 s49, s47, 7")
    a("s_mul_i32 s50, s48, 20480")
    a("s_mul_i32 s51, s49, 160")
    a("s_add_u32 s50, s50, s51")
    a("s_add_u32 s51, s50, 10240")
    a("s_mul_i32 s52, s49, 136")
    a("s_add_u32 s52, s52, s48")
    a("s_mul_i32 s52, s52, 2560")
    a(f"s_add_u32 s52, s52, {WS_WF}")
    unit(4, "s50", "s51", "s52")
    a(f"s_branch {le}")
    a.label(lw)
    a("s_and_b32 s47, s2, 3")
    a("s_cmp_lg_u32 s47, 0")
    a(f"s_cbranch_scc1 {le}")
    srd(a, 4, 34, 640 * 640 * 2)
    a("s_lshr_b32 s47, s2, 2")
    a("s_lshr_b32 s48, s47, 3")
    a("s_and_b32 s49, s47, 7")
    a("s_mul_i32 s50, s48, 102400")
    a("s_mul_i32 s51, s49, 160")
    a("s_add_u32 s50, s50, s51")
    a("s_mov_b32 s55, s50")
    a("s_mul_i32 s52, s49, 136")
    a("s_add_u32 s56, s52, s48")
    a("s_add_u32 s56, s56, 128")
    a("s_mul_i32 s56, s56, 2560")
    a(f"s_add_u32 s56, s56, {WS_WF}")
    a("s_lshl_b32 s53, s48, 2")
    a("s_add_u32 s52, s52, s53")
    a("s_add_u32 s52, s52, 96")
    a("s_mul_i32 s52, s52, 2560")
    a(f"s_add_u32 s52, s52, {WS_WF}")
    a("s_mov_b32 s54, 0")
    ll = f"{name}_wt_loop"
    a.label(ll)
    a("s_add_u32 s51, s50, 10240")
    unit(4, "s50", "s51", "s52")
    a("s_add_u32 s50, s50, 25600")
    a("s_add_u32 s52, s52, 2560")
    a("s_add_u32 s54, s54, 1")
    a("s_cmp_lt_u32 s54, 4")
    a(f"s_cbranch_scc1 {ll}")
    a("s_cmp_gt_u32 s54, 4")
    a(f"s_cbranch_scc1 {le}")
    a(f"v_mul_u32_u24 v{va}, 51200, v3")
    a(f"v_lshl_add_u32 v{va}, v2, 1, v{va}")
    a(f"v_add_u32 v{vb}, {25600 - 10240}, v{va}")
    a("s_add_u32 s50, s55, 20480")
    a("s_mov_b32 s52, s56")
    a(f"s_branch {ll}")
    a.label(le)
```

```python
from asmlib import *
import asmlib
from k1 import WS_QKV, WS_VT, WS_H, WS_O, WS_BYTES

BLOCK = 256
ACCUM = 128
NAGPR = 192
VGPR = ACCUM + NAGPR
LM = 0
LFLAG = 8192
LC = 8256 + 192
LC = 8448
K2_LDS = LC + 4 * 3 * 2 * 3072
GSTRIDE = 2048 * 48
AO = 0
AQ = 128


def ar(base, n=1):
    return f"a{base}" if n == 1 else f"a[{base}:{base+n-1}]"


def gen_k2(a, name):
    kernel_header(a, name)
    done = f"{name}_done"
    a("s_cmp_ge_u32 s2, 256")
    a(f"s_cbranch_scc1 {done}")
    stamp(a, 0, True)
    stamp(a, 1)
    a("s_load_dwordx2 s[32:33], s[0:1], 80")
    a("v_lshrrev_b32 v2, 6, v0")
    a("v_and_b32 v1, 63, v0")
    a("s_nop 0")
    a("v_readfirstlane_b32 s3, v2")
    a("s_and_b32 s40, s2, 7")
    a("s_lshr_b32 s41, s2, 3")
    a("s_lshl_b32 s36, s40, 2")
    a("s_lshr_b32 s42, s41, 3")
    a("s_add_u32 s36, s36, s42")
    a("s_and_b32 s37, s41, 7")
    a("v_and_b32 v2, 31, v1")
    a("v_lshrrev_b32 v3, 5, v1")
    gen_attn(a, name)
    a.label(done)
    a("s_endpgm")


def gen_attn(a, name):
    R = Regs(4, ACCUM)
    t = [R.alloc(f"t{i}") for i in range(8)]
    vk1 = R.alloc("vk1")
    vk2 = R.alloc("vk2")
    vl16 = R.alloc("vl16")
    vq1 = R.alloc("vq1")
    vq2 = R.alloc("vq2")
    vmx = R.alloc("vmx", 2, 2)
    pk = R.alloc("pk", 2, 2)
    S = R.alloc("S", 32, 4)
    P = R.alloc("P", 16, 4)
    K = R.alloc("K", 16, 4)
    V = R.alloc("V", 16, 4)
    a(f"v_mul_u32_u24 v{t[0]}, 48, v2")
    a(f"v_lshl_add_u32 v{vq1}, v3, 4, v{t[0]}")
    a(f"v_lshlrev_b32 v{t[1]}, 30, v3")
    a(f"v_add3_u32 v{vq2}, v{t[0]}, v{t[1]}, 32")
    a(f"v_and_b32 v{t[2]}, 0x13, v2")
    a(f"v_bfe_u32 v{t[3]}, v2, 2, 1")
    a(f"v_lshl_or_b32 v{t[2]}, v{t[3]}, 3, v{t[2]}")
    a(f"v_bfe_u32 v{t[3]}, v2, 3, 1")
    a(f"v_lshl_or_b32 v{t[2]}, v{t[3]}, 2, v{t[2]}")
    a(f"v_mul_u32_u24 v{t[2]}, 48, v{t[2]}")
    a(f"v_lshl_add_u32 v{vk1}, v3, 4, v{t[2]}")
    a(f"v_add_u32 v{vk2}, 32, v{t[2]}")
    a(f"v_lshlrev_b32 v{vl16}, 4, v1")
    a("v_cmp_eq_u32 s[60:61], 0, v3")
    a(f"s_mul_i32 s42, s36, {GSTRIDE}")
    a(f"s_add_u32 s43, s42, {WS_QKV + 32*GSTRIDE}")
    a("s_mul_i32 s46, s37, 12288")
    a("s_add_u32 s46, s46, s42")
    if WS_QKV:
        a(f"s_add_u32 s46, s46, {WS_QKV}")
    a("s_mul_i32 s47, s3, 24576")
    a("s_add_u32 s50, s43, s47")
    a("s_lshl_b32 s47, s36, 17")
    a("s_lshl_b32 s48, s3, 15")
    a("s_add_u32 s51, s47, s48")
    a(f"s_add_u32 s51, s51, {WS_VT}")
    a("s_lshl_b32 s45, s3, 1")
    a("s_waitcnt lgkmcnt(0)")
    srd(a, 4, 32, WS_BYTES)
    a("s_mov_b32 s56, 1")
    for i in range(8):
        a(f"s_add_u32 s47, s45, {i}")
        a("s_and_b32 s47, s47, 7")
        a("s_mul_i32 s47, s47, 1536")
        a("s_add_u32 s47, s47, s46")
        a(f"buffer_load_dwordx4 {ar(AQ + i*8, 4)}, v{vq1}, s[4:7], s47 offen")
        a(f"buffer_load_dwordx2 {ar(AQ + i*8 + 4, 2)}, v{vq2}, s[4:7], s47 offen")
    a(f"v_mov_b32 v{t[7]}, 0")
    a(f"v_mov_b32 v{t[6]}, {LFLAG}")
    a(f"ds_write_b32 v{t[6]}, v{t[7]}")

    def kload(buf, soff):
        a(f"buffer_load_dwordx4 {vr(K + buf*8, 4)}, v{vk1}, s[4:7], {soff} offen")
        a(f"buffer_load_dwordx4 {vr(K + buf*8 + 4, 4)}, v{vk2}, s[4:7], {soff} offen")

    def vload(buf, soff):
        a(f"buffer_load_dwordx4 {vr(V + buf*8, 4)}, v{vl16}, s[4:7], {soff} offen")
        a(f"buffer_load_dwordx4 {vr(V + buf*8 + 4, 4)}, v{vl16}, s[4:7], {soff} offen offset:1024")

    def qk(dst, kbuf, qt, part):
        c = "0" if part == 0 else vr(dst, 16)
        a(f"v_mfma_f32_32x32x16_bf16 {vr(dst,16)}, {vr(K + kbuf*8 + part*4, 4)}, {ar(AQ + qt*8 + part*4, 4)}, {c}")

    def pv(qt, pb, vbuf, part):
        a(f"v_mfma_f32_32x32x16_bf16 {ar(AO + qt*16,16)}, {vr(V + vbuf*8 + part*4, 4)}, {vr(P + pb*8 + part*4, 4)}, {ar(AO + qt*16,16)}")

    restart = f"{name}_restart"
    a.label(restart)
    kload(0, "s50")
    vload(0, "s51")
    vload(1, "s51")
    for qt in range(2):
        a(f"v_accvgpr_write_b32 a{AQ+qt*8+6}, 0")
        a(f"v_accvgpr_write_b32 a{AQ+qt*8+7}, 0")
    a(f"v_mov_b32 v{vmx}, 0xff800000")
    a(f"v_mov_b32 v{vmx+1}, 0xff800000")
    a("s_mov_b32 s47, s43")
    a("s_mov_b32 s48, s56")
    mx = f"{name}_mx"
    a.label(mx)
    kload(1, "s47")
    a("s_waitcnt vmcnt(0)")
    for qt in range(2):
        qk(S + qt*16, 1, qt, 0)
        qk(S + qt*16, 1, qt, 1)
    a("s_nop 15")
    a("s_add_u32 s47, s47, 1536")
    a("s_sub_u32 s48, s48, 1")
    for qt in range(2):
        for i in range(8):
            a(f"v_max3_f32 v{vmx+qt}, v{S+qt*16+2*i}, v{S+qt*16+2*i+1}, v{vmx+qt}")
    a("s_cmp_lg_u32 s48, 0")
    a(f"s_cbranch_scc1 {mx}")
    a("s_lshl_b32 s47, s45, 9")
    a(f"v_lshl_add_u32 v{t[4]}, v1, 3, s47")
    for qt in range(2):
        m = vmx + qt
        a(f"v_mov_b32 v{t[2]}, v{m}")
        a(f"v_mov_b32 v{t[3]}, v{m}")
        a("s_nop 1")
        a(f"v_permlane32_swap_b32 v{t[2]}, v{t[3]}")
        a("s_nop 1")
        a(f"v_max_f32 v{m}, v{t[2]}, v{t[3]}")
        a(f"v_sub_f32 v{m}, 0, v{m}")
        a(f"v_and_b32 v{t[2]}, 0xffff0000, v{m}")
        a(f"v_sub_f32 v{m}, v{m}, v{t[2]}")
        a(f"v_and_b32 v{t[3]}, 0xffff0000, v{m}")
        a(f"v_sub_f32 v{m}, v{m}, v{t[3]}")
        a(f"v_lshrrev_b32 v{t[2]}, 16, v{t[2]}")
        a(f"v_or_b32 v{t[2]}, v{t[2]}, v{t[3]}")
        a(f"v_lshrrev_b32 v{t[3]}, 16, v{m}")
        a(f"v_cndmask_b32 v{pk}, 0, v{t[2]}, s[60:61]")
        a(f"v_cndmask_b32 v{pk+1}, 0, v{t[3]}, s[60:61]")
        a(f"ds_write_b64 v{t[4]}, {vr(pk,2)} offset:{LM + qt*512}")
        a(f"ds_write_b64 v{t[4]}, {vr(pk,2)} offset:{LM + qt*512 + 4096}")
    for i in range(128):
        a(f"v_accvgpr_write_b32 a{AO+i}, 0")
    for i in range(4):
        a(f"v_mov_b32 v{P+12+i}, 0")
    a("s_waitcnt lgkmcnt(0)")
    a("s_barrier")
    for i in range(8):
        a(f"ds_read_b64 {ar(AQ + i*8 + 6, 2)}, v{t[4]} offset:{LM + i*512}")
    a("s_waitcnt lgkmcnt(0)")
    stamp(a, 2)
    qk(S, 0, 0, 0)
    qk(S, 0, 0, 1)
    a("s_add_u32 s52, s50, 1536")
    a("s_add_u32 s53, s51, 2048")
    a("s_mov_b32 s48, 0")
    a("s_nop 7")

    def unit(u, buf, hook_start=None, hook_after_pv2=None, hook_mid=None):
        sb = u % 2
        X = S + sb * 16
        Y = S + (1 - sb) * 16
        nq = (u + 1) % 8
        kb = buf if u < 7 else buf ^ 1
        pq = (u - 1) % 8
        pvb = buf if u > 0 else buf ^ 1
        if hook_start: hook_start()
        qk(Y, kb, nq, 0)
        for i in range(4): a(f"v_exp_f32 v{X+i}, v{X+i}")
        qk(Y, kb, nq, 1)
        for i in range(4, 8): a(f"v_exp_f32 v{X+i}, v{X+i}")
        pv(pq, 1 - sb, pvb, 1)
        if hook_after_pv2: hook_after_pv2()
        for i in range(4): a(f"v_cvt_pk_bf16_f32 v{P+sb*8+i}, v{X+2*i}, v{X+2*i+1}")
        for i in range(8, 12): a(f"v_exp_f32 v{X+i}, v{X+i}")
        pv(u, sb, buf, 0)
        if hook_mid: hook_mid()
        for i in range(12, 16): a(f"v_exp_f32 v{X+i}, v{X+i}")
        for i in range(4, 8): a(f"v_cvt_pk_bf16_f32 v{P+sb*8+i}, v{X+2*i}, v{X+2*i+1}")

    loop = f"{name}_loop"
    a.raw(".p2align 6")
    a.label(loop)
    for buf in range(2):
        for u in range(8):
            hs = hp = hm = None
            if u == 0:
                def hp(buf=buf):
                    kload(buf ^ 1, "s52")
                def hm(buf=buf):
                    vload(buf ^ 1, "s53")
            if u == 1:
                def hp():
                    a("s_add_u32 s52, s52, 1536")
                def hm():
                    a("s_add_u32 s53, s53, 2048")
            if u == 2 and buf == 1:
                def hp():
                    a("s_add_u32 s48, s48, 1")
                def hm():
                    a("s_cmp_lt_u32 s48, 8")
            if u == 7:
                def hs():
                    a("s_waitcnt vmcnt(0)")
            unit(u, buf, hs, hp, hm)
    a(f"s_cbranch_scc1 {loop}")
    a("s_nop 1")
    pv(7, 1, 1, 1)
    stamp(a, 3)
    for k in range(3):
        a(f"s_add_u32 s47, s3, {k+1}")
        a("s_and_b32 s47, s47, 3")
        a("s_mul_i32 s47, s47, 18432")
        a(f"s_add_u32 s47, s47, {LC + k*6144}")
        a(f"v_add_u32 v{t[k]}, s47, v{vl16}")
    a("s_mul_i32 s47, s3, 18432")
    a(f"s_add_u32 s47, s47, {LC}")
    a(f"v_add_u32 v{t[3]}, s47, v{vl16}")
    a("s_nop 3")
    for i in range(2, 8):
        for j in range(3):
            a(f"ds_write_b128 v{t[i//2 - 1]}, {ar(AO + i*16 + j*4, 4)} offset:{(i%2)*3072 + j*1024}")
    for i in range(8):
        a(f"v_accvgpr_read_b32 v{S+i}, a{AO + i*16 + 8}")
    for i in range(1, 8):
        a(f"v_add_f32 v{S}, v{S}, v{S+i}")
    a(f"s_mov_b32 s47, {hexf(2.0**100)}")
    a(f"v_cmp_nge_f32 vcc, s47, v{S}")
    a("s_andn2_b64 vcc, vcc, s[60:61]")
    nb = f"{name}_notbad"
    a("s_cbranch_vccz " + nb)
    a(f"v_mov_b32 v{t[7]}, 1")
    a(f"ds_write_b32 v{t[6]}, v{t[7]}")
    a.label(nb)
    a("s_waitcnt lgkmcnt(0)")
    a("s_barrier")
    a(f"ds_read_b32 v{t[7]}, v{t[6]}")
    RB = S
    assert P == S + 32 and K == P + 16 and V == K + 16
    for k in range(3):
        for qt in range(2):
            for j in range(3):
                a(f"ds_read_b128 {vr(RB + ((k*2+qt)*3 + j)*4, 4)}, v{t[3]} offset:{k*6144 + qt*3072 + j*1024}")
        if k == 0:
            pass
    a("s_waitcnt lgkmcnt(15)")
    a("s_waitcnt lgkmcnt(0)")
    a(f"v_readfirstlane_b32 s47, v{t[7]}")
    fin = f"{name}_fin"
    a("s_cmp_eq_u32 s47, 0")
    a(f"s_cbranch_scc1 {fin}")
    a("s_cmp_eq_u32 s56, 64")
    a(f"s_cbranch_scc1 {fin}")
    a("s_mov_b32 s56, 64")
    a("s_barrier")
    a(f"s_branch {restart}")
    a.label(fin)
    a("s_lshl_b32 s47, s37, 3")
    a("s_add_u32 s47, s47, s45")
    a("s_mul_i32 s47, s47, 40960")
    a(f"s_add_u32 s47, s47, {WS_O}")
    a("s_lshl_b32 s48, s36, 10")
    a("s_add_u32 s48, s48, s47")
    a("s_lshr_b32 s49, s36, 2")
    a("s_add_u32 s49, s49, 32")
    a("s_lshl_b32 s49, s49, 10")
    a("s_add_u32 s49, s49, s47")
    a("s_bfe_u32 s47, s36, 0x10001")
    a("s_lshl_b32 s47, s47, 9")
    a("s_add_u32 s49, s49, s47")
    a("s_and_b32 s47, s36, 1")
    a("s_lshl_b32 s47, s47, 3")
    a("s_add_u32 s49, s49, s47")
    o = R.alloc("o", 12, 4)
    po = R.alloc("po", 8, 4)
    for qt in range(2):
        for i in range(12):
            a(f"v_accvgpr_read_b32 v{o+i}, a{AO + qt*16 + i}")
        for k in range(3):
            for i in range(12):
                a(f"v_add_f32 v{o+i}, v{o+i}, v{RB + (k*2+qt)*12 + i}")
        a(f"v_rcp_f32 v{t[0]}, v{o+8}")
        a("s_nop 0")
        a(f"v_mov_b32 v{t[1]}, v{t[0]}")
        a("s_nop 1")
        a(f"v_permlane32_swap_b32 v{t[0]}, v{t[1]}")
        a("s_nop 1")
        for i in range(12):
            a(f"v_mul_f32 v{o+i}, v{o+i}, v{t[1]}")
        for i in range(6):
            a(f"v_cvt_pk_bf16_f32 v{po+i}, v{o+2*i}, v{o+2*i+1}")
        a(f"buffer_store_dwordx4 {vr(po,4)}, v{vl16}, s[4:7], s48 offen")
        a("s_mov_b64 exec, s[60:61]")
        a(f"buffer_store_dwordx2 {vr(po+4,2)}, v{vl16}, s[4:7], s49 offen")
        a("s_mov_b64 exec, -1")
        if qt == 0:
            a("s_add_u32 s48, s48, 40960")
            a("s_add_u32 s49, s49, 40960")
    stamp(a, 4)
    stamp_flush(a, 5, 4, 1, 4, 5)
    return R.hw
```

```python
from asmlib import *
import asmlib
from k1 import WS_H, WS_O, WS_WF, WS_BYTES

BLOCK = 256
VGPR = 256
RS = 336
K3_LDS = 4 * 64 * RS
DEPTH = 6


def decode_tile(a):
    a("s_and_b32 s40, s2, 7")
    a("s_lshr_b32 s41, s2, 3")
    a("s_and_b32 s42, s40, 3")
    a("s_lshl_b32 s42, s42, 3")
    a("s_and_b32 s43, s41, 7")
    a("s_add_u32 s36, s42, s43")
    a("s_lshr_b32 s42, s40, 2")
    a("s_lshl_b32 s42, s42, 2")
    a("s_lshr_b32 s43, s41, 3")
    a("s_add_u32 s37, s42, s43")


def gen_k3(a, name):
    kernel_header(a, name)
    done = f"{name}_done"
    a("s_cmp_ge_u32 s2, 256")
    a(f"s_cbranch_scc1 {done}")
    stamp(a, 0, True)
    stamp(a, 1)
    a("s_load_dwordx2 s[24:25], s[0:1], 0")
    a("s_load_dwordx4 s[28:31], s[0:1], 56")
    a("s_load_dwordx2 s[32:33], s[0:1], 80")
    a("v_lshrrev_b32 v2, 6, v0")
    a("v_and_b32 v1, 63, v0")
    a("s_nop 0")
    a("v_readfirstlane_b32 s3, v2")
    decode_tile(a)
    a("v_and_b32 v2, 31, v1")
    a("v_lshrrev_b32 v3, 5, v1")
    R = Regs(4, VGPR)
    t = [R.alloc(f"t{i}") for i in range(8)]
    vl16 = R.alloc("vl16")
    vt2 = R.alloc("vt2")
    acc = R.alloc("acc", 96, 4)
    F = R.alloc("F", 20 * DEPTH, 4)
    a(f"v_lshlrev_b32 v{vl16}, 4, v1")
    a(f"v_and_b32 v{vt2}, 15, v1")
    a(f"v_lshl_add_u32 v{vt2}, v3, 4, v{vt2}")
    a(f"v_lshlrev_b32 v{vt2}, 4, v{vt2}")
    a("s_mul_i32 s44, s36, 196608")
    a("s_mul_i32 s45, s3, 24576")
    a("s_add_u32 s44, s44, s45")
    a(f"s_add_u32 s44, s44, {WS_H}")
    a("s_add_u32 s45, s44, 98304")
    a("s_mul_i32 s46, s37, 136")
    a("s_mul_i32 s47, s3, 24")
    a("s_add_u32 s47, s47, s46")
    a("s_mul_i32 s47, s47, 2560")
    a(f"s_add_u32 s47, s47, {WS_WF}")
    a("s_mul_i32 s48, s36, 81920")
    a("s_lshl_b32 s49, s3, 13")
    a("s_add_u32 s49, s49, s48")
    a(f"s_add_u32 s49, s49, {WS_O}")
    a("s_add_u32 s50, s49, 40960")
    a("s_lshl_b32 s51, s3, 11")
    a("s_add_u32 s51, s51, s48")
    a(f"s_add_u32 s51, s51, {WS_O + 32768}")
    a("s_add_u32 s52, s51, 40960")
    a("s_lshl_b32 s53, s3, 3")
    a("s_add_u32 s53, s53, s46")
    a("s_add_u32 s53, s53, 96")
    a("s_mul_i32 s53, s53, 2560")
    a(f"s_add_u32 s53, s53, {WS_WF}")
    a("s_lshl_b32 s54, s3, 1")
    a("s_add_u32 s54, s54, s46")
    a("s_add_u32 s54, s54, 128")
    a("s_mul_i32 s54, s54, 2560")
    a(f"s_add_u32 s54, s54, {WS_WF}")
    a("s_waitcnt lgkmcnt(0)")
    srd(a, 4, 32, WS_BYTES)
    srd(a, 8, 24, 2048 * 640 * 2)
    srd(a, 12, 28, 640 * 2)
    srd(a, 16, 30, 2048 * 640 * 2)
    for i in range(96):
        a(f"v_mov_b32 v{acc+i}, 0")
    NS = 34

    def loads(n):
        b = F + (n % DEPTH) * 20
        if n < 24:
            a0, a1, w = 44, 45, 47
        elif n < 32:
            a0, a1, w = 49, 50, 53
        else:
            a0, a1, w = 51, 52, 54
        a(f"buffer_load_dwordx4 {vr(b,4)}, v{vl16}, s[4:7], s{a0} offen")
        a(f"buffer_load_dwordx4 {vr(b+4,4)}, v{vl16}, s[4:7], s{a1} offen")
        a(f"buffer_load_dwordx4 {vr(b+8,4)}, v{vl16}, s[4:7], s{w} offen")
        a(f"buffer_load_dwordx4 {vr(b+12,4)}, v{vl16}, s[4:7], s{w} offen offset:1024")
        a(f"buffer_load_dwordx4 {vr(b+16,4)}, v{vt2}, s[4:7], s{w} offen offset:2048")
        a(f"s_add_u32 s{a0}, s{a0}, 1024")
        a(f"s_add_u32 s{a1}, s{a1}, 1024")
        a(f"s_add_u32 s{w}, s{w}, 2560")

    for n in range(DEPTH - 1):
        loads(n)
    for n in range(NS):
        if n + DEPTH - 1 < NS:
            loads(n + DEPTH - 1)
            a(f"s_waitcnt vmcnt({5*(DEPTH-1)})")
        else:
            a(f"s_waitcnt vmcnt({5*(NS-1-n)})")
        b = F + (n % DEPTH) * 20
        for nt in range(3):
            for rt in range(2):
                c = acc + (nt * 2 + rt) * 16
                a(f"v_mfma_f32_32x32x16_bf16 {vr(c,16)}, {vr(b+8+nt*4,4)}, {vr(b+rt*4,4)}, {vr(c,16)}")
    stamp(a, 2)
    final_reduce(a, R, t, lambda i, n: vr(acc + i, n), F, 0)
    stamp(a, 3)
    stamp_flush(a, 4, 4, 2, 4, 5)
    a.label(done)
    a("s_endpgm")


def final_reduce(a, R, t, accreg, F, lbase):
    XV = F
    BV = F + 10
    LA = F + 20
    GA = F + 25
    PD = F + 32
    a("s_mul_i32 s44, s36, 81920")
    a("s_mul_i32 s45, s37, 160")
    a("s_add_u32 s44, s44, s45")
    for it in range(5):
        a(f"v_add_u32 v{t[0]}, {it*256}, v0")
        a(f"v_mul_u32_u24 v{t[1]}, 52429, v{t[0]}")
        a(f"v_lshrrev_b32 v{t[1]}, 20, v{t[1]}")
        a(f"v_mul_u32_u24 v{t[2]}, 20, v{t[1]}")
        a(f"v_sub_u32 v{t[2]}, v{t[0]}, v{t[2]}")
        a(f"v_mul_u32_u24 v{t[3]}, {RS}, v{t[1]}")
        a(f"v_lshl_add_u32 v{LA+it}, v{t[2]}, 4, v{t[3]}")
        a(f"v_mul_u32_u24 v{t[3]}, 1280, v{t[1]}")
        a(f"v_lshl_add_u32 v{GA+it}, v{t[2]}, 3, v{t[3]}")
        a(f"v_lshlrev_b32 v{t[2]}, 3, v{t[2]}")
        a(f"buffer_load_dwordx2 {vr(XV+2*it,2)}, v{GA+it}, s[8:11], s44 offen")
        a(f"buffer_load_dwordx2 {vr(BV+2*it,2)}, v{t[2]}, s[12:15], s45 offen")
    a(f"s_mul_i32 s46, s3, {64*RS}")
    a(f"v_mul_u32_u24 v{t[0]}, {RS}, v2")
    a(f"v_lshl_add_u32 v{t[0]}, v3, 4, v{t[0]}")
    a(f"v_add_u32 v{t[0]}, s46, v{t[0]}")
    for nt in range(3):
        for rt in range(2):
            for q in range(4 if nt < 2 else 2):
                a(f"ds_write_b128 v{t[0]}, {accreg((nt*2+rt)*16 + q*4, 4)} offset:{lbase + rt*32*RS + nt*128 + q*32}")
    a("s_waitcnt lgkmcnt(0)")
    a("s_barrier")
    for it in range(5):
        for w in range(4):
            a(f"ds_read_b128 {vr(PD + it*16 + w*4, 4)}, v{LA+it} offset:{lbase + w*64*RS}" if lbase + w*64*RS < 65536 else
              f"ds_read_b128 {vr(PD + it*16 + w*4, 4)}, v{LA+it} offset:{lbase + w*64*RS}")
    a("s_waitcnt vmcnt(0)")
    for it in range(5):
        a(f"s_waitcnt lgkmcnt({min(15, 4*(4-it))})")
        p = PD + it * 16
        for i in range(4):
            a(f"v_add_f32 v{p+i}, v{p+i}, v{p+4+i}")
            a(f"v_add_f32 v{p+8+i}, v{p+8+i}, v{p+12+i}")
        for src in (XV, BV):
            a(f"v_lshlrev_b32 v{t[0]}, 16, v{src+2*it}")
            a(f"v_and_b32 v{t[1]}, 0xffff0000, v{src+2*it}")
            a(f"v_lshlrev_b32 v{t[2]}, 16, v{src+2*it+1}")
            a(f"v_and_b32 v{t[3]}, 0xffff0000, v{src+2*it+1}")
            for i in range(4):
                a(f"v_add_f32 v{p+i}, v{p+i}, v{t[i]}")
        for i in range(4):
            a(f"v_add_f32 v{p+i}, v{p+i}, v{p+8+i}")
        a(f"v_cvt_pk_bf16_f32 v{p+4}, v{p}, v{p+1}")
        a(f"v_cvt_pk_bf16_f32 v{p+5}, v{p+2}, v{p+3}")
        a(f"buffer_store_dwordx2 {vr(p+4,2)}, v{GA+it}, s[16:19], s44 offen")
```

```python
import sys, importlib
sys.path.insert(0, "gen")
from asmlib import *
import k1

HEADER = open("parallel_sum__softmax_full_mha__mixer_channel_mlp__prompt.s.ref").read().split("; Override launch")[0]

def build(out, kernels):
    a = Asm()
    a.raw(HEADER.rstrip())
    for (name, gen, grid, block, lds, vgpr) in kernels:
        a.raw(f"; @launch kernel={name} grid=({grid},1,1) block=({block},1,1) lds={lds}")
    a.raw('.amdgcn_target "amdgcn-amd-amdhsa--gfx950"')
    for (name, gen, grid, block, lds, vgpr) in kernels:
        gen(a, name)
    for (name, gen, grid, block, lds, vgpr) in kernels:
        kernel_desc(a, name, vgpr)
    open(out, "w").write(a.text())

if __name__ == "__main__":
    which = sys.argv[1] if len(sys.argv) > 1 else "all"
    out = sys.argv[2] if len(sys.argv) > 2 else "parallel_sum__softmax_full_mha__mixer_channel_mlp__prompt.s"
    import asmlib
    if "stamp" in sys.argv: asmlib.STAMP = True
    if "nocomp" in sys.argv: k1.NOCOMP = True
    if "nodma" in sys.argv: k1.NODMA = True
    if "nodot" in sys.argv: k1.NODOT = True
    if "rot" in sys.argv: k1.ROT = True
    if "nodot2" in sys.argv: k1.NODOT2 = True
    if "novst" in sys.argv: k1.NOVST = True
    ks = [("k1_kernel", k1.gen_k1, 256, 768, k1.K1_LDS, 168)]
    if which != "k1":
        import k2
        for f in ('NODMA','NOSYNC','NOLDS'):
            if 'x_'+f.lower() in sys.argv: setattr(k2, 'X_'+f, True)
        ks.append(("k2_kernel", k2.gen_k2, 256, k2.BLOCK, k2.K2_LDS, (k2.VGPR, k2.ACCUM)))
        if which != "k12":
            import k3
            ks.append(("k3_kernel", k3.gen_k3, 256, k3.BLOCK, k3.K3_LDS, k3.VGPR))
    build(out, ks)
```

```python
import struct


def f32bits(x):
    return struct.unpack("<I", struct.pack("<f", x))[0]


def hexf(x):
    return "0x%08x" % f32bits(x)


class Asm:
    def __init__(self):
        self.lines = []
        self._uid = 0

    def __call__(self, s, *more):
        for t in (s,) + more:
            for ln in t.split("\n"):
                ln = ln.strip()
                if ln:
                    self.lines.append("    " + ln)

    def label(self, name):
        self.lines.append(name + ":")

    def comment(self, s):
        self.lines.append("    ; " + s)

    def raw(self, s):
        self.lines.append(s)

    def uid(self, base="L"):
        self._uid += 1
        return f"{base}_{self._uid}"

    def text(self):
        return "\n".join(self.lines) + "\n"


def vr(base, n=1):
    if n == 1:
        return f"v{base}"
    return f"v[{base}:{base + n - 1}]"


def sr(base, n=1):
    if n == 1:
        return f"s{base}"
    return f"s[{base}:{base + n - 1}]"


class Regs:
    def __init__(self, start=0, limit=256):
        self.next = start
        self.limit = limit
        self.names = {}
        self.hw = start

    def alloc(self, name, n=1, align=1):
        b = (self.next + align - 1) // align * align
        self.next = b + n
        assert self.next <= self.limit, f"out of registers allocating {name}: {self.next} > {self.limit}"
        self.names[name] = b
        self.hw = max(self.hw, self.next)
        return b

    def mark(self):
        return self.next

    def release(self, mark):
        self.next = mark


def srd(a, d, ptr, nbytes):
    a(f"s_mov_b32 s{d}, s{ptr}")
    a(f"s_and_b32 s{d+1}, s{ptr+1}, 0xffff")
    a(f"s_mov_b32 s{d+2}, {nbytes}")
    a(f"s_mov_b32 s{d+3}, 0x00020000")


def kernel_header(a, name):
    a.raw(".text")
    a.raw(f".globl {name}")
    a.raw(".p2align 8")
    a.raw(f".type {name},@function")
    a.label(name)


def kernel_desc(a, name, vgpr, sgpr=102):
    if isinstance(vgpr, tuple):
        vgpr, acc = vgpr
    else:
        acc = (vgpr + 3) // 4 * 4
    a.raw('.section .rodata,"a"')
    a.raw(".p2align 6")
    a.raw(f".amdhsa_kernel {name}")
    a.raw(f"  .amdhsa_next_free_vgpr {vgpr}")
    a.raw(f"  .amdhsa_next_free_sgpr {sgpr}")
    a.raw(f"  .amdhsa_accum_offset {acc}")
    a.raw("  .amdhsa_group_segment_fixed_size 0")
    a.raw("  .amdhsa_kernarg_size 88")
    a.raw("  .amdhsa_user_sgpr_count 2")
    a.raw("  .amdhsa_user_sgpr_kernarg_segment_ptr 1")
    a.raw("  .amdhsa_system_sgpr_workgroup_id_x 1")
    a.raw("  .amdhsa_float_denorm_mode_32 3")
    a.raw(".end_amdhsa_kernel")


STAMP = False
SB = 64
WS_STAMP = 0x4000000
def stamp(a, idx, real=False):
    if not STAMP:
        return
    a(f"s_mem{'real' if real else ''}time s[{SB+2*idx}:{SB+1+2*idx}]")

def stamp_flush(a, n, wsrd, kidx, vt0, vt1):
    if not STAMP:
        return
    a("s_waitcnt lgkmcnt(0) vmcnt(0)")
    a(f"s_memrealtime s[{SB+2*n}:{SB+1+2*n}]")
    a("s_waitcnt lgkmcnt(0)")
    a("s_lshl_b32 s62, s2, 4")
    a("s_add_u32 s62, s62, s3")
    a("s_lshl_b32 s62, s62, 6")
    a(f"s_add_u32 s62, s62, {WS_STAMP + kidx*0x100000}")
    a("s_mov_b64 exec, 1")
    a(f"v_mov_b32 v{vt0}, 0")
    for i in range(n+1):
        a(f"v_mov_b32 v{vt1}, s{SB+2*i}")
        a(f"buffer_store_dword v{vt1}, v{vt0}, s[{wsrd}:{wsrd+3}], s62 offen offset:{4*i}")
        a("s_nop 1")
```

```python
import math
from asmlib import *
import asmlib

WS_QKV = 0
WS_VT = 0x600000
WS_H = 0xA00000
WS_O = 0x1000000
WS_WF = 0x1300000
WS_FLAG = 0x1700000
WS_BYTES = 268435456

LX = 0
LQ = 49152
L1 = 98304
LSTAT = 135168
LCS = 136192
LB1 = 137088
K1_LDS = 137472

QSCALE = (20 ** -0.5) * math.log2(math.e)
EPS = 1e-5
STFLAG = ""
PREFETCH = False
NOCOMP = False
NODMA = False
NOSTAT = False
BARFIRST = True


def rbf(a, d, s):
    a(f"v_cvt_pk_bf16_f32 v{d}, v{s}, v{s}")
    a(f"v_lshlrev_b32 v{d}, 16, v{d}")


def xhalf_add(a, v, t0, t1):
    a(f"v_mov_b32 v{t0}, v{v}")
    a(f"v_mov_b32 v{t1}, v{v}")
    a("s_nop 1")
    a(f"v_permlane32_swap_b32 v{t0}, v{t1}")
    a("s_nop 1")
    a(f"v_add_f32 v{v}, v{t0}, v{t1}")


def gen_k1(a, name):
    kernel_header(a, name)
    done = f"{name}_done"
    a("s_cmp_ge_u32 s2, 256")
    a(f"s_cbranch_scc1 {done}")
    stamp(a, 0, True)
    stamp(a, 1)
    a("s_load_dwordx4 s[24:27], s[0:1], 0")
    a("s_load_dwordx4 s[28:31], s[0:1], 32")
    a("s_load_dwordx2 s[32:33], s[0:1], 80")
    a("s_load_dwordx2 s[34:35], s[0:1], 16")
    a("s_load_dwordx2 s[60:61], s[0:1], 48")
    a("v_lshrrev_b32 v2, 6, v0")
    a("v_and_b32 v1, 63, v0")
    a("s_and_b32 s40, s2, 7")
    a("v_readfirstlane_b32 s3, v2")
    a("s_lshr_b32 s41, s2, 3")
    a("s_and_b32 s42, s41, 7")
    a("s_lshr_b32 s43, s41, 3")
    a("s_and_b32 s44, s40, 1")
    a("s_lshl_b32 s44, s44, 3")
    a("s_add_u32 s36, s44, s42")
    a("s_lshr_b32 s44, s40, 1")
    a("s_lshl_b32 s44, s44, 2")
    a("s_add_u32 s37, s44, s43")
    a("v_and_b32 v2, 31, v1")
    a("v_lshrrev_b32 v3, 5, v1")
    a("s_cmp_ge_u32 s3, 8")
    a(f"s_cbranch_scc0 {name}_comp")
    gen_dma_wave(a, name)
    a.label(f"{name}_comp")
    a("s_cmp_ge_u32 s3, 4")
    a(f"s_cbranch_scc1 {name}_mlp")
    gen_qkv_wave(a, name)
    a.label(f"{name}_mlp")
    gen_mlp_wave(a, name)
    a.label(done)
    a("s_endpgm")


def srds(a, which):
    if "x" in which: srd(a, 4, 24, 2048 * 640 * 2)
    if "q" in which: srd(a, 8, 26, 640 * 1920 * 2)
    if "1" in which: srd(a, 12, 28, 640 * 1536 * 2)
    if "b" in which: srd(a, 20, 30, 1536 * 2)
    if "w" in which: srd(a, 16, 32, WS_BYTES)


def x_addrs(a, vxa, rowreg, tmp):
    a(f"v_lshrrev_b32 v{tmp}, 1, v{rowreg}")
    a(f"v_and_b32 v{tmp}, 7, v{tmp}")
    a(f"v_xor_b32 v{tmp}, v{tmp}, v3")
    a(f"v_lshlrev_b32 v{tmp}, 4, v{tmp}")
    a(f"v_lshl_add_u32 v{vxa}, v{rowreg}, 7, v{tmp}")
    for kk in range(1, 4):
        a(f"v_xor_b32 v{vxa+kk}, {kk << 5}, v{vxa}")


def tr_lane_parts(a, vr_, vc, vnh, vh2):
    a(f"v_bfe_u32 v{vr_}, v1, 2, 2")
    a(f"v_and_b32 v{vc}, 3, v1")
    a(f"v_bfe_u32 v{vnh}, v1, 4, 1")
    a(f"v_lshrrev_b32 v{vh2}, 5, v1")


def main_loop(a, name, reads, nreads, compute, pre, advance):
    if NOCOMP:
        reads = lambda k: None
        compute = lambda k: None
        pre = lambda: None
    if NOSTAT:
        pre = lambda: None
    a("s_mov_b32 s58, 0")
    a("s_mov_b32 s59, 0")
    a("s_barrier")
    stamp(a, 2)
    if asmlib.STAMP: a("s_waitcnt lgkmcnt(0)")
    reads(0)
    loop = f"{name}_loop"
    a.raw(".p2align 6")
    a.label(loop)
    for kk in range(4):
        if kk % 2 == 0:
            reads(kk + 1)
            if kk == 2:
                advance()
            a(f"s_waitcnt lgkmcnt({nreads})")
        else:
            a("s_waitcnt lgkmcnt(0)")
            if kk == 3 and BARFIRST:
                skip = f"{name}_last"
                a("s_cmp_eq_u32 s58, 9")
                a(f"s_cbranch_scc1 {skip}")
                a("s_barrier")
                a.label(skip)
                pre()
                reads(0)
            elif kk == 3:
                pre()
                skip = f"{name}_last"
                a("s_cmp_eq_u32 s58, 9")
                a(f"s_cbranch_scc1 {skip}")
                a("s_barrier")
                reads(0)
                a.label(skip)
            else:
                pre()
                reads(kk + 1)
        compute(kk)
    a("s_add_u32 s58, s58, 1")
    a("s_cmp_lt_u32 s58, 10")
    a(f"s_cbranch_scc1 {loop}")


def adv_deltas(a, strides, sregs):
    a("s_add_u32 s59, s59, 1")
    a("s_cmp_eq_u32 s59, 3")
    a("s_cselect_b32 s59, 0, s59")
    for st, sg in zip(strides, sregs):
        a(f"s_cselect_b32 s{sg}, {(-2*st) & 0xffffffff:#x}, s{sg+1}")


def gen_qkv_wave(a, name):
    R = Regs(4, 168)
    vxa = R.alloc("vxa", 4)
    vwa = R.alloc("vwa", 2)
    cs = R.alloc("cs")
    t = [R.alloc(f"t{i}") for i in range(9)]
    acc = R.alloc("acc", 64, 4)
    X = R.alloc("X", 16, 4)
    W = R.alloc("W", 16, 4)
    a("s_and_b32 s45, s3, 1")
    a("s_lshr_b32 s46, s3, 1")
    if PREFETCH:
        lp1, lp2, lpg, lpe = [f"{name}_pf{i}" for i in range(4)]
        lp3 = f"{name}_pf3b"
        a("s_cmp_eq_u32 s3, 3")
        a(f"s_cbranch_scc0 {lp3}")
        a(f"v_min_u32 v{t[0]}, 59, v1")
        a("s_mul_i32 s47, s2, 7680")
        a(f"v_lshlrev_b32 v{t[0]}, 7, v{t[0]}")
        a(f"v_min_u32 v{t[1]}, 24, v1")
        a("s_mul_i32 s49, s2, 3200")
        a(f"v_lshlrev_b32 v{t[1]}, 7, v{t[1]}")
        a("s_waitcnt lgkmcnt(0)")
        srd(a, 52, 60, 1536 * 640 * 2)
        a(f"buffer_load_dword v{t[8]}, v{t[0]}, s[52:55], s47 offen")
        srd(a, 52, 34, 640 * 640 * 2)
        a(f"buffer_load_dword v{t[8]}, v{t[1]}, s[52:55], s49 offen")
        a(f"s_branch {lpe}")
        a.label(lp3)
        a("s_lshr_b32 s48, s40, 1")
        a("s_cmp_eq_u32 s3, 1")
        a(f"s_cbranch_scc1 {lp1}")
        a("s_cmp_eq_u32 s3, 2")
        a(f"s_cbranch_scc1 {lp2}")
        a("s_and_b32 s47, s40, 1")
        a("s_lshl_b32 s47, s47, 10")
        a("s_lshl_b32 s49, s41, 5")
        a("s_add_u32 s47, s47, s49")
        a(f"v_add_u32 v{t[0]}, s47, v2")
        a(f"v_mul_u32_u24 v{t[0]}, 1280, v{t[0]}")
        a(f"v_lshl_add_u32 v{t[0]}, v3, 7, v{t[0]}")
        a("s_movk_i32 s47, 256")
        a("s_waitcnt lgkmcnt(0)")
        srd(a, 52, 24, 2048 * 640 * 2)
        a(f"s_branch {lpg}")
        a.label(lp1)
        a(f"v_and_b32 v{t[1]}, 15, v2")
        a(f"v_min_u32 v{t[1]}, 8, v{t[1]}")
        a(f"v_lshrrev_b32 v{t[0]}, 4, v2")
        a("s_lshl_b32 s49, s41, 1")
        a(f"v_add_u32 v{t[0]}, s49, v{t[0]}")
        a(f"v_lshl_add_u32 v{t[0]}, v3, 6, v{t[0]}")
        a(f"v_mul_u32_u24 v{t[0]}, 3840, v{t[0]}")
        a(f"v_lshl_add_u32 v{t[0]}, v{t[1]}, 7, v{t[0]}")
        a("s_mul_i32 s49, s48, 960")
        a("s_and_b32 s49, s49, 0xffffff80")
        a(f"v_add_u32 v{t[0]}, s49, v{t[0]}")
        a(f"s_mov_b32 s47, {2*64*3840}")
        a("s_waitcnt lgkmcnt(0)")
        srd(a, 52, 26, 640 * 1920 * 2)
        a(f"s_branch {lpg}")
        a.label(lp2)
        a(f"v_and_b32 v{t[1]}, 15, v2")
        a(f"v_min_u32 v{t[1]}, 5, v{t[1]}")
        a(f"v_lshrrev_b32 v{t[0]}, 4, v2")
        a("s_lshl_b32 s49, s41, 1")
        a(f"v_add_u32 v{t[0]}, s49, v{t[0]}")
        a(f"v_lshl_add_u32 v{t[0]}, v3, 6, v{t[0]}")
        a(f"v_mul_u32_u24 v{t[0]}, 3072, v{t[0]}")
        a(f"v_lshl_add_u32 v{t[0]}, v{t[1]}, 7, v{t[0]}")
        a("s_mul_i32 s49, s48, 768")
        a(f"v_add_u32 v{t[0]}, s49, v{t[0]}")
        a(f"s_mov_b32 s47, {2*64*3072}")
        a("s_waitcnt lgkmcnt(0)")
        srd(a, 52, 28, 640 * 1536 * 2)
        a.label(lpg)
        a("s_mov_b32 s49, s47")
        for s in range(1, 5):
            a(f"buffer_load_dword v{t[8]}, v{t[0]}, s[52:55], s49 offen")
            if s < 4:
                a("s_add_u32 s49, s49, s47")
        a.label(lpe)
    a("s_lshl_b32 s47, s45, 6")
    a(f"v_add_u32 v{t[0]}, s47, v2")
    x_addrs(a, vxa, t[0], t[1])
    tr_lane_parts(a, t[0], t[1], t[2], t[3])
    a("s_mul_i32 s47, s46, 120")
    a(f"v_lshlrev_b32 v{t[4]}, 5, v{t[2]}")
    a(f"v_lshl_add_u32 v{t[4]}, v{t[1]}, 3, v{t[4]}")
    a(f"v_add_u32 v{t[4]}, s47, v{t[4]}")
    a(f"v_lshl_add_u32 v{t[5]}, v{t[3]}, 3, v{t[0]}")
    a(f"v_lshlrev_b32 v{t[5]}, 8, v{t[5]}")
    a(f"v_add_u32 v{t[5]}, {LQ}, v{t[5]}")
    for tt in range(2):
        a(f"s_xor_b32 s47, s45, {tt}")
        a("s_lshl_b32 s47, s47, 6")
        a(f"v_add_u32 v{t[6]}, s47, v{t[4]}")
        a(f"v_lshrrev_b32 v{t[7]}, 6, v{t[6]}")
        a(f"v_xor_b32 v{t[7]}, v{t[7]}, v{t[0]}")
        a(f"v_and_b32 v{t[6]}, 63, v{t[6]}")
        a(f"v_lshl_add_u32 v{t[6]}, v{t[7]}, 6, v{t[6]}")
        a(f"v_add_u32 v{vwa+tt}, v{t[6]}, v{t[5]}")
    a(f"v_mov_b32 v{cs}, 0")
    for i in range(64):
        a(f"v_mov_b32 v{acc+i}, 0")
    a("s_mov_b32 s48, 0x3f803f80")
    a("s_movk_i32 s57, 16384")
    a("s_waitcnt lgkmcnt(0)")
    srds(a, "w")

    def reads(kk):
        p = kk % 2
        for rt in range(2):
            a(f"ds_read_b128 {vr(X + p*8 + rt*4, 4)}, v{vxa+kk} offset:{rt*4096}")
        for tt in range(2):
            for h in range(2):
                a(f"ds_read_b64_tr_b16 {vr(W + p*8 + tt*4 + h*2, 2)}, v{vwa+tt} offset:{kk*4096 + h*1024}")

    def compute(kk):
        p = kk % 2
        for tt in range(2):
            for rt in range(2):
                c = acc + (tt * 2 + rt) * 16
                a(f"v_mfma_f32_32x32x16_bf16 {vr(c,16)}, {vr(W + p*8 + tt*4, 4)}, {vr(X + p*8 + rt*4, 4)}, {vr(c,16)}")

    def pre():
        for pp in range(2):
            for k in range(4):
                a(f"v_dot2c_f32_bf16 v{cs}, s48, v{W + pp*8 + k}")

    def advance():
        adv_deltas(a, [16384], [56])
        for r in list(range(vxa, vxa + 4)) + [vwa, vwa + 1]:
            a(f"v_add_u32 v{r}, s56, v{r}")

    main_loop(a, name + "_q", reads, 6, compute, pre, advance)
    stamp(a, 3)
    xhalf_add(a, cs, t[0], t[1])
    a("s_lshl_b32 s47, s46, 8")
    a("s_lshl_b32 s49, s45, 7")
    a("s_add_u32 s47, s47, s49")
    a(f"s_add_u32 s47, s47, {LCS}")
    a(f"v_lshl_add_u32 v{t[0]}, v2, 2, s47")
    a(f"ds_write_b32 v{t[0]}, v{cs}")
    st = R.alloc("st", 4, 2)
    rs = R.alloc("rs", 8, 2)
    csr = X
    pk = R.alloc("pk", 4, 2)
    tmp = R.alloc("tmp", 8, 2)
    sa = R.alloc("sa", 2)
    a("s_lshl_b32 s47, s45, 9")
    a(f"s_add_u32 s47, s47, {LSTAT}")
    a(f"v_lshl_add_u32 v{t[0]}, v2, 3, s47")
    a("s_lshl_b32 s47, s46, 8")
    a(f"s_add_u32 s47, s47, {LCS}")
    a(f"v_lshl_add_u32 v{t[1]}, v3, 4, s47")
    a("s_mul_i32 s50, s37, 6")
    a("s_mul_i32 s47, s46, 3")
    a("s_add_u32 s50, s50, s47")
    a(f"s_mov_b32 s47, {hexf(QSCALE)}")
    for g in range(3):
        a(f"s_add_u32 s49, s50, {g}")
        a("s_cmp_lt_u32 s49, 32")
        a(f"s_cselect_b32 s{51+g}, s47, 1.0")
    a("s_mul_i32 s47, s3, 12288")
    a(f"v_mul_u32_u24 v{t[2]}, 48, v2")
    a(f"v_add_u32 v{t[2]}, s47, v{t[2]}")
    a(f"v_lshl_add_u32 v{sa}, v3, 3, v{t[2]}")
    a(f"v_mul_u32_u24 v{t[3]}, 3040, v3")
    a(f"v_add_u32 v{sa+1}, v{t[3]}, v{t[2]}")
    a(f"v_mul_u32_u24 v{t[2]}, 48, v1")
    a(f"v_add_u32 v{t[2]}, s47, v{t[2]}")
    a(f"v_lshl_add_u32 v{t[3]}, v1, 4, s47")
    a(f"v_bfe_u32 v{t[5]}, v1, 2, 2")
    a(f"v_lshl_add_u32 v{t[5]}, v3, 3, v{t[5]}")
    a(f"v_mul_u32_u24 v{t[5]}, 48, v{t[5]}")
    a(f"v_bfe_u32 v{t[6]}, v1, 4, 1")
    a(f"v_lshl_add_u32 v{t[5]}, v{t[6]}, 5, v{t[5]}")
    a(f"v_and_b32 v{t[6]}, 3, v1")
    a(f"v_lshl_add_u32 v{t[5]}, v{t[6]}, 3, v{t[5]}")
    a(f"v_add_u32 v{t[5]}, s47, v{t[5]}")
    a(f"v_lshlrev_b32 v{t[4]}, 4, v1")
    a("s_lshl_b32 s49, s36, 1")
    a("s_add_u32 s49, s49, s45")
    a("v_cmp_eq_u32 vcc, 1, v3")
    a("v_cmp_gt_u32 s[62:63], 21, v2")
    a(f"v_mov_b32 v{pk}, 0x3f803f80")
    a(f"v_mov_b32 v{pk+1}, 0x3f80")
    a("s_waitcnt lgkmcnt(0)")
    a("s_barrier")
    a(f"ds_read_b64 {vr(st,2)}, v{t[0]}")
    a(f"ds_read_b64 {vr(st+2,2)}, v{t[0]} offset:256")
    for tp in range(2):
        for q in range(4):
            a(f"ds_read_b128 {vr(csr + tp*16 + q*4, 4)}, v{t[1]} offset:{tp*128 + q*32}")
    for g in range(3):
        a(f"ds_write_b64 v{t[2]}, {vr(pk,2)} offset:{g*3072 + 40}")
    a("s_waitcnt lgkmcnt(11)")
    for rt in range(2):
        for g in range(3):
            a(f"v_mul_f32 v{rs + rt*4 + g}, s{51+g}, v{st + rt*2 + 1}")
        a(f"v_cndmask_b32 v{rs + rt*4 + 3}, v{rs + rt*4}, v{rs + rt*4 + 1}, vcc")
    a("s_waitcnt lgkmcnt(3)")
    lab1 = f"{name}_q_rh1"
    labj = f"{name}_q_join"
    a("s_cmp_eq_u32 s45, 1")
    a(f"s_cbranch_scc1 {lab1}")
    for rh in range(2):
        if rh == 1:
            a.label(lab1)
        for tt in range(2):
            tp = tt ^ rh
            for rt in range(2):
                c = acc + (tt * 2 + rt) * 16
                for q in range(4):
                    pc0 = 8 * tp + 2 * q
                    g, d4 = pc0 // 5, pc0 % 5
                    wrap = d4 == 4
                    rsel = rs + rt * 4 + (3 if (wrap and g == 0) else g)
                    rp, rsl = rsel & ~1, rsel & 1
                    tb = tmp + (q % 2) * 4
                    for i in range(2):
                        a(f"v_pk_fma_f32 {vr(tb+2*i,2)}, {vr(st + rt*2,2)}, {vr(csr + tp*16 + q*4 + 2*i,2)}, {vr(c + q*4 + 2*i,2)} op_sel_hi:[0,1,1]")
                    for i in range(2):
                        a(f"v_pk_mul_f32 {vr(tb+2*i,2)}, {vr(tb+2*i,2)}, {vr(rp,2)} op_sel:[0,{rsl}] op_sel_hi:[1,{rsl}]")
                    pb = pk + (q % 2) * 2
                    a(f"v_cvt_pk_bf16_f32 v{pb}, v{tb}, v{tb+1}")
                    a(f"v_cvt_pk_bf16_f32 v{pb+1}, v{tb+2}, v{tb+3}")
                    off = g * 3072 + rt * 32 * 48 + d4 * 8
                    a(f"ds_write_b64 v{sa + (1 if wrap else 0)}, {vr(pb,2)} offset:{off}")
        if rh == 0:
            a(f"s_branch {labj}")
    a.label(labj)
    a("s_waitcnt lgkmcnt(0)")
    for g in range(3):
        lv = f"{name}_v{g}"
        le = f"{name}_ve{g}"
        a(f"s_add_u32 s54, s50, {g}")
        a("s_cmp_ge_u32 s54, 64")
        a(f"s_cbranch_scc1 {lv}")
        for e in range(3):
            a(f"ds_read_b128 {vr(acc + g*16 + e*4, 4)}, v{t[3]} offset:{g*3072 + e*1024}")
        a("s_mul_i32 s47, s54, 98304")
        a("s_mul_i32 s55, s49, 3072")
        a("s_add_u32 s47, s47, s55")
        for e in range(3):
            a(f"s_waitcnt lgkmcnt({2-e})")
            a(f"buffer_store_dwordx4 {vr(acc + g*16 + e*4, 4)}, v{t[4]}, s[16:19], s47 offen offset:{e*1024}{STFLAG}")
        a(f"s_branch {le}")
        a.label(lv)
        for e in range(4):
            for h in range(2):
                a(f"ds_read_b64_tr_b16 {vr(acc + g*16 + e*4 + h*2, 2)}, v{t[5]} offset:{g*3072 + e*768 + h*192}")
        a("s_sub_u32 s47, s54, 64")
        a("s_lshl_b32 s47, s47, 17")
        a("s_lshl_b32 s55, s49, 12")
        a("s_add_u32 s47, s47, s55")
        a(f"s_add_u32 s47, s47, {WS_VT}")
        a("s_mov_b64 exec, s[62:63]")
        for e in range(4):
            a(f"s_waitcnt lgkmcnt({6-2*e})")
            a(f"buffer_store_dwordx4 {vr(acc + g*16 + e*4, 4)}, v{t[4]}, s[16:19], s47 offen offset:{e*1024}{STFLAG}")
        a("s_mov_b64 exec, -1")
        a.label(le)
    stamp(a, 4)
    stamp_flush(a, 5, 16, 0, 4, 5)
    a("s_endpgm")


def gen_mlp_wave(a, name):
    R = Regs(4, 168)
    vxa = R.alloc("vxa", 4)
    vwa = R.alloc("vwa", 3)
    cs = R.alloc("cs")
    sm = R.alloc("sm")
    sq = R.alloc("sq")
    sm2 = R.alloc("sm2")
    sq2 = R.alloc("sq2")
    un = R.alloc("un", 4)
    t = [R.alloc(f"t{i}") for i in range(10)]
    acc = R.alloc("acc", 48, 4)
    X = R.alloc("X", 8, 4)
    W = R.alloc("W", 24, 4)
    a("s_setprio 2")
    a("s_sub_u32 s45, s3, 4")
    a("s_lshl_b32 s47, s45, 5")
    a(f"v_add_u32 v{t[0]}, s47, v2")
    x_addrs(a, vxa, t[0], t[1])
    tr_lane_parts(a, t[0], t[1], t[2], t[3])
    a(f"v_lshl_add_u32 v{t[5]}, v{t[3]}, 3, v{t[0]}")
    a(f"v_mul_u32_u24 v{t[5]}, 192, v{t[5]}")
    a(f"v_lshl_add_u32 v{t[5]}, v{t[2]}, 5, v{t[5]}")
    a(f"v_lshl_add_u32 v{t[5]}, v{t[1]}, 3, v{t[5]}")
    a(f"v_add_u32 v{t[5]}, {L1}, v{t[5]}")
    for tt in range(3):
        a(f"s_add_u32 s{51+tt}, s45, {tt}")
        a(f"s_cmp_ge_u32 s{51+tt}, 3")
        a("s_cselect_b32 s47, 3, 0")
        a(f"s_sub_u32 s{51+tt}, s{51+tt}, s47")
        a(f"s_lshl_b32 s47, s{51+tt}, 6")
        a(f"v_add_u32 v{vwa+tt}, s47, v{t[5]}")
    for r in (cs, sm, sq, sm2, sq2):
        a(f"v_mov_b32 v{r}, 0")
    for i in range(48):
        a(f"v_mov_b32 v{acc+i}, 0")
    a("s_mov_b32 s48, 0x3f803f80")
    a("s_movk_i32 s57, 16384")
    a("s_movk_i32 s55, 12288")
    a("s_waitcnt lgkmcnt(0)")
    srds(a, "w")

    def reads(kk):
        p = kk % 2
        a(f"ds_read_b128 {vr(X + p*4, 4)}, v{vxa+kk}")
        for tt in range(3):
            for h in range(2):
                a(f"ds_read_b64_tr_b16 {vr(W + p*12 + tt*4 + h*2, 2)}, v{vwa+tt} offset:{kk*3072 + h*768}")

    def compute(kk):
        p = kk % 2
        ops = []
        for i in range(4):
            x = X + p * 4 + i
            lo, hi = un + 2 * (i % 2), un + 2 * (i % 2) + 1
            ops += [f"v_lshlrev_b32 v{lo}, 16, v{x}", f"v_and_b32 v{hi}, 0xffff0000, v{x}",
                    f"v_add_f32 v{sm}, v{sm}, v{lo}", f"v_fmac_f32 v{sq}, v{lo}, v{lo}",
                    f"v_add_f32 v{sm2}, v{sm2}, v{hi}", f"v_fmac_f32 v{sq2}, v{hi}, v{hi}"]
        for tt in range(3):
            c = acc + tt * 16
            a(f"v_mfma_f32_32x32x16_bf16 {vr(c,16)}, {vr(W + p*12 + tt*4, 4)}, {vr(X + p*4, 4)}, {vr(c,16)}")
            for o in ops[tt * 8:(tt + 1) * 8]:
                if not NOSTAT: a(o)

    def pre():
        for pp in range(2):
            for k in range(4):
                a(f"v_dot2c_f32_bf16 v{cs}, s48, v{W + pp*12 + k}")

    def advance():
        adv_deltas(a, [16384, 12288], [56, 54])
        for r in range(vxa, vxa + 4):
            a(f"v_add_u32 v{r}, s56, v{r}")
        for r in range(vwa, vwa + 3):
            a(f"v_add_u32 v{r}, s54, v{r}")

    main_loop(a, name + "_m", reads, 7, compute, pre, advance)
    stamp(a, 3)
    a(f"v_add_f32 v{sm}, v{sm}, v{sm2}")
    a(f"v_add_f32 v{sq}, v{sq}, v{sq2}")
    xhalf_add(a, sm, t[0], t[1])
    xhalf_add(a, sq, t[0], t[1])
    mean, var, mbf, s1, r1, m2, s2 = t[0], t[1], t[2], t[3], t[4], t[5], t[6]
    tmp = t[7]
    st = R.alloc("st", 2, 2)
    rs2 = R.alloc("rs2", 2, 2)
    nm2 = rs2 + 1
    a(f"s_mov_b32 s47, {hexf(1.0/640)}")
    a(f"s_mov_b32 s49, {hexf(EPS)}")
    a(f"v_mul_f32 v{mean}, s47, v{sm}")
    a(f"v_mul_f32 v{var}, s47, v{sq}")
    a(f"v_fma_f32 v{var}, -v{mean}, v{mean}, v{var}")
    a(f"v_max_f32 v{var}, 0, v{var}")
    rbf(a, mbf, mean)
    rbf(a, tmp, var)
    a(f"v_add_f32 v{tmp}, s49, v{tmp}")
    rbf(a, tmp, tmp)
    a(f"v_sqrt_f32 v{tmp}, v{tmp}")
    a("s_lshl_b32 s47, s45, 8")
    rbf(a, s1, tmp)
    a(f"v_rcp_f32 v{r1}, v{s1}")
    a(f"s_add_u32 s47, s47, {LSTAT}")
    a(f"v_sub_f32 v{st}, 0, v{mbf}")
    a(f"v_mov_b32 v{st+1}, v{r1}")
    a(f"v_lshl_add_u32 v{t[8]}, v2, 3, s47")
    a(f"ds_write_b64 v{t[8]}, {vr(st,2)}")
    xhalf_add(a, cs, t[8], t[9])
    a("s_lshl_b32 s47, s51, 7")
    a(f"s_add_u32 s47, s47, {LCS + 512}")
    a(f"v_lshl_add_u32 v{t[8]}, v2, 2, s47")
    a(f"ds_write_b32 v{t[8]}, v{cs}")
    a("s_waitcnt lgkmcnt(0)")
    a("s_barrier")
    a("s_setprio 0")
    csr = X
    assert W == X + 8
    b1r = X + 16
    def cb_reads(tt):
        a(f"s_lshl_b32 s47, s{51+tt}, 7")
        a(f"v_lshl_add_u32 v{t[8]}, v3, 4, s47")
        a(f"v_add_u32 v{t[9]}, {LCS + 512}, v{t[8]}")
        a(f"v_add_u32 v{t[8]}, {LB1}, v{t[8]}")
        for q in range(4):
            a(f"ds_read_b128 {vr(csr + q*4, 4)}, v{t[9]} offset:{q*32}")
            a(f"ds_read_b128 {vr(b1r + q*4, 4)}, v{t[8]} offset:{q*32}")
    cb_reads(0)
    a(f"v_sub_f32 v{tmp}, v{mean}, v{mbf}")
    a(f"v_mul_f32 v{tmp}, v{tmp}, v{r1}")
    rbf(a, m2, tmp)
    a(f"v_mul_f32 v{tmp}, v{var}, v{r1}")
    a(f"v_mul_f32 v{tmp}, v{tmp}, v{r1}")
    rbf(a, tmp, tmp)
    a(f"v_add_f32 v{tmp}, s49, v{tmp}")
    rbf(a, tmp, tmp)
    a(f"v_sqrt_f32 v{tmp}, v{tmp}")
    a("s_nop 0")
    rbf(a, s2, tmp)
    a(f"v_mul_f32 v{tmp}, v{s1}, v{s2}")
    a(f"v_rcp_f32 v{rs2}, v{tmp}")
    a(f"v_fma_f32 v{tmp}, v{m2}, v{s1}, v{mbf}")
    a(f"v_mul_f32 v{nm2}, v{tmp}, v{rs2}")
    a(f"v_sub_f32 v{nm2}, 0, v{nm2}")
    u = R.alloc("u", 16, 4)
    w = R.alloc("w", 16, 4)
    pk = R.alloc("pk", 8, 4)
    kc = R.alloc("kc", 2, 2)
    k0 = -2.0 * math.log2(math.e) * math.sqrt(2.0 / math.pi)
    k1 = k0 * 0.044715
    a(f"v_mov_b32 v{kc}, {hexf(k1)}")
    a(f"v_mov_b32 v{kc+1}, {hexf(k0)}")
    a("s_lshl_b32 s47, s36, 2")
    a("s_add_u32 s47, s47, s45")
    a("s_mul_i32 s47, s47, 96")
    a("s_mul_i32 s49, s37, 6")
    a("s_add_u32 s47, s47, s49")
    a("s_lshl_b32 s47, s47, 10")
    a(f"s_add_u32 s55, s47, {WS_H}")
    a(f"v_lshlrev_b32 v{t[7]}, 4, v1")
    for tt in range(3):
        a(f"s_lshl_b32 s50, s{51+tt}, 11")
        a("s_add_u32 s50, s50, s55")
        a("s_waitcnt lgkmcnt(0)")
        c = acc + tt * 16
        for i in range(8):
            a(f"v_pk_fma_f32 {vr(u+2*i,2)}, {vr(rs2,2)}, {vr(csr+2*i,2)}, {vr(b1r+2*i,2)} op_sel:[1,0,0] op_sel_hi:[1,1,1]")
        if tt < 2:
            cb_reads(tt + 1)
        for i in range(8):
            a(f"v_pk_fma_f32 {vr(u+2*i,2)}, {vr(c+2*i,2)}, {vr(rs2,2)}, {vr(u+2*i,2)} op_sel_hi:[1,0,1]")
        for i in range(8):
            a(f"v_pk_mul_f32 {vr(w+2*i,2)}, {vr(u+2*i,2)}, {vr(u+2*i,2)}")
        for i in range(8):
            a(f"v_pk_fma_f32 {vr(w+2*i,2)}, {vr(w+2*i,2)}, {vr(kc,2)}, {vr(kc,2)} op_sel:[0,0,1] op_sel_hi:[1,0,1]")
        for i in range(8):
            a(f"v_pk_mul_f32 {vr(w+2*i,2)}, {vr(w+2*i,2)}, {vr(u+2*i,2)}")
        for i in range(16):
            a(f"v_exp_f32 v{w+i}, v{w+i}")
        for i in range(8):
            a(f"v_pk_add_f32 {vr(w+2*i,2)}, {vr(w+2*i,2)}, 1.0 op_sel_hi:[1,0]")
        for i in range(16):
            a(f"v_rcp_f32 v{w+i}, v{w+i}")
        for i in range(8):
            a(f"v_pk_mul_f32 {vr(u+2*i,2)}, {vr(u+2*i,2)}, {vr(w+2*i,2)}")
        for i in range(8):
            a(f"v_cvt_pk_bf16_f32 v{pk+i}, v{u+2*i}, v{u+2*i+1}")
        a(f"buffer_store_dwordx4 {vr(pk,4)}, v{t[7]}, s[16:19], s50 offen{STFLAG}")
        a(f"buffer_store_dwordx4 {vr(pk+4,4)}, v{t[7]}, s[16:19], s50 offen offset:1024{STFLAG}")
    stamp(a, 4)
    stamp_flush(a, 5, 16, 0, 4, 5)


def gen_dma_wave(a, name):
    R = Regs(4, 168)
    vx = R.alloc("vx", 4)
    vq = R.alloc("vq", 4)
    v1_ = R.alloc("v1", 3)
    t = [R.alloc(f"t{i}") for i in range(12)]
    bb = R.alloc("bb", 2, 2)
    a("s_setprio 3")
    a("s_sub_u32 s45, s3, 8")
    a(f"v_lshrrev_b32 v{t[0]}, 3, v1")
    a(f"v_mul_u32_u24 v{t[0]}, 1280, v{t[0]}")
    a(f"v_and_b32 v{t[1]}, 7, v1")
    a(f"v_lshrrev_b32 v{t[2]}, 4, v1")
    a(f"v_xor_b32 v{t[3]}, v{t[1]}, v{t[2]}")
    a(f"v_xor_b32 v{t[4]}, 4, v{t[3]}")
    for e in range(4):
        a(f"v_lshl_add_u32 v{vx+e}, v{t[3 + (e%2)]}, 4, v{t[0]}")
        if e:
            a(f"v_add_u32 v{vx+e}, {e*(10240-1024)}, v{vx+e}")
    a(f"v_mul_u32_u24 v{t[0]}, 3840, v{t[2]}")
    a(f"v_and_b32 v{t[1]}, 15, v1")
    a(f"v_lshlrev_b32 v{t[3]}, 2, v{t[2]}")
    a(f"v_xor_b32 v{t[1]}, v{t[1]}, v{t[3]}")
    a(f"v_lshl_add_u32 v{vq}, v{t[1]}, 4, v{t[0]}")
    for e in range(1, 4):
        a(f"v_add_u32 v{vq+e}, {e*(4*3840-1024)}, v{vq}")
    for e in range(3):
        a(f"v_add_u32 v{t[0]}, {64*e}, v1")
        a(f"v_mul_u32_u24 v{t[1]}, 43691, v{t[0]}")
        a(f"v_lshrrev_b32 v{t[1]}, 19, v{t[1]}")
        a(f"v_mul_u32_u24 v{t[2]}, 12, v{t[1]}")
        a(f"v_sub_u32 v{t[2]}, v{t[0]}, v{t[2]}")
        a(f"v_mul_u32_u24 v{t[1]}, 3072, v{t[1]}")
        a(f"v_lshl_add_u32 v{v1_+e}, v{t[2]}, 4, v{t[1]}")
        if e:
            a(f"v_subrev_u32 v{v1_+e}, {1024*e}, v{v1_+e}")
    a("s_lshl_b32 s47, s36, 2")
    a("s_add_u32 s47, s47, s45")
    a("s_mul_i32 s50, s47, 40960")
    a("s_mul_i32 s51, s45, 61440")
    a("s_mul_i32 s47, s37, 240")
    a("s_add_u32 s51, s51, s47")
    a("s_mul_i32 s52, s45, 49152")
    a("s_mul_i32 s47, s37, 192")
    a("s_add_u32 s52, s52, s47")
    a("s_lshl_b32 s53, s45, 12")
    a("s_mul_i32 s54, s45, 3072")
    a(f"s_add_u32 s54, s54, {L1}")
    a(f"v_lshlrev_b32 v{t[7]}, 2, v1")
    a("s_mov_b32 s55, 0")
    a("s_mov_b32 s56, 0")
    a("s_waitcnt lgkmcnt(0)")
    srds(a, "xq1bw")

    def issue():
        if NODMA: return
        a("s_add_u32 m0, s53, s55")
        a("s_nop 0")
        for e in range(4):
            a(f"buffer_load_dwordx4 v{vx+e}, s[4:7], s50 offen offset:{e*1024} lds")
        a(f"s_add_u32 m0, m0, {LQ}")
        a("s_add_u32 s50, s50, 128")
        for e in range(4):
            a(f"buffer_load_dwordx4 v{vq+e}, s[8:11], s51 offen offset:{e*1024} lds")
        a("s_add_u32 m0, s54, s56")
        a("s_add_u32 s51, s51, 245760")
        for e in range(3):
            a(f"buffer_load_dwordx4 v{v1_+e}, s[12:15], s52 offen offset:{e*1024} lds")
        a("s_add_u32 s52, s52, 196608")
        a("s_add_u32 s55, s55, 16384")
        a("s_add_u32 s56, s56, 12288")
        a("s_cmp_eq_u32 s55, 49152")
        a("s_cselect_b32 s55, 0, s55")
        a("s_cselect_b32 s56, 0, s56")

    issue()
    a(f"buffer_load_dword v{t[6]}, v{t[7]}, s[20:23], s47 offen")
    issue()
    E = R.alloc("E", 24)
    D = R.alloc("D", 12, 4)
    AD0 = R.alloc("AD", 12, 2)
    vid = R.alloc("vid", 3)
    a("s_lshl_b32 s47, s2, 2")
    a("s_add_u32 s47, s47, s45")
    a("s_mul_i32 s47, s47, 170")
    a("s_mov_b32 s48, 197380")
    a("s_mov_b32 s49, 26843546")
    a("s_movk_i32 s57, 96")
    for ps in range(3):
        idr = vid + ps
        AD = AD0 + ps * 4
        a(f"v_add_u32 v{idr}, s47, v1")
        if ps:
            a(f"v_add_u32 v{idr}, {64*ps}, v{idr}")
        if ps == 2:
            a("s_add_u32 s47, s47, 169")
            a(f"v_min_u32 v{idr}, s47, v{idr}")
        cb, rem, step, it, tile, n, hf, rA, dB, col = t[0], t[1], t[2], t[3], t[4], t[5], t[8], t[9], t[10], t[11]
        a(f"v_mul_hi_u32 v{cb}, v{idr}, s48")
        a(f"v_mul_u32_u24 v{rem}, 21760, v{cb}")
        a(f"v_sub_u32 v{rem}, v{idr}, v{rem}")
        a(f"v_mul_hi_u32 v{step}, v{rem}, s49")
        a(f"v_mul_u32_u24 v{it}, 160, v{step}")
        a(f"v_sub_u32 v{it}, v{rem}, v{it}")
        a(f"v_lshrrev_b32 v{tile}, 6, v{it}")
        a(f"v_cmp_eq_u32 vcc, 2, v{tile}")
        a(f"v_and_b32 v{n}, 31, v{it}")
        a(f"v_bfe_u32 v{hf}, v{it}, 5, 1")
        a(f"v_and_b32 v{rem}, 15, v{it}")
        a(f"v_bfe_u32 v{it}, v{it}, 4, 1")
        a(f"v_cndmask_b32 v{n}, v{n}, v{rem}, vcc")
        a(f"v_cndmask_b32 v{hf}, v{hf}, v{it}, vcc")
        a(f"v_mul_u32_u24 v{col}, 80, v{cb}")
        a(f"v_lshl_add_u32 v{col}, v{tile}, 5, v{col}")
        a(f"v_add_u32 v{col}, v{col}, v{n}")
        a(f"v_lshlrev_b32 v{rA}, 4, v{step}")
        a(f"v_lshl_add_u32 v{rA}, v{hf}, 2, v{rA}")
        a(f"v_mov_b32 v{dB}, 8")
        a(f"v_subrev_u32 v{rem}, 96, v{step}")
        a(f"v_mul_u32_u24 v{it}, 20, v{rem}")
        a(f"v_lshl_add_u32 v{it}, v{hf}, 2, v{it}")
        a(f"v_cmp_le_u32 s[62:63], s57, v{step}")
        a(f"v_cmp_le_u32 vcc, 0x80, v{step}")
        a(f"v_subrev_u32 v{rem}, 128, v{step}")
        a(f"v_cndmask_b32 v{rA}, v{rA}, v{it}, s[62:63]")
        a(f"v_mul_u32_u24 v{it}, 80, v{rem}")
        a(f"v_mul_u32_u24 v{rem}, 40, v{hf}")
        a(f"v_add3_u32 v{it}, v{it}, v{rem}, 16")
        a(f"v_cndmask_b32 v{rA}, v{rA}, v{it}, vcc")
        a(f"v_cndmask_b32 v{dB}, v{dB}, 20, vcc")
        a(f"v_mul_u32_u24 v{rA}, 1280, v{rA}")
        a(f"v_lshl_add_u32 v{rA}, v{col}, 1, v{rA}")
        a(f"v_mul_u32_u24 v{dB}, 1280, v{dB}")
        a(f"v_mov_b32 v{rem}, s60")
        a(f"v_mov_b32 v{it}, s34")
        a(f"v_cndmask_b32 v{rem}, v{rem}, v{it}, s[62:63]")
        a(f"v_mov_b32 v{n}, s61")
        a(f"v_mov_b32 v{it}, s35")
        a(f"v_cndmask_b32 v{n}, v{n}, v{it}, s[62:63]")
        a(f"v_add_co_u32 v{AD}, vcc, v{rem}, v{rA}")
        a("s_nop 1")
        a(f"v_addc_co_u32 v{AD+1}, vcc, 0, v{n}, vcc")
        a(f"v_add_co_u32 v{AD+2}, vcc, v{AD}, v{dB}")
        a("s_nop 1")
        a(f"v_addc_co_u32 v{AD+3}, vcc, 0, v{AD+1}, vcc")
    a("s_waitcnt vmcnt(12)")
    stamp(a, 2)
    a("s_barrier")
    issue()
    nz = f"{name}_nz"
    a("s_lshl_b32 s48, s45, 8")
    a("s_add_u32 s48, s48, s2")
    a("s_cmp_ge_u32 s48, 32")
    a(f"s_cbranch_scc1 {nz}")
    a("s_lshl_b32 s48, s48, 8")
    a(f"s_add_u32 s48, s48, {WS_FLAG}")
    a(f"v_mov_b32 v{t[0]}, 0")
    a(f"buffer_store_dword v{t[0]}, v{t[7]}, s[16:19], s48 offen")
    a("s_nop 1")
    a.label(nz)
    a("s_waitcnt vmcnt(22)")
    a(f"v_lshlrev_b32 v{bb}, 16, v{t[6]}")
    a(f"v_and_b32 v{bb+1}, 0xffff0000, v{t[6]}")
    a(f"v_lshlrev_b32 v{t[0]}, 3, v1")
    a(f"v_add_u32 v{t[0]}, {LB1}, v{t[0]}")
    a("v_cmp_gt_u32 vcc, 48, v1")
    a("s_and_saveexec_b64 s[58:59], vcc")
    a(f"ds_write_b64 v{t[0]}, {vr(bb,2)}")
    a("s_mov_b64 exec, s[58:59]")
    if asmlib.STAMP:
        for stg in range(1, 8):
            a("s_waitcnt vmcnt(11)")
            stamp(a, 2 + 2*((stg-1)%7) if False else 2 + stg)
            a("s_barrier")
            issue()
    else:
        a("s_mov_b32 s58, 1")
        loop = f"{name}_dloop"
        a.label(loop)
        a("s_waitcnt vmcnt(11)")
        a("s_barrier")
        issue()
        a("s_add_u32 s58, s58, 1")
        a("s_cmp_lt_u32 s58, 8")
        a(f"s_cbranch_scc1 {loop}")
    a("s_waitcnt vmcnt(11)")
    stamp(a, 10)
    a("s_barrier")
    a("s_waitcnt vmcnt(0)")
    stamp(a, 11)
    a("s_barrier")
    for ps in range(3):
        for j in range(8):
            a(f"global_load_ushort v{E + ps*8 + j}, {vr(AD0 + ps*4 + (2 if j >= 4 else 0), 2)}, off offset:{(j%4)*1280}")
    a("s_waitcnt lgkmcnt(0)")
    a("s_barrier")
    a("s_waitcnt vmcnt(0)")
    for i in range(12):
        a(f"v_lshl_or_b32 v{D+i}, v{E+2*i+1}, 16, v{E+2*i}")
    a(f"s_mov_b32 s47, {WS_WF}")
    for ps in range(3):
        a(f"v_lshlrev_b32 v{vid+ps}, 4, v{vid+ps}")
        a(f"buffer_store_dwordx4 {vr(D+ps*4,4)}, v{vid+ps}, s[16:19], s47 offen{STFLAG}")
    stamp(a, 12)
    stamp_flush(a, 13, 16, 0, 4, 5)
    a("s_endpgm")
```

```python
from asmlib import *
import asmlib
from k1 import WS_QKV, WS_VT, WS_H, WS_O, WS_WF, WS_FLAG, WS_BYTES
import k3

BLOCK = 256
ACCUM = 240
NAGPR = 224
VGPR = ACCUM + NAGPR
LM = 0
LFLAG = 8192
LC = 8448
K2_LDS = max(LC + 4 * 3 * 2 * 3072, k3.K3_LDS)
GSTRIDE = 2048 * 48
AO = 0
AG = 128
SPIN_MAX = 200000
EMBED = True


def ar(base, n=1):
    return f"a{base}" if n == 1 else f"a[{base}:{base+n-1}]"


def gen_k2(a, name):
    kernel_header(a, name)
    done = f"{name}_done"
    a("s_cmp_ge_u32 s2, 256")
    a(f"s_cbranch_scc1 {done}")
    stamp(a, 0, True)
    stamp(a, 1)
    a("s_load_dwordx2 s[32:33], s[0:1], 80")
    a("s_load_dwordx2 s[24:25], s[0:1], 0")
    a("s_load_dwordx4 s[28:31], s[0:1], 56")
    a("v_lshrrev_b32 v2, 6, v0")
    a("v_and_b32 v1, 63, v0")
    a("s_and_b32 s40, s2, 7")
    a("v_readfirstlane_b32 s3, v2")
    k3.decode_tile(a)
    a("s_lshl_b32 s38, s40, 2")
    a("s_lshr_b32 s42, s41, 3")
    a("s_add_u32 s38, s38, s42")
    a("s_and_b32 s39, s41, 7")
    a("v_and_b32 v2, 31, v1")
    a("v_lshrrev_b32 v3, 5, v1")
    gen_attn(a, name)
    a.label(done)
    a("s_endpgm")


def gen_attn(a, name):
    R = Regs(4, ACCUM)
    t = [R.alloc(f"t{i}") for i in range(8)]
    vk1 = R.alloc("vk1")
    vk2 = R.alloc("vk2")
    vl16 = R.alloc("vl16")
    vl16b = R.alloc("vl16b")
    vt2 = R.alloc("vt2")
    vt2b = R.alloc("vt2b")
    vvv = R.alloc("vvv")
    vq1 = R.alloc("vq1")
    vq2 = R.alloc("vq2")
    vmx = R.alloc("vmx", 2, 2)
    pk = R.alloc("pk", 2, 2)
    S = R.alloc("S", 32, 4)
    P = R.alloc("P", 16, 4)
    K = R.alloc("K", 16, 4)
    V = R.alloc("V", 16, 4)
    Q = R.alloc("Q", 64, 4)
    G = R.alloc("G", 60, 4)
    BIG = S
    a(f"v_mul_u32_u24 v{t[0]}, 48, v2")
    a(f"v_lshl_add_u32 v{vq1}, v3, 4, v{t[0]}")
    a(f"v_lshlrev_b32 v{t[1]}, 30, v3")
    a(f"v_add3_u32 v{vq2}, v{t[0]}, v{t[1]}, 32")
    a(f"v_and_b32 v{t[2]}, 0x13, v2")
    a(f"v_bfe_u32 v{t[3]}, v2, 2, 1")
    a(f"v_lshl_or_b32 v{t[2]}, v{t[3]}, 3, v{t[2]}")
    a(f"v_bfe_u32 v{t[3]}, v2, 3, 1")
    a(f"v_lshl_or_b32 v{t[2]}, v{t[3]}, 2, v{t[2]}")
    a(f"v_mul_u32_u24 v{t[2]}, 48, v{t[2]}")
    a(f"v_lshl_add_u32 v{vk1}, v3, 4, v{t[2]}")
    a(f"v_add3_u32 v{vk2}, v{t[2]}, v{t[1]}, 32")
    a(f"v_lshlrev_b32 v{vl16}, 4, v1")
    a(f"v_add_u32 v{vl16b}, 0x1000, v{vl16}")
    a(f"v_and_b32 v{vt2}, 15, v1")
    a(f"v_lshl_add_u32 v{vt2}, v3, 4, v{vt2}")
    a(f"v_lshlrev_b32 v{vt2}, 4, v{vt2}")
    a(f"v_add_u32 v{vt2b}, 0x1000, v{vt2}")
    a("v_cmp_lt_u32 vcc, 20, v2")
    a(f"v_mov_b32 v{t[3]}, 0x40000000")
    a("v_cmp_eq_u32 s[60:61], 0, v3")
    a(f"v_cndmask_b32 v{t[3]}, 0, v{t[3]}, vcc")
    a(f"v_add_u32 v{vvv}, v{t[3]}, v{vl16}")
    a(f"s_mul_i32 s42, s38, {GSTRIDE}")
    a(f"s_add_u32 s43, s42, {WS_QKV + 32*GSTRIDE}")
    a("s_mul_i32 s46, s39, 12288")
    a("s_add_u32 s46, s46, s42")
    a("s_mul_i32 s47, s3, 24576")
    a("s_add_u32 s50, s43, s47")
    a("s_lshl_b32 s47, s38, 17")
    a("s_lshl_b32 s48, s3, 15")
    a("s_add_u32 s51, s47, s48")
    a(f"s_add_u32 s51, s51, {WS_VT}")
    a("s_lshl_b32 s45, s3, 1")
    a("s_mul_i32 s54, s36, 196608")
    a("s_mul_i32 s47, s3, 24576")
    a("s_add_u32 s54, s54, s47")
    a(f"s_add_u32 s54, s54, {WS_H}")
    a("s_add_u32 s55, s54, 98304")
    a("s_mul_i32 s44, s37, 136")
    a("s_mul_i32 s47, s3, 24")
    a("s_add_u32 s47, s47, s44")
    a("s_mul_i32 s57, s47, 2560")
    a(f"s_add_u32 s57, s57, {WS_WF}")
    a("s_waitcnt lgkmcnt(0)")
    srd(a, 4, 32, WS_BYTES)
    a("s_mov_b32 s56, 1")

    def kload(buf, soff):
        a(f"buffer_load_dwordx4 {vr(K + buf*8, 4)}, v{vk1}, s[4:7], {soff} offen")
        a(f"buffer_load_dwordx4 {vr(K + buf*8 + 4, 4)}, v{vk2}, s[4:7], {soff} offen")

    def vload(buf, soff):
        a(f"buffer_load_dwordx4 {vr(V + buf*8, 4)}, v{vvv}, s[4:7], {soff} offen")
        a(f"buffer_load_dwordx4 {vr(V + buf*8 + 4, 4)}, v{vvv}, s[4:7], {soff} offen offset:1024")

    def wload(dst, sreg, off, fl=""):
        for k, (va, vb) in enumerate(((vl16, vl16b), (vl16, vl16b), (vt2, vt2b))):
            o = off + k * 1024
            v = va if o < 4096 else vb
            a(f"buffer_load_dwordx4 {vr(dst + k*4, 4)}, v{v}, s[4:7], s{sreg} offen offset:{o % 4096}{fl}")

    def gload(b, stp):
        base = G + b * 20
        a(f"buffer_load_dwordx4 {vr(base,4)}, v{vl16}, s[4:7], s54 offen offset:{stp*1024}")
        a(f"buffer_load_dwordx4 {vr(base+4,4)}, v{vl16}, s[4:7], s55 offen offset:{stp*1024}")
        wload(base + 8, 57, stp * 2560)

    def gadv():
        a("s_add_u32 s54, s54, 3072")
        a("s_add_u32 s55, s55, 3072")
        a("s_add_u32 s57, s57, 7680")

    def gm(g):
        b, k = g // 6, g % 6
        nt, rt = k // 2, k % 2
        base = G + b * 20
        c = ar(AG + k * 16, 16)
        a(f"v_mfma_f32_32x32x16_bf16 {c}, {vr(base + 8 + nt*4, 4)}, {vr(base + rt*4, 4)}, {c}")

    def qk(dst, kbuf, qt, part):
        c = "0" if part == 0 else vr(dst, 16)
        a(f"v_mfma_f32_32x32x16_bf16 {vr(dst,16)}, {vr(K + kbuf*8 + part*4, 4)}, {vr(Q + qt*8 + part*4, 4)}, {c}")

    def pv(qt, pb, vbuf, part):
        a(f"v_mfma_f32_32x32x16_bf16 {ar(AO + qt*16,16)}, {vr(V + vbuf*8 + part*4, 4)}, {vr(P + pb*8 + part*4, 4)}, {ar(AO + qt*16,16)}")

    kload(1, "s43")
    for i in range(8):
        a(f"s_add_u32 s47, s45, {i}")
        a("s_and_b32 s47, s47, 7")
        a("s_mul_i32 s47, s47, 1536")
        a("s_add_u32 s47, s47, s46")
        a(f"buffer_load_dwordx4 {vr(Q + i*8, 4)}, v{vq1}, s[4:7], s47 offen")
        a(f"buffer_load_dwordx2 {vr(Q + i*8 + 4, 2)}, v{vq2}, s[4:7], s47 offen")
    kload(0, "s50")
    vload(0, "s51")
    a(f"v_mov_b32 v{t[7]}, 0")
    a(f"v_mov_b32 v{t[6]}, {LFLAG}")
    a(f"ds_write_b32 v{t[6]}, v{t[7]}")
    for i in range(96):
        a(f"v_accvgpr_write_b32 a{AG+i}, 0")
    a("s_mov_b32 s58, 1")
    first = f"{name}_first"
    a(f"s_branch {first}")
    restart = f"{name}_restart"
    a.label(restart)
    kload(1, "s43")
    kload(0, "s50")
    vload(0, "s51")
    a.label(first)
    for i in range(4):
        a(f"v_mov_b32 v{V+12+i}, 0")
    for i in range(20):
        a(f"v_mov_b32 v{G+40+i}, 0")
    for qt in range(2):
        a(f"v_mov_b32 v{Q+qt*8+6}, 0")
        a(f"v_mov_b32 v{Q+qt*8+7}, 0")
    a(f"v_mov_b32 v{vmx}, 0xff800000")
    a(f"v_mov_b32 v{vmx+1}, 0xff800000")
    for i in range(128):
        a(f"v_accvgpr_write_b32 a{AO+i}, 0")
    for i in range(4):
        a(f"v_mov_b32 v{P+12+i}, 0")
    a("s_mov_b32 s47, s43")
    a("s_mov_b32 s48, s56")
    stamp(a, 2)
    a("s_waitcnt vmcnt(16)")
    stamp(a, 3)
    mx = f"{name}_mx"
    mx2 = f"{name}_mx2"
    a(f"s_branch {mx2}")
    a.label(mx)
    kload(1, "s47")
    a("s_waitcnt vmcnt(0)")
    a.label(mx2)
    a("s_cmp_eq_u32 s56, 1")
    nw = f"{name}_nw"
    a(f"s_cbranch_scc1 {nw}")
    a("s_waitcnt vmcnt(0)")
    a.label(nw)
    for qt in range(2):
        qk(S + qt*16, 1, qt, 0)
        qk(S + qt*16, 1, qt, 1)
    a("s_nop 7")
    a("s_add_u32 s47, s47, 1536")
    a("s_sub_u32 s48, s48, 1")
    for qt in range(2):
        for i in range(8):
            a(f"v_max3_f32 v{vmx+qt}, v{S+qt*16+2*i}, v{S+qt*16+2*i+1}, v{vmx+qt}")
    a("s_cmp_lg_u32 s48, 0")
    a(f"s_cbranch_scc1 {mx}")
    a("s_lshl_b32 s47, s45, 9")
    a(f"v_lshl_add_u32 v{t[4]}, v1, 3, s47")
    for qt in range(2):
        m = vmx + qt
        a(f"v_mov_b32 v{t[2]}, v{m}")
        a(f"v_mov_b32 v{t[3]}, v{m}")
        a("s_nop 1")
        a(f"v_permlane32_swap_b32 v{t[2]}, v{t[3]}")
        a("s_nop 1")
        a(f"v_max_f32 v{m}, v{t[2]}, v{t[3]}")
        a(f"v_sub_f32 v{m}, 0, v{m}")
        a(f"v_and_b32 v{t[2]}, 0xffff0000, v{m}")
        a(f"v_sub_f32 v{m}, v{m}, v{t[2]}")
        a(f"v_and_b32 v{t[3]}, 0xffff0000, v{m}")
        a(f"v_sub_f32 v{m}, v{m}, v{t[3]}")
        a(f"v_lshrrev_b32 v{t[2]}, 16, v{t[2]}")
        a(f"v_or_b32 v{t[2]}, v{t[2]}, v{t[3]}")
        a(f"v_lshrrev_b32 v{t[3]}, 16, v{m}")
        a(f"v_cndmask_b32 v{pk}, 0, v{t[2]}, s[60:61]")
        a(f"v_cndmask_b32 v{pk+1}, 0, v{t[3]}, s[60:61]")
        a(f"ds_write_b64 v{t[4]}, {vr(pk,2)} offset:{LM + qt*512}")
        a(f"ds_write_b64 v{t[4]}, {vr(pk,2)} offset:{LM + qt*512 + 4096}")
    a("s_waitcnt lgkmcnt(0)")
    a("s_barrier")
    for i in range(8):
        a(f"ds_read_b64 {vr(Q + i*8 + 6, 2)}, v{t[4]} offset:{LM + i*512}")
    a("s_waitcnt vmcnt(0) lgkmcnt(0)")
    gload(0, 0)
    stamp(a, 4)
    qk(S, 0, 0, 0)
    qk(S, 0, 0, 1)
    a("s_add_u32 s52, s50, 1536")
    a("s_add_u32 s53, s51, 2048")
    a("s_mov_b32 s48, 0")
    a("s_nop 5")

    gsched = {}
    g = 0
    for uu in range(16):
        n = 2 if uu in (0, 8) else 1
        gsched[uu] = [(x + 12) % 18 for x in range(g, g + n)]
        g += n

    def unit(uu, hooks, emb):
        buf, u = uu // 8, uu % 8
        sb = u % 2
        X = S + sb * 16
        Y = S + (1 - sb) * 16
        nq = (u + 1) % 8
        kb = buf if u < 7 else buf ^ 1
        pq = (u - 1) % 8
        pvb = buf if u > 0 else buf ^ 1
        gs = gsched[uu] if emb else []
        def e(r):
            for i in r: a(f"v_exp_f32 v{X+i}, v{X+i}")
        def c(r):
            for i in r: a(f"v_cvt_pk_bf16_f32 v{P+sb*8+i}, v{X+2*i}, v{X+2*i+1}")
        def h(k):
            if k in hooks: hooks[k]()
        h(0)
        qk(Y, kb, nq, 0)
        e(range(4))
        qk(Y, kb, nq, 1)
        e(range(4, 8))
        pv(pq, 1 - sb, pvb, 1)
        h(1)
        c(range(4))
        e([8])
        if len(gs) > 1: gm(gs[0])
        e(range(9, 12))
        pv(u, sb, buf, 0)
        h(2)
        e(range(12, 15))
        if gs: gm(gs[-1])
        e([15])
        h(3)
        c(range(4, 8))

    def body(emb):
        for uu in range(16):
            buf, u = uu // 8, uu % 8
            hk = {}
            if u == 0:
                hk[1] = lambda buf=buf: kload(buf ^ 1, "s52")
                hk[2] = lambda buf=buf: vload(buf ^ 1, "s53")
            if u == 1:
                hk[1] = lambda: a("s_add_u32 s52, s52, 1536")
                hk[2] = lambda: a("s_add_u32 s53, s53, 2048")
            if emb:
                if uu == 0:
                    hk[0] = lambda: a("s_waitcnt vmcnt(9)")
                    hk[3] = lambda: gload(1, 1)
                if uu == 5:
                    hk[0] = lambda: a("s_waitcnt vmcnt(9)")
                    hk[1] = lambda: gload(2, 2)
                if uu == 6:
                    hk[1] = gadv
                if uu == 7:
                    hk[0] = lambda: a("s_waitcnt vmcnt(10)")
                if uu == 10:
                    hk[0] = lambda: a("s_waitcnt vmcnt(9)")
                    hk[1] = lambda: gload(0, 0)
                if uu == 15:
                    hk[0] = lambda: a("s_waitcnt vmcnt(5)")
            else:
                if u == 7:
                    hk[0] = lambda: a("s_waitcnt vmcnt(0)")
            if uu == 12:
                hk[1] = lambda: a("s_add_u32 s48, s48, 1")
                hk[2] = lambda: a("s_cmp_lt_u32 s48, 8")
            unit(uu, hk, emb)

    loop = f"{name}_loop"
    loop2 = f"{name}_loop2"
    after = f"{name}_after"
    a("s_cmp_eq_u32 s58, 0")
    a(f"s_cbranch_scc1 {loop2}")
    a.raw(".p2align 6")
    a.label(loop)
    body(EMBED)
    a(f"s_cbranch_scc1 {loop}")
    if EMBED:
        for g in range(12, 18):
            gm(g)
    a.label(after)
    a("s_mov_b32 s58, 0")
    a("s_nop 0")
    pv(7, 1, 1, 1)
    stamp(a, 5)
    for k in range(3):
        a(f"s_add_u32 s47, s3, {k+1}")
        a("s_and_b32 s47, s47, 3")
        a("s_mul_i32 s47, s47, 18432")
        a(f"s_add_u32 s47, s47, {LC + k*6144}")
        a(f"v_add_u32 v{t[k]}, s47, v{vl16}")
    a("s_mul_i32 s47, s3, 18432")
    a(f"s_add_u32 s47, s47, {LC}")
    a(f"v_add_u32 v{t[3]}, s47, v{vl16}")
    for i in range(2, 8):
        for j in range(3):
            a(f"ds_write_b128 v{t[i//2 - 1]}, {ar(AO + i*16 + j*4, 4)} offset:{(i%2)*3072 + j*1024}")
    for i in range(8):
        a(f"v_accvgpr_read_b32 v{S+i}, a{AO + i*16 + 8}")
    for i in range(1, 8):
        a(f"v_add_f32 v{S}, v{S}, v{S+i}")
    a(f"s_mov_b32 s47, {hexf(2.0**100)}")
    a(f"v_cmp_nge_f32 vcc, s47, v{S}")
    a("s_andn2_b64 vcc, vcc, s[60:61]")
    nb = f"{name}_notbad"
    a("s_cbranch_vccz " + nb)
    a(f"v_mov_b32 v{t[7]}, 1")
    a(f"ds_write_b32 v{t[6]}, v{t[7]}")
    a.label(nb)
    a("s_waitcnt vmcnt(0) lgkmcnt(0)")
    stamp(a, 6)
    a("s_barrier")
    a(f"ds_read_b32 v{t[7]}, v{t[6]}")
    RB = S
    for k in range(3):
        for qt in range(2):
            for j in range(3):
                a(f"ds_read_b128 {vr(RB + ((k*2+qt)*3 + j)*4, 4)}, v{t[3]} offset:{k*6144 + qt*3072 + j*1024}")
    a("s_waitcnt lgkmcnt(15)")
    a("s_waitcnt lgkmcnt(12)")
    a(f"v_readfirstlane_b32 s47, v{t[7]}")
    fin = f"{name}_fin"
    a("s_cmp_eq_u32 s47, 0")
    a(f"s_cbranch_scc1 {fin}")
    a("s_cmp_eq_u32 s56, 64")
    a(f"s_cbranch_scc1 {fin}")
    a("s_mov_b32 s56, 64")
    a("s_waitcnt lgkmcnt(0)")
    a("s_barrier")
    a(f"s_branch {restart}")
    a.label(loop2)
    body(False)
    a(f"s_cbranch_scc1 {loop2}")
    a(f"s_branch {after}")
    a.label(fin)
    WF = Q
    a("s_lshl_b32 s47, s39, 3")
    a("s_add_u32 s47, s47, s45")
    a("s_mul_i32 s47, s47, 40960")
    a(f"s_add_u32 s47, s47, {WS_O}")
    a("s_lshl_b32 s48, s38, 10")
    a("s_add_u32 s48, s48, s47")
    a("s_lshr_b32 s49, s38, 2")
    a("s_add_u32 s49, s49, 32")
    a("s_lshl_b32 s49, s49, 10")
    a("s_add_u32 s49, s49, s47")
    a("s_bfe_u32 s47, s38, 0x10001")
    a("s_lshl_b32 s47, s47, 9")
    a("s_add_u32 s49, s49, s47")
    a("s_and_b32 s47, s38, 1")
    a("s_lshl_b32 s47, s47, 3")
    a("s_add_u32 s49, s49, s47")
    a("s_waitcnt lgkmcnt(0)")
    stamp(a, 7)
    for qt in range(2):
        o = RB + qt * 12
        for i in range(12):
            a(f"v_accvgpr_read_b32 v{t[i%2]}, a{AO + qt*16 + i}")
            a(f"v_add_f32 v{o+i}, v{o+i}, v{RB + (2+qt)*12 + i}")
            a(f"v_add_f32 v{t[i%2]}, v{t[i%2]}, v{RB + (4+qt)*12 + i}")
            a(f"v_add_f32 v{o+i}, v{o+i}, v{t[i%2]}")
        a(f"v_rcp_f32 v{t[0]}, v{o+8}")
        a("s_nop 0")
        a(f"v_mov_b32 v{t[1]}, v{t[0]}")
        a("s_nop 1")
        a(f"v_permlane32_swap_b32 v{t[0]}, v{t[1]}")
        a("s_nop 1")
        for i in range(12):
            a(f"v_mul_f32 v{o+i}, v{o+i}, v{t[1]}")
        pq_ = RB + (2 + qt) * 12
        for i in range(6):
            a(f"v_cvt_pk_bf16_f32 v{pq_+i}, v{o+2*i}, v{o+2*i+1}")
        a(f"buffer_store_dwordx4 {vr(pq_,4)}, v{vl16}, s[4:7], s48 offen sc1")
        a("s_mov_b64 exec, s[60:61]")
        a(f"buffer_store_dwordx2 {vr(pq_+4,2)}, v{vl16}, s[4:7], s49 offen sc1")
        a("s_mov_b64 exec, -1")
        if qt == 0:
            a("s_add_u32 s48, s48, 40960")
            a("s_add_u32 s49, s49, 40960")
    a("s_lshl_b32 s47, s39, 2")
    a("s_add_u32 s47, s47, s3")
    a("s_lshl_b32 s47, s47, 8")
    a("s_lshl_b32 s48, s38, 2")
    a("s_add_u32 s47, s47, s48")
    a(f"s_add_u32 s47, s47, {WS_FLAG}")
    a(f"v_mov_b32 v{t[0]}, 0")
    a(f"v_mov_b32 v{t[1]}, 1")
    srd(a, 8, 24, 2048 * 640 * 2)
    srd(a, 12, 28, 640 * 2)
    srd(a, 16, 30, 2048 * 640 * 2)
    stamp(a, 8)
    a("s_waitcnt vmcnt(0)")
    a("s_mov_b64 exec, 1")
    a(f"buffer_store_dword v{t[1]}, v{t[0]}, s[4:7], s47 offen sc1")
    a("s_mov_b64 exec, -1")
    stamp(a, 9)
    a("s_lshl_b32 s47, s3, 3")
    a("s_add_u32 s47, s47, s44")
    a("s_add_u32 s47, s47, 96")
    a("s_mul_i32 s52, s47, 2560")
    a(f"s_add_u32 s52, s52, {WS_WF}")
    a("s_add_u32 s47, s45, s44")
    a("s_add_u32 s47, s47, 128")
    a("s_mul_i32 s53, s47, 2560")
    a(f"s_add_u32 s53, s53, {WS_WF}")
    for n in range(8):
        if n in (3, 6):
            a("s_add_u32 s52, s52, 7680")
        wload(WF + n*12, 52, (n % 3) * 2560)
    for n in range(2):
        wload(WF + (8+n)*12, 53, n * 2560)
    FR = k3.FinalReduce(a, t, lambda i, n: ar(AG + i, n), AO)
    FR.prep()
    a("s_mul_i32 s48, s36, 81920")
    a("s_lshl_b32 s49, s3, 13")
    a("s_add_u32 s49, s49, s48")
    a(f"s_add_u32 s49, s49, {WS_O}")
    a("s_add_u32 s50, s49, 40960")
    a("s_lshl_b32 s51, s3, 11")
    a("s_add_u32 s51, s51, s48")
    a(f"s_add_u32 s51, s51, {WS_O + 32768}")
    a("s_add_u32 s52, s51, 40960")
    a("s_lshl_b32 s47, s36, 8")
    a("s_lshl_b32 s48, s3, 5")
    a("s_add_u32 s47, s47, s48")
    a(f"s_add_u32 s47, s47, {WS_FLAG}")
    a(f"v_and_b32 v{t[0]}, 7, v1")
    a(f"v_lshlrev_b32 v{t[0]}, 2, v{t[0]}")
    a(f"s_mov_b32 s48, {SPIN_MAX}")
    poll = f"{name}_poll"
    go = f"{name}_go"
    a.label(poll)
    a(f"buffer_load_dword v{t[1]}, v{t[0]}, s[4:7], s47 offen sc1")
    a("s_sub_u32 s48, s48, 1")
    a("s_cmp_eq_u32 s48, 0")
    a(f"s_cbranch_scc1 {go}")
    a("s_waitcnt vmcnt(0)")
    a(f"v_cmp_ne_u32 vcc, 1, v{t[1]}")
    a(f"s_cbranch_vccnz {poll}")
    a.label(go)
    stamp(a, 10)
    OF = S
    for n in range(10):
        for rt in range(2):
            if n < 8:
                sreg, off = 49 + rt, n * 1024
            else:
                sreg, off = 51 + rt, (n - 8) * 1024
            v = vl16 if off < 4096 else vl16b
            a(f"buffer_load_dwordx4 {vr(OF + (n*2+rt)*4, 4)}, v{v}, s[4:7], s{sreg} offen offset:{off % 4096} sc1")
    for n in range(10):
        a(f"s_waitcnt vmcnt({18 - 2*n})")
        for nt in range(3):
            for rt in range(2):
                c = ar(AG + (nt*2+rt)*16, 16)
                a(f"v_mfma_f32_32x32x16_bf16 {c}, {vr(WF + n*12 + nt*4, 4)}, {vr(OF + (n*2+rt)*4, 4)}, {c}")
    stamp(a, 11)
    a("s_barrier")
    FR.finish(BIG)
    stamp(a, 12)
    stamp_flush(a, 13, 4, 1, 4, 5)
    return R.hw
```

```python
from asmlib import *
import asmlib
from k1 import WS_H, WS_O, WS_WF, WS_BYTES

BLOCK = 256
VGPR = 256
RS = 336
K3_LDS = 4 * 64 * RS
DEPTH = 6


def decode_tile(a):
    a("s_and_b32 s40, s2, 7")
    a("s_lshr_b32 s41, s2, 3")
    a("s_and_b32 s42, s40, 3")
    a("s_lshl_b32 s42, s42, 3")
    a("s_and_b32 s43, s41, 7")
    a("s_add_u32 s36, s42, s43")
    a("s_lshr_b32 s42, s40, 2")
    a("s_lshl_b32 s42, s42, 2")
    a("s_lshr_b32 s43, s41, 3")
    a("s_add_u32 s37, s42, s43")


def gen_k3(a, name):
    kernel_header(a, name)
    done = f"{name}_done"
    a("s_cmp_ge_u32 s2, 256")
    a(f"s_cbranch_scc1 {done}")
    stamp(a, 0, True)
    stamp(a, 1)
    a("s_load_dwordx2 s[24:25], s[0:1], 0")
    a("s_load_dwordx4 s[28:31], s[0:1], 56")
    a("s_load_dwordx2 s[32:33], s[0:1], 80")
    a("v_lshrrev_b32 v2, 6, v0")
    a("v_and_b32 v1, 63, v0")
    a("s_nop 0")
    a("v_readfirstlane_b32 s3, v2")
    decode_tile(a)
    a("v_and_b32 v2, 31, v1")
    a("v_lshrrev_b32 v3, 5, v1")
    R = Regs(4, VGPR)
    t = [R.alloc(f"t{i}") for i in range(8)]
    vl16 = R.alloc("vl16")
    vt2 = R.alloc("vt2")
    acc = R.alloc("acc", 96, 4)
    F = R.alloc("F", 20 * DEPTH, 4)
    a(f"v_lshlrev_b32 v{vl16}, 4, v1")
    a(f"v_and_b32 v{vt2}, 15, v1")
    a(f"v_lshl_add_u32 v{vt2}, v3, 4, v{vt2}")
    a(f"v_lshlrev_b32 v{vt2}, 4, v{vt2}")
    a("s_mul_i32 s44, s36, 196608")
    a("s_mul_i32 s45, s3, 24576")
    a("s_add_u32 s44, s44, s45")
    a(f"s_add_u32 s44, s44, {WS_H}")
    a("s_add_u32 s45, s44, 98304")
    a("s_mul_i32 s46, s37, 136")
    a("s_mul_i32 s47, s3, 24")
    a("s_add_u32 s47, s47, s46")
    a("s_mul_i32 s47, s47, 2560")
    a(f"s_add_u32 s47, s47, {WS_WF}")
    a("s_mul_i32 s48, s36, 81920")
    a("s_lshl_b32 s49, s3, 13")
    a("s_add_u32 s49, s49, s48")
    a(f"s_add_u32 s49, s49, {WS_O}")
    a("s_add_u32 s50, s49, 40960")
    a("s_lshl_b32 s51, s3, 11")
    a("s_add_u32 s51, s51, s48")
    a(f"s_add_u32 s51, s51, {WS_O + 32768}")
    a("s_add_u32 s52, s51, 40960")
    a("s_lshl_b32 s53, s3, 3")
    a("s_add_u32 s53, s53, s46")
    a("s_add_u32 s53, s53, 96")
    a("s_mul_i32 s53, s53, 2560")
    a(f"s_add_u32 s53, s53, {WS_WF}")
    a("s_lshl_b32 s54, s3, 1")
    a("s_add_u32 s54, s54, s46")
    a("s_add_u32 s54, s54, 128")
    a("s_mul_i32 s54, s54, 2560")
    a(f"s_add_u32 s54, s54, {WS_WF}")
    a("s_waitcnt lgkmcnt(0)")
    srd(a, 4, 32, WS_BYTES)
    srd(a, 8, 24, 2048 * 640 * 2)
    srd(a, 12, 28, 640 * 2)
    srd(a, 16, 30, 2048 * 640 * 2)
    for i in range(96):
        a(f"v_mov_b32 v{acc+i}, 0")
    NS = 34

    def loads(n):
        b = F + (n % DEPTH) * 20
        if n < 24:
            a0, a1, w = 44, 45, 47
        elif n < 32:
            a0, a1, w = 49, 50, 53
        else:
            a0, a1, w = 51, 52, 54
        a(f"buffer_load_dwordx4 {vr(b,4)}, v{vl16}, s[4:7], s{a0} offen")
        a(f"buffer_load_dwordx4 {vr(b+4,4)}, v{vl16}, s[4:7], s{a1} offen")
        a(f"buffer_load_dwordx4 {vr(b+8,4)}, v{vl16}, s[4:7], s{w} offen")
        a(f"buffer_load_dwordx4 {vr(b+12,4)}, v{vl16}, s[4:7], s{w} offen offset:1024")
        a(f"buffer_load_dwordx4 {vr(b+16,4)}, v{vt2}, s[4:7], s{w} offen offset:2048")
        a(f"s_add_u32 s{a0}, s{a0}, 1024")
        a(f"s_add_u32 s{a1}, s{a1}, 1024")
        a(f"s_add_u32 s{w}, s{w}, 2560")

    for n in range(DEPTH - 1):
        loads(n)
    for n in range(NS):
        if n + DEPTH - 1 < NS:
            loads(n + DEPTH - 1)
            a(f"s_waitcnt vmcnt({5*(DEPTH-1)})")
        else:
            a(f"s_waitcnt vmcnt({5*(NS-1-n)})")
        b = F + (n % DEPTH) * 20
        for nt in range(3):
            for rt in range(2):
                c = acc + (nt * 2 + rt) * 16
                a(f"v_mfma_f32_32x32x16_bf16 {vr(c,16)}, {vr(b+8+nt*4,4)}, {vr(b+rt*4,4)}, {vr(c,16)}")
    stamp(a, 2)
    final_reduce(a, R, t, lambda i, n: vr(acc + i, n), F, 0)
    stamp(a, 3)
    stamp_flush(a, 4, 4, 2, 4, 5)
    a.label(done)
    a("s_endpgm")


def final_reduce(a, R, t, accreg, F, lbase):
    XV = F
    BV = F + 10
    LA = F + 20
    GA = F + 25
    PD = F + 32
    a("s_mul_i32 s44, s36, 81920")
    a("s_mul_i32 s45, s37, 160")
    a("s_add_u32 s44, s44, s45")
    for it in range(5):
        a(f"v_add_u32 v{t[0]}, {it*256}, v0")
        a(f"v_mul_u32_u24 v{t[1]}, 52429, v{t[0]}")
        a(f"v_lshrrev_b32 v{t[1]}, 20, v{t[1]}")
        a(f"v_mul_u32_u24 v{t[2]}, 20, v{t[1]}")
        a(f"v_sub_u32 v{t[2]}, v{t[0]}, v{t[2]}")
        a(f"v_mul_u32_u24 v{t[3]}, {RS}, v{t[1]}")
        a(f"v_lshl_add_u32 v{LA+it}, v{t[2]}, 4, v{t[3]}")
        a(f"v_mul_u32_u24 v{t[3]}, 1280, v{t[1]}")
        a(f"v_lshl_add_u32 v{GA+it}, v{t[2]}, 3, v{t[3]}")
        a(f"v_lshlrev_b32 v{t[2]}, 3, v{t[2]}")
        a(f"buffer_load_dwordx2 {vr(XV+2*it,2)}, v{GA+it}, s[8:11], s44 offen")
        a(f"buffer_load_dwordx2 {vr(BV+2*it,2)}, v{t[2]}, s[12:15], s45 offen")
    a(f"s_mul_i32 s46, s3, {64*RS}")
    a(f"v_mul_u32_u24 v{t[0]}, {RS}, v2")
    a(f"v_lshl_add_u32 v{t[0]}, v3, 4, v{t[0]}")
    a(f"v_add_u32 v{t[0]}, s46, v{t[0]}")
    for nt in range(3):
        for rt in range(2):
            for q in range(4 if nt < 2 else 2):
                a(f"ds_write_b128 v{t[0]}, {accreg((nt*2+rt)*16 + q*4, 4)} offset:{lbase + rt*32*RS + nt*128 + q*32}")
    a("s_waitcnt lgkmcnt(0)")
    a("s_barrier")
    for it in range(5):
        for w in range(4):
            a(f"ds_read_b128 {vr(PD + it*16 + w*4, 4)}, v{LA+it} offset:{lbase + w*64*RS}" if lbase + w*64*RS < 65536 else
              f"ds_read_b128 {vr(PD + it*16 + w*4, 4)}, v{LA+it} offset:{lbase + w*64*RS}")
    a("s_waitcnt vmcnt(0)")
    for it in range(5):
        a(f"s_waitcnt lgkmcnt({min(15, 4*(4-it))})")
        p = PD + it * 16
        for i in range(4):
            a(f"v_add_f32 v{p+i}, v{p+i}, v{p+4+i}")
            a(f"v_add_f32 v{p+8+i}, v{p+8+i}, v{p+12+i}")
        for src in (XV, BV):
            a(f"v_lshlrev_b32 v{t[0]}, 16, v{src+2*it}")
            a(f"v_and_b32 v{t[1]}, 0xffff0000, v{src+2*it}")
            a(f"v_lshlrev_b32 v{t[2]}, 16, v{src+2*it+1}")
            a(f"v_and_b32 v{t[3]}, 0xffff0000, v{src+2*it+1}")
            for i in range(4):
                a(f"v_add_f32 v{p+i}, v{p+i}, v{t[i]}")
        for i in range(4):
            a(f"v_add_f32 v{p+i}, v{p+i}, v{p+8+i}")
        a(f"v_cvt_pk_bf16_f32 v{p+4}, v{p}, v{p+1}")
        a(f"v_cvt_pk_bf16_f32 v{p+5}, v{p+2}, v{p+3}")
        a(f"buffer_store_dwordx2 {vr(p+4,2)}, v{GA+it}, s[16:19], s44 offen")


class FinalReduce:
    def __init__(self, a, t, accreg, apark):
        self.a, self.t, self.accreg, self.ap = a, t, accreg, apark

    def prep(self):
        a, t, ap = self.a, self.t, self.ap
        a("s_mul_i32 s44, s36, 81920")
        a("s_mul_i32 s45, s37, 160")
        a("s_add_u32 s44, s44, s45")
        for it in range(5):
            a(f"v_add_u32 v{t[0]}, {it*256}, v0")
            a(f"v_mul_u32_u24 v{t[1]}, 52429, v{t[0]}")
            a(f"v_lshrrev_b32 v{t[1]}, 20, v{t[1]}")
            a(f"v_mul_u32_u24 v{t[2]}, 20, v{t[1]}")
            a(f"v_sub_u32 v{t[2]}, v{t[0]}, v{t[2]}")
            a(f"v_mul_u32_u24 v{t[3]}, {RS}, v{t[1]}")
            a(f"v_lshl_add_u32 v{t[3]}, v{t[2]}, 4, v{t[3]}")
            a(f"v_accvgpr_write_b32 a{ap+20+it}, v{t[3]}")
            a(f"v_mul_u32_u24 v{t[3]}, 1280, v{t[1]}")
            a(f"v_lshl_add_u32 v{t[3]}, v{t[2]}, 3, v{t[3]}")
            a(f"v_accvgpr_write_b32 a{ap+25+it}, v{t[3]}")
            a(f"v_lshlrev_b32 v{t[2]}, 3, v{t[2]}")
            a(f"buffer_load_dwordx2 a[{ap+2*it}:{ap+2*it+1}], v{t[3]}, s[8:11], s44 offen")
            a(f"buffer_load_dwordx2 a[{ap+10+2*it}:{ap+11+2*it}], v{t[2]}, s[12:15], s45 offen")
        a(f"s_mul_i32 s46, s3, {64*RS}")
        a(f"v_mul_u32_u24 v{t[5]}, {RS}, v2")
        a(f"v_lshl_add_u32 v{t[5]}, v3, 4, v{t[5]}")
        a(f"v_add_u32 v{t[5]}, s46, v{t[5]}")

    def finish(self, F):
        a, t, ap, accreg = self.a, self.t, self.ap, self.accreg
        XB = F
        LA = F + 20
        GA = F + 25
        PD = F + 32
        for it in range(5):
            a(f"v_accvgpr_read_b32 v{LA+it}, a{ap+20+it}")
            a(f"v_accvgpr_read_b32 v{GA+it}, a{ap+25+it}")
        for nt in range(3):
            for rt in range(2):
                if nt == 2 and rt == 0:
                    a("s_nop 3")
                for q in range(4 if nt < 2 else 2):
                    a(f"ds_write_b128 v{t[5]}, {accreg((nt*2+rt)*16 + q*4, 4)} offset:{rt*32*RS + nt*128 + q*32}")
        for it in range(5):
            for h in range(2):
                a(f"v_accvgpr_read_b32 v{t[0]}, a{ap+2*it+h}")
                a(f"v_accvgpr_read_b32 v{t[1]}, a{ap+10+2*it+h}")
                a(f"v_lshlrev_b32 v{t[2]}, 16, v{t[0]}")
                a(f"v_lshlrev_b32 v{t[3]}, 16, v{t[1]}")
                a(f"v_add_f32 v{XB+it*4+2*h}, v{t[2]}, v{t[3]}")
                a(f"v_and_b32 v{t[0]}, 0xffff0000, v{t[0]}")
                a(f"v_and_b32 v{t[1]}, 0xffff0000, v{t[1]}")
                a(f"v_add_f32 v{XB+it*4+2*h+1}, v{t[0]}, v{t[1]}")
        a("s_waitcnt lgkmcnt(0)")
        a("s_barrier")
        for it in range(5):
            for w in range(4):
                a(f"ds_read_b128 {vr(PD + it*16 + w*4, 4)}, v{LA+it} offset:{w*64*RS}")
        for it in range(5):
            a(f"s_waitcnt lgkmcnt({min(15, 4*(4-it))})")
            p = PD + it * 16
            for i in range(2):
                a(f"v_pk_add_f32 {vr(p+2*i,2)}, {vr(p+2*i,2)}, {vr(p+4+2*i,2)}")
                a(f"v_pk_add_f32 {vr(p+8+2*i,2)}, {vr(p+8+2*i,2)}, {vr(p+12+2*i,2)}")
            for i in range(2):
                a(f"v_pk_add_f32 {vr(p+2*i,2)}, {vr(p+2*i,2)}, {vr(XB+it*4+2*i,2)}")
            for i in range(2):
                a(f"v_pk_add_f32 {vr(p+2*i,2)}, {vr(p+2*i,2)}, {vr(p+8+2*i,2)}")
            a(f"v_cvt_pk_bf16_f32 v{p+4}, v{p}, v{p+1}")
            a(f"v_cvt_pk_bf16_f32 v{p+5}, v{p+2}, v{p+3}")
            a(f"buffer_store_dwordx2 {vr(p+4,2)}, v{GA+it}, s[16:19], s44 offen")
```

```python
import sys, importlib
sys.path.insert(0, "gen")
from asmlib import *
import k1

HEADER = open("parallel_sum__softmax_full_mha__mixer_channel_mlp__prompt.s.ref").read().split("; Override launch")[0]

def build(out, kernels):
    a = Asm()
    a.raw(HEADER.rstrip())
    for (name, gen, grid, block, lds, vgpr) in kernels:
        a.raw(f"; @launch kernel={name} grid=({grid},1,1) block=({block},1,1) lds={lds}")
    a.raw('.amdgcn_target "amdgcn-amd-amdhsa--gfx950"')
    for (name, gen, grid, block, lds, vgpr) in kernels:
        gen(a, name)
    for (name, gen, grid, block, lds, vgpr) in kernels:
        kernel_desc(a, name, vgpr)
    open(out, "w").write(a.text())

if __name__ == "__main__":
    which = sys.argv[1] if len(sys.argv) > 1 else "all"
    out = sys.argv[2] if len(sys.argv) > 2 else "parallel_sum__softmax_full_mha__mixer_channel_mlp__prompt.s"
    import asmlib
    if "stamp" in sys.argv: asmlib.STAMP = True
    if "nopf" in sys.argv: k1.PREFETCH = False
    for f in ("sc1","nt","sc0 sc1"):
        if "st="+f.replace(" ","") in sys.argv: k1.STFLAG = " "+f
    for f in ("NOCOMP","NODMA","NOSTAT","BARFIRST"):
        if f.lower() in sys.argv: setattr(k1, f, True)
    ks = [("k1_kernel", k1.gen_k1, 256, 768, k1.K1_LDS, 168)]
    if which != "k1":
        import k2
        for f in ('NODMA','NOSYNC','NOLDS'):
            if 'x_'+f.lower() in sys.argv: setattr(k2, 'X_'+f, True)
        ks.append(("k2_kernel", k2.gen_k2, 256, k2.BLOCK, k2.K2_LDS, (k2.VGPR, k2.ACCUM)))
        if which == "k123":
            import k3
            ks.append(("k3_kernel", k3.gen_k3, 256, k3.BLOCK, k3.K3_LDS, k3.VGPR))
    build(out, ks)
```

```python
import math
from asmlib import *
import asmlib

BLOCK = 512
ACCUM = 192
NAGPR = 64
VGPR = ACCUM + NAGPR

WS_QK = 0
WS_VT = 0x600000
WS_H = 0xA00000
WS_O = 0x1000000
WS_WF = 0x1300000
WS_FLAG = 0x1700000
WS_FQ = WS_FLAG
WS_FH = WS_FLAG + 0x2000
WS_FW = WS_FLAG + 0x4000
WS_FO = WS_FLAG + 0x6000
WS_FSR = WS_FLAG + 0x8000
WS_FSC = WS_FLAG + 0x9000
WS_ST = WS_FLAG + 0x10000
WS_CS = WS_FLAG + 0x20000
WS_BYTES = 268435456
GSTRIDE = 2048 * 48

LX = 0
LQ = 49152
L1 = 98304
LSTAT = 135168
LCS = 137216
LB1 = 138240
LNONCE = 138752
LFLAG = 138768
F_LDS = 138816
LWO = 0
LM = 102400
LC = 110592
RS = 336

QSCALE = (20 ** -0.5) * math.log2(math.e)
EPS = 1e-5
SPIN_MAX = 100000
X_NOG = False
X_NOKV = False


def ar(base, n=1):
    return f"a{base}" if n == 1 else f"a[{base}:{base+n-1}]"


def rbf(a, d, s):
    a(f"v_cvt_pk_bf16_f32 v{d}, v{s}, v{s}")
    a(f"v_lshlrev_b32 v{d}, 16, v{d}")


def poll(a, name, vaddr, soff, vtmp, nonce, extra=None):
    lp, go = a.uid(name + "_p"), a.uid(name + "_g")
    a(f"s_mov_b32 s68, {SPIN_MAX}")
    a.label(lp)
    a(f"buffer_load_dwordx2 {vr(vtmp,2)}, v{vaddr}, s[4:7], {soff} offen sc1")
    if extra:
        a(f"buffer_load_dwordx2 {vr(vtmp+2,2)}, v{extra}, s[4:7], {soff} offen sc1")
    a("s_sub_u32 s68, s68, 1")
    a("s_cmp_eq_u32 s68, 0")
    a(f"s_cbranch_scc1 {go}")
    a("s_waitcnt vmcnt(0)")
    a(f"v_cmp_ne_u64 vcc, {nonce}, {vr(vtmp,2)}")
    if extra:
        a(f"v_cmp_ne_u64 s[66:67], {nonce}, {vr(vtmp+2,2)}")
        a("s_or_b64 vcc, vcc, s[66:67]")
    a(f"s_cbranch_vccz {go}")
    a("s_sleep 4")
    a(f"s_branch {lp}")
    a.label(go)


def put_flag(a, soff, vz, vn):
    a("s_mov_b64 exec, 1")
    a(f"buffer_store_dwordx2 {vr(vn,2)}, v{vz}, s[4:7], {soff} offen sc1")
    a("s_mov_b64 exec, -1")


def gen_f(a, name):
    asmlib.SB = 70
    kernel_header(a, name)
    done = f"{name}_done"
    a("s_cmp_ge_u32 s2, 256")
    a(f"s_cbranch_scc1 {done}")
    stamp(a, 0, True)
    stamp(a, 1)
    a("s_load_dwordx16 s[24:39], s[0:1], 0")
    a("s_load_dwordx4 s[40:43], s[0:1], 64")
    a("s_load_dwordx2 s[44:45], s[0:1], 80")
    a("v_lshrrev_b32 v2, 6, v0")
    a("v_and_b32 v1, 63, v0")
    a("s_and_b32 s56, s2, 7")
    a("v_readfirstlane_b32 s3, v2")
    a("s_lshr_b32 s57, s2, 3")
    a("s_and_b32 s58, s57, 7")
    a("s_lshr_b32 s59, s57, 3")
    a("s_and_b32 s60, s56, 1")
    a("s_lshl_b32 s60, s60, 3")
    a("s_add_u32 s46, s60, s58")
    a("s_lshr_b32 s60, s56, 1")
    a("s_lshl_b32 s60, s60, 2")
    a("s_add_u32 s47, s60, s59")
    a("s_lshl_b32 s60, s56, 2")
    a("s_add_u32 s48, s60, s59")
    a("s_mov_b32 s49, s58")
    a("s_and_b32 s60, s56, 3")
    a("s_lshl_b32 s60, s60, 3")
    a("s_add_u32 s50, s60, s58")
    a("s_lshr_b32 s60, s56, 2")
    a("s_lshl_b32 s60, s60, 2")
    a("s_add_u32 s51, s60, s59")
    a("v_and_b32 v2, 31, v1")
    a("v_lshrrev_b32 v3, 5, v1")
    a("s_cmp_ge_u32 s3, 4")
    a(f"s_cbranch_scc0 {name}_A")
    gen_b(a, name)
    a.label(f"{name}_A")
    gen_a(a, name)
    a.label(done)
    a("s_endpgm")


def gen_a(a, name):
    R = Regs(4, ACCUM)
    t = [R.alloc(f"t{i}") for i in range(10)]
    vn = R.alloc("vn", 2, 2)
    vz = R.alloc("vz")
    vl16 = R.alloc("vl16")
    mark = R.mark()
    vxa = R.alloc("vxa", 8)
    vwa = R.alloc("vwa", 4)
    acc = R.alloc("acc", 112, 4)
    X = R.alloc("X", 16, 4)
    W = R.alloc("W", 32, 4)
    a("s_and_b32 s52, s3, 1")
    a("s_lshr_b32 s53, s3, 1")
    a("s_lshl_b32 s60, s52, 6")
    a("s_lshl_b32 s61, s53, 5")
    a("s_add_u32 s60, s60, s61")
    a(f"v_add_u32 v{t[0]}, s60, v2")
    a(f"v_lshrrev_b32 v{t[1]}, 1, v{t[0]}")
    a(f"v_and_b32 v{t[1]}, 7, v{t[1]}")
    a(f"v_xor_b32 v{t[1]}, v{t[1]}, v3")
    a(f"v_lshlrev_b32 v{t[1]}, 4, v{t[1]}")
    a(f"v_lshl_add_u32 v{vxa}, v{t[0]}, 7, v{t[1]}")
    for kk in range(1, 4):
        a(f"v_xor_b32 v{vxa+kk}, {kk << 5}, v{vxa}")
    for kk in range(4):
        a(f"v_xor_b32 v{vxa+4+kk}, 0x1000, v{vxa+kk}")
    a(f"v_bfe_u32 v{t[0]}, v1, 2, 2")
    a(f"v_and_b32 v{t[1]}, 3, v1")
    a(f"v_bfe_u32 v{t[2]}, v1, 4, 1")
    a(f"v_lshlrev_b32 v{t[4]}, 5, v{t[2]}")
    a(f"v_lshl_add_u32 v{t[4]}, v{t[1]}, 3, v{t[4]}")
    a(f"v_lshl_add_u32 v{t[5]}, v3, 3, v{t[0]}")
    a("s_mul_i32 s60, s53, 120")
    a(f"v_lshlrev_b32 v{t[6]}, 8, v{t[5]}")
    a(f"v_add_u32 v{t[6]}, {LQ}, v{t[6]}")
    for tt in range(2):
        a(f"v_add_u32 v{t[7]}, s60, v{t[4]}")
        if tt:
            a(f"v_add_u32 v{t[7]}, 64, v{t[7]}")
        a(f"v_lshrrev_b32 v{t[8]}, 6, v{t[7]}")
        a(f"v_xor_b32 v{t[8]}, v{t[8]}, v{t[0]}")
        a(f"v_and_b32 v{t[7]}, 63, v{t[7]}")
        a(f"v_lshl_add_u32 v{t[7]}, v{t[8]}, 6, v{t[7]}")
        a(f"v_add_u32 v{vwa+tt}, v{t[7]}, v{t[6]}")
    a(f"v_mul_u32_u24 v{t[6]}, 192, v{t[5]}")
    a(f"v_add3_u32 v{t[6]}, v{t[6]}, v{t[4]}, 64")
    a(f"v_add_u32 v{vwa+3}, {L1}, v{t[6]}")
    a("s_lshl_b32 s60, s53, 7")
    a("s_sub_u32 s60, s60, 64")
    a(f"v_add_u32 v{vwa+2}, s60, v{vwa+3}")
    for i in range(112):
        a(f"v_mov_b32 v{acc+i}, 0")
    a(f"v_mov_b32 v{vz}, 0")
    a(f"v_lshlrev_b32 v{vl16}, 4, v1")
    a("s_movk_i32 s63, 16384")
    a("s_movk_i32 s65, 12288")
    a("s_waitcnt lgkmcnt(0)")
    srd(a, 4, 44, WS_BYTES)
    npf = f"{name}_npf"
    a("s_cmp_lg_u32 s3, 3")
    a(f"s_cbranch_scc1 {npf}")
    a(f"v_min_u32 v{t[0]}, 59, v1")
    a("s_mul_i32 s60, s2, 7680")
    a(f"v_lshlrev_b32 v{t[0]}, 7, v{t[0]}")
    a(f"v_min_u32 v{t[1]}, 24, v1")
    a("s_mul_i32 s61, s2, 3200")
    a(f"v_lshlrev_b32 v{t[1]}, 7, v{t[1]}")
    srd(a, 8, 36, 1536 * 640 * 2)
    srd(a, 12, 28, 640 * 640 * 2)
    a(f"buffer_load_dword v{t[2]}, v{t[0]}, s[8:11], s60 offen")
    a(f"buffer_load_dword v{t[3]}, v{t[1]}, s[12:15], s61 offen")
    a.label(npf)

    def reads(kk):
        p = kk % 2
        for rt in range(2):
            a(f"ds_read_b128 {vr(X + p*8 + rt*4, 4)}, v{vxa + rt*4 + kk}")
        for tt in range(4):
            ks, hs = (4096, 1024) if tt < 2 else (3072, 768)
            for h in range(2):
                a(f"ds_read_b64_tr_b16 {vr(W + p*16 + tt*4 + h*2, 2)}, v{vwa+tt} offset:{kk*ks + h*hs}")

    def mf(p, k):
        tt, rt = (k // 2, k % 2) if k < 6 else (3, 0)
        c = acc + k * 16
        a(f"v_mfma_f32_32x32x16_bf16 {vr(c,16)}, {vr(W + p*16 + tt*4, 4)}, {vr(X + p*8 + rt*4, 4)}, {vr(c,16)}")

    a("s_mov_b32 s60, 0")
    a("s_mov_b32 s61, 0")
    a("s_barrier")
    stamp(a, 2)
    if asmlib.STAMP: a("s_waitcnt lgkmcnt(0)")
    reads(0)
    loop = f"{name}_a1"
    a.raw(".p2align 6")
    a.label(loop)
    for kk in range(4):
        p = kk % 2
        a("s_waitcnt lgkmcnt(0)")
        if kk == 3:
            skip = f"{name}_a1last"
            a("s_cmp_eq_u32 s60, 9")
            a(f"s_cbranch_scc1 {skip}")
            a("s_barrier")
            reads(0)
            a.label(skip)
        else:
            reads(kk + 1)
        mf(p, 0)
        mf(p, 1)
        if kk == 2:
            a("s_add_u32 s61, s61, 1")
            a("s_cmp_eq_u32 s61, 3")
            a("s_cselect_b32 s61, 0, s61")
            a(f"s_cselect_b32 s62, {(-2*16384) & 0xffffffff:#x}, s63")
            a(f"s_cselect_b32 s64, {(-2*12288) & 0xffffffff:#x}, s65")
            mf(p, 2)
            for r in range(vxa, vxa + 6):
                a(f"v_add_u32 v{r}, s62, v{r}")
            mf(p, 3)
            for r in range(vxa + 6, vxa + 10):
                a(f"v_add_u32 v{r}, s62, v{r}")
            for r in (vwa + 2, vwa + 3):
                a(f"v_add_u32 v{r}, s64, v{r}")
            for k in range(4, 7):
                mf(p, k)
        else:
            for k in range(2, 7):
                mf(p, k)
        if kk == 3:
            pass
    a("s_add_u32 s60, s60, 1")
    a("s_cmp_lt_u32 s60, 10")
    a(f"s_cbranch_scc1 {loop}")
    assert vwa == vxa + 8
    a("s_waitcnt vmcnt(0)")
    stamp(a, 3)
    st = X
    rs = X + 8
    csr = W
    pk = vxa
    tmp = vxa + 4
    assert vxa % 2 == 0
    assert acc == vwa + 6
    sa = [vwa + 4, vwa + 5, t[7], t[8]]
    a("s_lshl_b32 s60, s52, 10")
    a("s_lshl_b32 s61, s53, 9")
    a("s_add_u32 s60, s60, s61")
    a(f"s_add_u32 s60, s60, {LSTAT}")
    a(f"v_lshl_add_u32 v{t[0]}, v2, 4, s60")
    a(f"v_xor_b32 v{t[9]}, 0x200, v{t[0]}")
    assert LSTAT % 1024 == 0
    a("s_mul_i32 s60, s53, 240")
    a(f"s_add_u32 s60, s60, {LCS}")
    a(f"v_lshl_add_u32 v{t[1]}, v3, 4, s60")
    a("s_mul_i32 s54, s47, 6")
    a("s_mul_i32 s60, s53, 3")
    a("s_add_u32 s54, s54, s60")
    a(f"s_mov_b32 s60, {hexf(QSCALE)}")
    for g in range(3):
        a(f"s_add_u32 s61, s54, {g}")
        a("s_cmp_lt_u32 s61, 32")
        a(f"s_cselect_b32 s{62+g}, s60, 1.0")
    a("s_mul_i32 s60, s3, 12288")
    a("s_mul_i32 s61, s53, 1536")
    a(f"v_mul_u32_u24 v{t[2]}, 48, v2")
    a(f"v_add_u32 v{t[2]}, s60, v{t[2]}")
    a(f"v_mul_u32_u24 v{t[3]}, 3040, v3")
    a(f"v_add_u32 v{t[4]}, s61, v{t[2]}")
    a(f"v_subrev_u32 v{t[2]}, s61, v{t[2]}")
    a(f"v_add_u32 v{t[2]}, 1536, v{t[2]}")
    a(f"v_lshl_add_u32 v{sa[0]}, v3, 3, v{t[4]}")
    a(f"v_add_u32 v{sa[1]}, v{t[3]}, v{t[4]}")
    a(f"v_lshl_add_u32 v{sa[2]}, v3, 3, v{t[2]}")
    a(f"v_add_u32 v{sa[3]}, v{t[3]}, v{t[2]}")
    a(f"v_mul_u32_u24 v{t[2]}, 48, v1")
    a(f"v_add_u32 v{t[2]}, s60, v{t[2]}")
    a(f"v_lshl_add_u32 v{t[3]}, v1, 4, s60")
    a(f"v_bfe_u32 v{t[5]}, v1, 2, 2")
    a(f"v_lshl_add_u32 v{t[5]}, v3, 3, v{t[5]}")
    a(f"v_mul_u32_u24 v{t[5]}, 48, v{t[5]}")
    a(f"v_bfe_u32 v{t[6]}, v1, 4, 1")
    a(f"v_lshl_add_u32 v{t[5]}, v{t[6]}, 5, v{t[5]}")
    a(f"v_and_b32 v{t[6]}, 3, v1")
    a(f"v_lshl_add_u32 v{t[5]}, v{t[6]}, 3, v{t[5]}")
    a(f"v_add_u32 v{t[5]}, s60, v{t[5]}")
    a("s_lshl_b32 s55, s46, 1")
    a("s_add_u32 s55, s55, s52")
    a("v_cmp_eq_u32 vcc, 1, v3")
    a("v_cmp_gt_u32 s[66:67], 21, v2")
    a(f"v_mov_b32 v{pk}, 0x3f803f80")
    a(f"v_mov_b32 v{pk+1}, 0x3f80")
    a(f"v_mov_b32 v{t[6]}, {LNONCE}")
    a("s_barrier")
    stamp(a, 4)
    a(f"ds_read_b128 {vr(st,4)}, v{t[0]}")
    a(f"ds_read_b128 {vr(st+4,4)}, v{t[9]}")
    for tp in range(2):
        for q in range(4):
            a(f"ds_read_b128 {vr(csr + tp*16 + q*4, 4)}, v{t[1]} offset:{tp*128 + q*32}")
    a(f"ds_read_b64 {vr(vn,2)}, v{t[6]}")
    for g in range(3):
        a(f"ds_write_b64 v{t[2]}, {vr(pk,2)} offset:{g*3072 + 40}")
    a("s_waitcnt lgkmcnt(12)" if not asmlib.STAMP else "s_waitcnt lgkmcnt(0)")
    for rt in range(2):
        for g in range(3):
            a(f"v_mul_f32 v{rs + rt*4 + g}, s{62+g}, v{st + rt*4 + 1}")
        a(f"v_cndmask_b32 v{rs + rt*4 + 3}, v{rs + rt*4}, v{rs + rt*4 + 1}, vcc")
    a("s_waitcnt lgkmcnt(3)")
    for tp in range(2):
        for rt in range(2):
            c = acc + (tp * 2 + rt) * 16
            for q in range(4):
                pc0 = 8 * tp + 2 * q
                g, d4 = pc0 // 5, pc0 % 5
                wrap = d4 == 4
                rsel = rs + rt * 4 + (3 if (wrap and g == 0) else g)
                rp, rsl = rsel & ~1, rsel & 1
                tb = tmp + (q % 2) * 4
                for i in range(2):
                    a(f"v_pk_fma_f32 {vr(tb+2*i,2)}, {vr(st + rt*4,2)}, {vr(csr + tp*16 + q*4 + 2*i,2)}, {vr(c + q*4 + 2*i,2)} op_sel_hi:[0,1,1]")
                for i in range(2):
                    a(f"v_pk_mul_f32 {vr(tb+2*i,2)}, {vr(tb+2*i,2)}, {vr(rp,2)} op_sel:[0,{rsl}] op_sel_hi:[1,{rsl}]")
                pb = pk + (q % 2) * 2
                a(f"v_cvt_pk_bf16_f32 v{pb}, v{tb}, v{tb+1}")
                a(f"v_cvt_pk_bf16_f32 v{pb+1}, v{tb+2}, v{tb+3}")
                a(f"ds_write_b64 v{sa[rt*2 + (1 if wrap else 0)]}, {vr(pb,2)} offset:{g*3072 + d4*8}")
    b1r = csr + 16

    def cb_reads(tsel):
        if tsel == 0:
            a("s_lshl_b32 s61, s53, 8")
        else:
            a("s_movk_i32 s61, 128")
        a(f"v_lshl_add_u32 v{t[8]}, v3, 4, s61")
        a(f"v_add_u32 v{t[9]}, {LCS + 512}, v{t[8]}")
        a(f"v_add_u32 v{t[8]}, {LB1}, v{t[8]}")
        for q in range(4):
            a(f"ds_read_b128 {vr(csr + q*4, 4)}, v{t[9]} offset:{q*32}")
            a(f"ds_read_b128 {vr(b1r + q*4, 4)}, v{t[8]} offset:{q*32}")

    a("s_waitcnt lgkmcnt(0)")
    for g in range(3):
        lv = f"{name}_v{g}"
        le = f"{name}_ve{g}"
        a(f"s_add_u32 s61, s54, {g}")
        a("s_cmp_ge_u32 s61, 64")
        a(f"s_cbranch_scc1 {lv}")
        for e in range(3):
            a(f"ds_read_b128 {vr(acc + g*16 + e*4, 4)}, v{t[3]} offset:{g*3072 + e*1024}")
        a("s_mul_i32 s60, s61, 98304")
        a("s_mul_i32 s61, s55, 3072")
        a("s_add_u32 s60, s60, s61")
        for e in range(3):
            a(f"s_waitcnt lgkmcnt({2-e})")
            a(f"buffer_store_dwordx4 {vr(acc + g*16 + e*4, 4)}, v{vl16}, s[4:7], s60 offen offset:{e*1024} sc1")
        a(f"s_branch {le}")
        a.label(lv)
        for e in range(4):
            for h in range(2):
                a(f"ds_read_b64_tr_b16 {vr(acc + g*16 + e*4 + h*2, 2)}, v{t[5]} offset:{g*3072 + e*768 + h*192}")
        a("s_sub_u32 s60, s61, 64")
        a("s_lshl_b32 s60, s60, 17")
        a("s_lshl_b32 s61, s55, 12")
        a("s_add_u32 s60, s60, s61")
        a(f"s_add_u32 s60, s60, {WS_VT}")
        a("s_mov_b64 exec, s[66:67]")
        for e in range(4):
            a(f"s_waitcnt lgkmcnt({6-2*e})")
            a(f"buffer_store_dwordx4 {vr(acc + g*16 + e*4, 4)}, v{vl16}, s[4:7], s60 offen offset:{e*1024} sc1")
        a("s_mov_b64 exec, -1")
        a.label(le)
    stamp(a, 5)
    cb_reads(0)
    u = acc + 48
    kc = t[0] if t[0] % 2 == 0 else t[1]
    assert kc + 1 in t
    k0 = -2.0 * math.log2(math.e) * math.sqrt(2.0 / math.pi)
    k1 = k0 * 0.044715
    a(f"v_mov_b32 v{kc}, {hexf(k1)}")
    a(f"v_mov_b32 v{kc+1}, {hexf(k0)}")
    a("s_lshl_b32 s60, s55, 1")
    a("s_mul_i32 s60, s60, 96")
    a("s_mul_i32 s61, s47, 6")
    a("s_add_u32 s60, s60, s61")
    a("s_lshl_b32 s60, s60, 10")
    a(f"s_add_u32 s62, s60, {WS_H}")
    a("s_mul_i32 s63, s53, 98304")
    a("s_sub_u32 s64, 98304, s63")
    a("s_lshl_b32 s65, s53, 12")
    a("s_lshl_b32 s60, s47, 4")
    a("s_add_u32 s60, s60, s46")
    a("s_lshl_b32 s60, s60, 2")
    a("s_add_u32 s60, s60, s3")
    a("s_lshl_b32 s60, s60, 3")
    a(f"s_add_u32 s58, s60, {WS_FQ}")
    a("s_lshl_b32 s60, s46, 4")
    a("s_add_u32 s60, s60, s47")
    a("s_lshl_b32 s60, s60, 2")
    a("s_add_u32 s60, s60, s3")
    a("s_lshl_b32 s60, s60, 3")
    a(f"s_add_u32 s59, s60, {WS_FH}")
    for k, (tile, rt) in enumerate(((4, 0), (5, 1), (6, 0))):
        c = acc + tile * 16
        sp = st + rt * 4 + 2
        if k == 0:
            a("s_add_u32 s60, s62, s63")
            a("s_add_u32 s60, s60, s65")
        elif k == 1:
            a("s_add_u32 s60, s62, s64")
            a("s_add_u32 s60, s60, s65")
        else:
            a("s_add_u32 s60, s62, s63")
            a("s_add_u32 s60, s60, 2048")
        if k != 1:
            a("s_waitcnt lgkmcnt(0)")
        for i in range(8):
            a(f"v_pk_fma_f32 {vr(u+2*i,2)}, {vr(sp,2)}, {vr(csr+2*i,2)}, {vr(b1r+2*i,2)} op_sel:[1,0,0] op_sel_hi:[1,1,1]")
        if k == 1:
            cb_reads(1)
        for i in range(8):
            a(f"v_pk_fma_f32 {vr(u+2*i,2)}, {vr(c+2*i,2)}, {vr(sp,2)}, {vr(u+2*i,2)} op_sel_hi:[1,0,1]")
        wv = c
        for i in range(8):
            a(f"v_pk_mul_f32 {vr(wv+2*i,2)}, {vr(u+2*i,2)}, {vr(u+2*i,2)}")
        for i in range(8):
            a(f"v_pk_fma_f32 {vr(wv+2*i,2)}, {vr(wv+2*i,2)}, {vr(kc,2)}, {vr(kc,2)} op_sel:[0,0,1] op_sel_hi:[1,0,1]")
        for i in range(8):
            a(f"v_pk_mul_f32 {vr(wv+2*i,2)}, {vr(wv+2*i,2)}, {vr(u+2*i,2)}")
        for i in range(16):
            a(f"v_exp_f32 v{wv+i}, v{wv+i}")
        if k == 0:
            a("s_waitcnt vmcnt(0)")
            put_flag(a, "s58", vz, vn)
            stamp(a, 6)
        for i in range(8):
            a(f"v_pk_add_f32 {vr(wv+2*i,2)}, {vr(wv+2*i,2)}, 1.0 op_sel_hi:[1,0]")
        for i in range(16):
            a(f"v_rcp_f32 v{wv+i}, v{wv+i}")
        for i in range(8):
            a(f"v_pk_mul_f32 {vr(u+2*i,2)}, {vr(u+2*i,2)}, {vr(wv+2*i,2)}")
        for i in range(8):
            a(f"v_cvt_pk_bf16_f32 v{wv+i}, v{u+2*i}, v{u+2*i+1}")
        a(f"buffer_store_dwordx4 {vr(wv,4)}, v{vl16}, s[4:7], s60 offen sc1")
        a(f"buffer_store_dwordx4 {vr(wv+4,4)}, v{vl16}, s[4:7], s60 offen offset:1024 sc1")
    stamp(a, 7)
    R.release(mark)
    vk1 = R.alloc("vk1")
    vk2 = R.alloc("vk2")
    vvv = R.alloc("vvv")
    vq1 = R.alloc("vq1")
    vq2 = R.alloc("vq2")
    vmx = R.alloc("vmx", 2, 2)
    pk2 = R.alloc("pk2", 4, 2)
    S = R.alloc("S", 32, 4)
    P = R.alloc("P", 16, 4)
    K = R.alloc("K", 32, 4)
    V = R.alloc("V", 32, 4)
    Q = R.alloc("Q", 32, 4)
    AO = 0
    a(f"v_mul_u32_u24 v{t[0]}, 48, v2")
    a(f"v_lshl_add_u32 v{vq1}, v3, 4, v{t[0]}")
    a(f"v_lshlrev_b32 v{t[1]}, 30, v3")
    a(f"v_add3_u32 v{vq2}, v{t[0]}, v{t[1]}, 32")
    a(f"v_and_b32 v{t[2]}, 0x13, v2")
    a(f"v_bfe_u32 v{t[3]}, v2, 2, 1")
    a(f"v_lshl_or_b32 v{t[2]}, v{t[3]}, 3, v{t[2]}")
    a(f"v_bfe_u32 v{t[3]}, v2, 3, 1")
    a(f"v_lshl_or_b32 v{t[2]}, v{t[3]}, 2, v{t[2]}")
    a(f"v_mul_u32_u24 v{t[2]}, 48, v{t[2]}")
    a(f"v_lshl_add_u32 v{vk1}, v3, 4, v{t[2]}")
    a(f"v_add3_u32 v{vk2}, v{t[2]}, v{t[1]}, 32")
    a("v_cmp_lt_u32 vcc, 20, v2")
    a(f"v_mov_b32 v{t[3]}, 0x40000000")
    a("v_cmp_eq_u32 s[56:57], 0, v3")
    a(f"v_cndmask_b32 v{t[3]}, 0, v{t[3]}, vcc")
    a(f"v_add_u32 v{vvv}, v{t[3]}, v{vl16}")
    def gword(dst, add):
        a(f"s_add_u32 s60, s48, {add}")
        a("s_mul_i32 s61, s60, 43")
        a("s_lshr_b32 s61, s61, 8")
        a("s_mul_i32 s62, s61, 6")
        a("s_sub_u32 s62, s60, s62")
        a("s_cmp_ge_u32 s62, 3")
        a("s_cselect_b32 s62, 16, 0")
        a("s_lshl_b32 s61, s61, 9")
        a(f"s_add_u32 s{dst}, s61, s62")
    gword(63, 32)
    gword(64, 64)
    gword(65, 0)
    a(f"v_lshrrev_b32 v{t[4]}, 1, v2")
    a(f"v_lshlrev_b32 v{t[4]}, 5, v{t[4]}")
    a(f"v_and_b32 v{t[5]}, 1, v2")
    a(f"v_lshl_add_u32 v{t[4]}, v{t[5]}, 3, v{t[4]}")
    a(f"v_mov_b32 v{t[5]}, s63")
    a(f"v_mov_b32 v{t[6]}, s64")
    a(f"v_cndmask_b32 v{t[5]}, v{t[6]}, v{t[5]}, s[56:57]")
    a(f"v_add_u32 v{t[5]}, v{t[5]}, v{t[4]}")
    a(f"v_add_u32 v{t[4]}, s65, v{t[4]}")
    a(f"s_mul_i32 s60, s48, {GSTRIDE}")
    a(f"s_add_u32 s54, s60, {WS_QK + 32*GSTRIDE}")
    a("s_lshl_b32 s61, s49, 1")
    a("s_add_u32 s61, s61, s52")
    a("s_mul_i32 s61, s61, 6144")
    a("s_add_u32 s55, s60, s61")
    a("s_mul_i32 s61, s53, 49152")
    a("s_add_u32 s62, s54, s61")
    a("s_lshl_b32 s60, s48, 17")
    a("s_lshl_b32 s61, s53, 16")
    a("s_add_u32 s63, s60, s61")
    a(f"s_add_u32 s63, s63, {WS_VT}")
    for i in range(64):
        a(f"v_accvgpr_write_b32 a{AO+i}, 0")
    stamp(a, 8)
    a(f"s_mov_b32 s61, {WS_FQ}")
    poll(a, name + "_fq", t[5], "s61", pk2, vr(vn, 2), extra=t[4])
    stamp(a, 9)
    a("s_mov_b32 s58, 1")
    a("s_waitcnt vmcnt(0)")

    def kload(buf, soff, off=0):
        a(f"buffer_load_dwordx4 {vr(K + buf*8, 4)}, v{vk1}, s[4:7], {soff} offen offset:{off} sc1")
        a(f"buffer_load_dwordx4 {vr(K + buf*8 + 4, 4)}, v{vk2}, s[4:7], {soff} offen offset:{off} sc1")

    def vload(buf, soff, off=0):
        a(f"buffer_load_dwordx4 {vr(V + buf*8, 4)}, v{vvv}, s[4:7], {soff} offen offset:{off} sc1")
        a(f"buffer_load_dwordx4 {vr(V + buf*8 + 4, 4)}, v{vvv}, s[4:7], {soff} offen offset:{off + 1024} sc1")

    def qk(dst, kbuf, qt, part):
        c = "0" if part == 0 else vr(dst, 16)
        a(f"v_mfma_f32_32x32x16_bf16 {vr(dst,16)}, {vr(K + kbuf*8 + part*4, 4)}, {vr(Q + qt*8 + part*4, 4)}, {c}")

    def pv(qt, pb, vbuf, part):
        a(f"v_mfma_f32_32x32x16_bf16 {ar(AO + qt*16,16)}, {vr(V + vbuf*8 + part*4, 4)}, {vr(P + pb*8 + part*4, 4)}, {ar(AO + qt*16,16)}")

    kload(3, "s54")
    for i in range(4):
        a("s_lshl_b32 s60, s53, 1")
        a(f"s_add_u32 s60, s60, {i}")
        a("s_and_b32 s60, s60, 3")
        a("s_mul_i32 s60, s60, 1536")
        a("s_add_u32 s60, s60, s55")
        a(f"buffer_load_dwordx4 {vr(Q + i*8, 4)}, v{vq1}, s[4:7], s60 offen sc1")
        a(f"buffer_load_dwordx2 {vr(Q + i*8 + 4, 2)}, v{vq2}, s[4:7], s60 offen sc1")
    put_flag(a, "s59", vz, vn)
    first = f"{name}_first"
    a(f"s_branch {first}")
    restart = f"{name}_restart"
    a.label(restart)
    kload(3, "s54")
    for i in range(64):
        a(f"v_accvgpr_write_b32 a{AO+i}, 0")
    a.label(first)
    kload(0, "s62")
    vload(0, "s63")
    for i in range(4):
        a(f"v_mov_b32 v{V+28+i}, 0")
        a(f"v_mov_b32 v{P+12+i}, 0")
    for qt in range(2):
        a(f"v_mov_b32 v{Q+qt*8+6}, 0")
        a(f"v_mov_b32 v{Q+qt*8+7}, 0")
    a(f"v_mov_b32 v{vmx}, 0xff800000")
    a(f"v_mov_b32 v{vmx+1}, 0xff800000")
    a("s_mov_b32 s60, s54")
    a("s_mov_b32 s61, s58")
    a("s_lshl_b32 s64, s52, 12")
    a("s_lshl_b32 s65, s53, 10")
    a("s_add_u32 s64, s64, s65")
    a(f"s_add_u32 s64, s64, {LM}")
    a(f"v_lshl_add_u32 v{t[4]}, v1, 3, s64")
    a(f"v_mov_b32 v{t[6]}, {LFLAG}")
    a("s_waitcnt vmcnt(9)")
    mx = f"{name}_mx"
    mx2 = f"{name}_mx2"
    a(f"s_branch {mx2}")
    a.label(mx)
    kload(3, "s60")
    a.label(mx2)
    a("s_cmp_eq_u32 s58, 1")
    nw = f"{name}_nw"
    a(f"s_cbranch_scc1 {nw}")
    a("s_waitcnt vmcnt(0)")
    a.label(nw)
    for qt in range(2):
        qk(S + qt*16, 3, qt, 0)
        qk(S + qt*16, 3, qt, 1)
    a("s_nop 7")
    a("s_add_u32 s60, s60, 1536")
    a("s_sub_u32 s61, s61, 1")
    for qt in range(2):
        for i in range(8):
            a(f"v_max3_f32 v{vmx+qt}, v{S+qt*16+2*i}, v{S+qt*16+2*i+1}, v{vmx+qt}")
    a("s_cmp_lg_u32 s61, 0")
    a(f"s_cbranch_scc1 {mx}")
    for qt in range(2):
        m = vmx + qt
        a(f"v_mov_b32 v{t[2]}, v{m}")
        a(f"v_mov_b32 v{t[3]}, v{m}")
        a("s_nop 1")
        a(f"v_permlane32_swap_b32 v{t[2]}, v{t[3]}")
        a("s_nop 1")
        a(f"v_max_f32 v{m}, v{t[2]}, v{t[3]}")
        a(f"v_sub_f32 v{m}, 0, v{m}")
        a(f"v_and_b32 v{t[2]}, 0xffff0000, v{m}")
        a(f"v_sub_f32 v{m}, v{m}, v{t[2]}")
        a(f"v_and_b32 v{t[3]}, 0xffff0000, v{m}")
        a(f"v_sub_f32 v{m}, v{m}, v{t[3]}")
        a(f"v_lshrrev_b32 v{t[2]}, 16, v{t[2]}")
        a(f"v_or_b32 v{t[2]}, v{t[2]}, v{t[3]}")
        a(f"v_lshrrev_b32 v{t[3]}, 16, v{m}")
        a(f"v_cndmask_b32 v{pk2}, 0, v{t[2]}, s[56:57]")
        a(f"v_cndmask_b32 v{pk2+1}, 0, v{t[3]}, s[56:57]")
        a(f"ds_write_b64 v{t[4]}, {vr(pk2,2)} offset:{qt*512}")
        a(f"ds_write_b64 v{t[4]}, {vr(pk2,2)} offset:{qt*512 + 2048}")
    kload(1, "s62", 1536)
    vload(1, "s63", 2048)
    a("s_add_u32 s64, s62, 3072")
    a("s_add_u32 s65, s63, 4096")
    kload(2, "s64")
    vload(2, "s65")
    a("s_waitcnt lgkmcnt(0)")
    a("s_barrier")
    for i in range(4):
        a(f"ds_read_b64 {vr(Q + i*8 + 6, 2)}, v{t[4]} offset:{i*512}")
    a("s_waitcnt vmcnt(8) lgkmcnt(0)")
    stamp(a, 10)
    qk(S, 0, 0, 0)
    qk(S, 0, 0, 1)
    a("s_add_u32 s64, s62, 4608")
    a("s_add_u32 s65, s63, 6144")
    a("s_mov_b32 s60, 0")
    a("s_nop 6")

    def unit(uu, hooks):
        buf, u = uu // 4, uu % 4
        sb = u % 2
        Xs = S + sb * 16
        Y = S + (1 - sb) * 16
        nq = (u + 1) % 4
        kb = buf if u < 3 else (buf + 1) % 4
        pq = (u - 1) % 4
        pvb = buf if u > 0 else (buf - 1) % 4
        def e(r):
            for i in r: a(f"v_exp_f32 v{Xs+i}, v{Xs+i}")
        def c(r):
            for i in r: a(f"v_cvt_pk_bf16_f32 v{P+sb*8+i}, v{Xs+2*i}, v{Xs+2*i+1}")
        def h(k):
            if k in hooks: hooks[k]()
        h(0)
        qk(Y, kb, nq, 0)
        e(range(4))
        qk(Y, kb, nq, 1)
        e(range(4, 8))
        pv(pq, 1 - sb, pvb, 1)
        h(1)
        c(range(4))
        e(range(8, 12))
        pv(u, sb, buf, 0)
        h(2)
        e(range(12, 16))
        c(range(4, 8))

    loop = f"{name}_loop"
    a.raw(".p2align 6")
    a.label(loop)
    for uu in range(16):
        tl, u = uu // 4, uu % 4
        hk = {}
        if u == 0:
            if not X_NOKV:
                hk[1] = lambda tl=tl: kload((tl + 3) % 4, "s64", (tl % 2) * 1536)
                hk[2] = lambda tl=tl: vload((tl + 3) % 4, "s65", (tl % 2) * 2048)
        if u == 1 and tl % 2 == 1:
            hk[1] = lambda: a("s_add_u32 s64, s64, 3072")
            hk[2] = lambda: a("s_add_u32 s65, s65, 4096")
        if uu == 1:
            def hw():
                a("s_cmp_eq_u32 s60, 7")
                a("s_cselect_b32 s64, s62, s64")
            hk[1] = hw
            hk[2] = lambda: a("s_cselect_b32 s65, s63, s65")
        if u == 3:
            hk[0] = lambda: a("s_waitcnt vmcnt(8)")
        if uu == 14:
            hk[1] = lambda: a("s_add_u32 s60, s60, 1")
            hk[2] = lambda: a("s_cmp_lt_u32 s60, 8")
        unit(uu, hk)
    a(f"s_cbranch_scc1 {loop}")
    a("s_nop 1")
    pv(3, 1, 3, 1)
    stamp(a, 11)
    a("s_xor_b32 s60, s3, 2")
    a("s_mul_i32 s60, s60, 6144")
    a(f"s_add_u32 s60, s60, {LC}")
    a(f"v_add_u32 v{t[0]}, s60, v{vl16}")
    a("s_mul_i32 s60, s3, 6144")
    a(f"s_add_u32 s60, s60, {LC}")
    a(f"v_add_u32 v{t[3]}, s60, v{vl16}")
    a(f"s_mov_b32 s60, {hexf(2.0**100)}")
    a("s_nop 3")
    for j in range(3):
        a(f"ds_write_b128 v{t[0]}, {ar(AO + 32 + j*4, 4)} offset:{j*1024}")
    for i in range(4):
        a(f"v_accvgpr_read_b32 v{S+i}, a{AO + i*16 + 8}")
    for j in range(3):
        a(f"ds_write_b128 v{t[0]}, {ar(AO + 48 + j*4, 4)} offset:{3072 + j*1024}")
    for i in range(1, 4):
        a(f"v_add_f32 v{S}, v{S}, v{S+i}")
    a(f"v_cmp_nge_f32 vcc, s60, v{S}")
    a("s_andn2_b64 vcc, vcc, s[56:57]")
    nb = f"{name}_notbad"
    a("s_cbranch_vccz " + nb)
    a(f"v_mov_b32 v{t[7]}, 1")
    a(f"ds_write_b32 v{t[6]}, v{t[7]}")
    a.label(nb)
    a("s_lshl_b32 s60, s49, 3")
    a("s_lshl_b32 s61, s52, 2")
    a("s_add_u32 s60, s60, s61")
    a("s_lshl_b32 s61, s53, 1")
    a("s_add_u32 s60, s60, s61")
    a("s_lshr_b32 s66, s60, 1")
    a("s_mul_i32 s60, s60, 40960")
    a(f"s_add_u32 s60, s60, {WS_O}")
    a("s_lshl_b32 s64, s48, 10")
    a("s_add_u32 s64, s64, s60")
    a("s_lshr_b32 s65, s48, 2")
    a("s_add_u32 s65, s65, 32")
    a("s_lshl_b32 s65, s65, 10")
    a("s_add_u32 s65, s65, s60")
    a("s_bfe_u32 s60, s48, 0x10001")
    a("s_lshl_b32 s60, s60, 9")
    a("s_add_u32 s65, s65, s60")
    a("s_and_b32 s60, s48, 1")
    a("s_lshl_b32 s60, s60, 3")
    a("s_add_u32 s65, s65, s60")
    a("s_lshl_b32 s66, s66, 8")
    a("s_lshl_b32 s60, s48, 3")
    a("s_add_u32 s66, s66, s60")
    a(f"s_add_u32 s66, s66, {WS_FO}")
    a("s_waitcnt vmcnt(0)")
    for i in range(24):
        a(f"v_accvgpr_read_b32 v{P + i}, a{AO + (i//12)*16 + i%12}")
    a("s_waitcnt lgkmcnt(0)")
    a("s_barrier")
    a(f"ds_read_b32 v{t[7]}, v{t[6]}")
    for k in range(6):
        a(f"ds_read_b128 {vr(S + k*4, 4)}, v{t[3]} offset:{k*1024}")
    a("s_waitcnt lgkmcnt(6)")
    a(f"v_readfirstlane_b32 s60, v{t[7]}")
    fin = f"{name}_fin"
    a("s_cmp_eq_u32 s60, 0")
    a(f"s_cbranch_scc1 {fin}")
    a("s_cmp_eq_u32 s58, 64")
    a(f"s_cbranch_scc1 {fin}")
    a("s_mov_b32 s58, 64")
    a("s_waitcnt lgkmcnt(0)")
    a("s_barrier")
    a(f"s_branch {restart}")
    a.label(fin)
    a("s_waitcnt lgkmcnt(0)")
    for qt in range(2):
        o = S + qt * 12
        for i in range(6):
            a(f"v_pk_add_f32 {vr(o+2*i,2)}, {vr(o+2*i,2)}, {vr(P + qt*12 + 2*i,2)}")
        a(f"v_rcp_f32 v{t[0]}, v{o+8}")
        a("s_nop 0")
        a(f"v_mov_b32 v{t[1]}, v{t[0]}")
        a("s_nop 1")
        a(f"v_permlane32_swap_b32 v{t[0]}, v{t[1]}")
        a("s_nop 1")
        for i in range(12):
            a(f"v_mul_f32 v{o+i}, v{o+i}, v{t[1]}")
        pq_ = V + qt * 8
        for i in range(6):
            a(f"v_cvt_pk_bf16_f32 v{pq_+i}, v{o+2*i}, v{o+2*i+1}")
        a(f"buffer_store_dwordx4 {vr(pq_,4)}, v{vl16}, s[4:7], s64 offen sc1")
        a("s_mov_b64 exec, s[56:57]")
        a(f"buffer_store_dwordx2 {vr(pq_+4,2)}, v{vl16}, s[4:7], s65 offen sc1")
        a("s_mov_b64 exec, -1")
        if qt == 0:
            a("s_add_u32 s64, s64, 40960")
            a("s_add_u32 s65, s65, 40960")
    a("s_waitcnt vmcnt(0)")
    put_flag(a, "s66", vz, vn)
    stamp(a, 12)
    stamp_flush(a, 13, 4, 0, 4, 5)
    dbg_flush(a, 13, [2, 3, 6, 7, 9, 10, 11], 2, 0, 37, 4, 5)


def gen_b(a, name):
    R = Regs(4, ACCUM)
    t = [R.alloc(f"t{i}") for i in range(14)]
    vn = R.alloc("vn", 2, 2)
    vz = R.alloc("vz")
    vl16 = R.alloc("vl16")
    vl4 = R.alloc("vl4")
    vid = R.alloc("vid", 3)
    AD0 = R.alloc("AD", 12, 2)
    LA = R.alloc("LA", 5)
    GA = R.alloc("GA", 5)
    BO = R.alloc("BO", 5)
    XB = R.alloc("XB", 20, 2)
    mark = R.mark()
    vx = R.alloc("vx", 4)
    vq = R.alloc("vq", 4)
    v1_ = R.alloc("v1", 3)
    D = R.alloc("D", 44, 4)
    ac = R.alloc("ac", 8, 4)
    E = R.alloc("E", 24, 4)
    XR = R.alloc("XR", 20, 2)
    a("s_setprio 3")
    a("s_sub_u32 s52, s3, 4")
    a(f"v_lshrrev_b32 v{t[0]}, 3, v1")
    a(f"v_mul_u32_u24 v{t[0]}, 1280, v{t[0]}")
    a(f"v_and_b32 v{t[1]}, 7, v1")
    a(f"v_lshl_add_u32 v{t[12]}, v{t[1]}, 4, v{t[0]}")
    a(f"v_lshrrev_b32 v{t[2]}, 4, v1")
    a(f"v_xor_b32 v{t[3]}, v{t[1]}, v{t[2]}")
    a(f"v_xor_b32 v{t[4]}, 4, v{t[3]}")
    for e in range(4):
        a(f"v_lshl_add_u32 v{vx+e}, v{t[3 + (e%2)]}, 4, v{t[0]}")
        if e:
            a(f"v_add_u32 v{vx+e}, {e*(10240-1024)}, v{vx+e}")
    a(f"v_mul_u32_u24 v{t[0]}, 3840, v{t[2]}")
    a(f"v_and_b32 v{t[1]}, 15, v1")
    a(f"v_lshlrev_b32 v{t[3]}, 2, v{t[2]}")
    a(f"v_xor_b32 v{t[1]}, v{t[1]}, v{t[3]}")
    a(f"v_lshl_add_u32 v{vq}, v{t[1]}, 4, v{t[0]}")
    for e in range(1, 4):
        a(f"v_add_u32 v{vq+e}, {e*(4*3840-1024)}, v{vq}")
    for e in range(3):
        a(f"v_add_u32 v{t[0]}, {64*e}, v1")
        a(f"v_mul_u32_u24 v{t[1]}, 43691, v{t[0]}")
        a(f"v_lshrrev_b32 v{t[1]}, 19, v{t[1]}")
        a(f"v_mul_u32_u24 v{t[2]}, 12, v{t[1]}")
        a(f"v_sub_u32 v{t[2]}, v{t[0]}, v{t[2]}")
        a(f"v_mul_u32_u24 v{t[1]}, 3072, v{t[1]}")
        a(f"v_lshl_add_u32 v{v1_+e}, v{t[2]}, 4, v{t[1]}")
        if e:
            a(f"v_subrev_u32 v{v1_+e}, {1024*e}, v{v1_+e}")
    a("s_lshl_b32 s60, s46, 2")
    a("s_add_u32 s60, s60, s52")
    a("s_mul_i32 s53, s60, 40960")
    a("s_mul_i32 s54, s52, 61440")
    a("s_mul_i32 s60, s47, 240")
    a("s_add_u32 s54, s54, s60")
    a("s_mul_i32 s55, s52, 49152")
    a("s_mul_i32 s60, s47, 192")
    a("s_add_u32 s55, s55, s60")
    a("s_lshl_b32 s56, s52, 12")
    a("s_mul_i32 s57, s52, 3072")
    a(f"s_add_u32 s57, s57, {L1}")
    a("s_mov_b32 s58, 0")
    a("s_mov_b32 s59, 0")
    a(f"v_mov_b32 v{vz}, 0")
    a(f"v_lshlrev_b32 v{vl16}, 4, v1")
    a(f"v_lshlrev_b32 v{vl4}, 2, v1")
    a("s_waitcnt lgkmcnt(0)")
    srd(a, 8, 24, 2048 * 640 * 2)
    srd(a, 12, 26, 640 * 1920 * 2)
    srd(a, 16, 32, 640 * 1536 * 2)

    def issue():
        a("s_add_u32 m0, s56, s58")
        a("s_nop 0")
        for e in range(4):
            a(f"buffer_load_dwordx4 v{vx+e}, s[8:11], s53 offen offset:{e*1024} lds")
        a(f"s_add_u32 m0, m0, {LQ}")
        a("s_add_u32 s53, s53, 128")
        for e in range(4):
            a(f"buffer_load_dwordx4 v{vq+e}, s[12:15], s54 offen offset:{e*1024} lds")
        a("s_add_u32 m0, s57, s59")
        a("s_add_u32 s54, s54, 245760")
        for e in range(3):
            a(f"buffer_load_dwordx4 v{v1_+e}, s[16:19], s55 offen offset:{e*1024} lds")
        a("s_add_u32 s55, s55, 196608")
        a("s_add_u32 s58, s58, 16384")
        a("s_add_u32 s59, s59, 12288")
        a("s_cmp_eq_u32 s58, 49152")
        a("s_cselect_b32 s58, 0, s58")
        a("s_cselect_b32 s59, 0, s59")

    issue()
    srd(a, 4, 44, WS_BYTES)
    srd(a, 20, 42, 256)
    nn = f"{name}_nononce"
    a("s_lshl_b32 s60, s2, 2")
    a("s_add_u32 s60, s60, s52")
    a("s_cmp_lg_u32 s60, 3")
    a(f"s_cbranch_scc1 {nn}")
    a("s_memrealtime s[60:61]")
    a("s_waitcnt lgkmcnt(0)")
    a("s_or_b32 s60, s60, 1")
    a(f"v_mov_b32 v{vn}, s60")
    a(f"v_mov_b32 v{vn+1}, s61")
    a("s_mov_b64 exec, 1")
    a(f"buffer_store_dwordx2 {vr(vn,2)}, v{vz}, s[20:23], 0 offen sc1")
    a("s_mov_b64 exec, -1")
    a.label(nn)
    issue()

    def get_nonce():
        lp, go = a.uid(name + "_np"), a.uid(name + "_ng")
        a(f"s_mov_b32 s68, {SPIN_MAX}")
        a.label(lp)
        a(f"v_cmp_ne_u32 vcc, 0, v{vn}")
        a(f"s_cbranch_vccnz {go}")
        a("s_sub_u32 s68, s68, 1")
        a("s_cmp_eq_u32 s68, 0")
        a(f"s_cbranch_scc1 {go}")
        a(f"buffer_load_dwordx2 {vr(vn,2)}, v{vz}, s[20:23], 0 offen sc1")
        a("s_waitcnt vmcnt(0)")
        a(f"s_branch {lp}")
        a.label(go)

    def unpack_acc(src, sum_lo, sum_hi, sq_lo=None, sq_hi=None):
        a(f"v_lshlrev_b32 v{t[0]}, 16, v{src}")
        a(f"v_and_b32 v{t[1]}, 0xffff0000, v{src}")
        a(f"v_add_f32 v{sum_lo}, v{sum_lo}, v{t[0]}")
        a(f"v_add_f32 v{sum_hi}, v{sum_hi}, v{t[1]}")
        if sq_lo is not None:
            a(f"v_fmac_f32 v{sq_lo}, v{t[0]}, v{t[0]}")
            a(f"v_fmac_f32 v{sq_hi}, v{t[1]}, v{t[1]}")

    def decode(ps):
        idr = vid + ps
        AD = AD0 + ps * 4
        a("s_lshl_b32 s60, s2, 2")
        a("s_add_u32 s60, s60, s52")
        a("s_mul_i32 s60, s60, 170")
        a("s_mov_b32 s61, 197380")
        a("s_mov_b32 s63, 26843546")
        a("s_movk_i32 s69, 96")
        a(f"v_add_u32 v{idr}, s60, v1")
        if ps:
            a(f"v_add_u32 v{idr}, {64*ps}, v{idr}")
        if ps == 2:
            a("s_add_u32 s60, s60, 169")
            a(f"v_min_u32 v{idr}, s60, v{idr}")
        cb, rem, step, it, tile, n, hf, rA, dB, col = t[0], t[1], t[2], t[3], t[4], t[5], t[6], t[9], t[10], t[11]
        a(f"v_mul_hi_u32 v{cb}, v{idr}, s61")
        a(f"v_mul_u32_u24 v{rem}, 21760, v{cb}")
        a(f"v_sub_u32 v{rem}, v{idr}, v{rem}")
        a(f"v_mul_hi_u32 v{step}, v{rem}, s63")
        a(f"v_mul_u32_u24 v{it}, 160, v{step}")
        a(f"v_sub_u32 v{it}, v{rem}, v{it}")
        a(f"v_lshrrev_b32 v{tile}, 6, v{it}")
        a(f"v_cmp_eq_u32 vcc, 2, v{tile}")
        a(f"v_and_b32 v{n}, 31, v{it}")
        a(f"v_bfe_u32 v{hf}, v{it}, 5, 1")
        a(f"v_and_b32 v{rem}, 15, v{it}")
        a(f"v_bfe_u32 v{it}, v{it}, 4, 1")
        a(f"v_cndmask_b32 v{n}, v{n}, v{rem}, vcc")
        a(f"v_cndmask_b32 v{hf}, v{hf}, v{it}, vcc")
        a(f"v_mul_u32_u24 v{col}, 80, v{cb}")
        a(f"v_lshl_add_u32 v{col}, v{tile}, 5, v{col}")
        a(f"v_add_u32 v{col}, v{col}, v{n}")
        a(f"v_lshlrev_b32 v{rA}, 4, v{step}")
        a(f"v_lshl_add_u32 v{rA}, v{hf}, 2, v{rA}")
        a(f"v_mov_b32 v{dB}, 8")
        a(f"v_subrev_u32 v{rem}, 96, v{step}")
        a(f"v_mul_u32_u24 v{it}, 20, v{rem}")
        a(f"v_lshl_add_u32 v{it}, v{hf}, 2, v{it}")
        a(f"v_cmp_le_u32 s[64:65], s69, v{step}")
        a(f"v_cmp_le_u32 vcc, 0x80, v{step}")
        a(f"v_subrev_u32 v{rem}, 128, v{step}")
        a(f"v_cndmask_b32 v{rA}, v{rA}, v{it}, s[64:65]")
        a(f"v_mul_u32_u24 v{it}, 80, v{rem}")
        a(f"v_mul_u32_u24 v{rem}, 40, v{hf}")
        a(f"v_add3_u32 v{it}, v{it}, v{rem}, 16")
        a(f"v_cndmask_b32 v{rA}, v{rA}, v{it}, vcc")
        a(f"v_cndmask_b32 v{dB}, v{dB}, 20, vcc")
        a(f"v_mul_u32_u24 v{rA}, 1280, v{rA}")
        a(f"v_lshl_add_u32 v{rA}, v{col}, 1, v{rA}")
        a(f"v_mul_u32_u24 v{dB}, 1280, v{dB}")
        a(f"v_mov_b32 v{rem}, s36")
        a(f"v_mov_b32 v{it}, s28")
        a(f"v_cndmask_b32 v{rem}, v{rem}, v{it}, s[64:65]")
        a(f"v_mov_b32 v{n}, s37")
        a(f"v_mov_b32 v{it}, s29")
        a(f"v_cndmask_b32 v{n}, v{n}, v{it}, s[64:65]")
        a(f"v_add_co_u32 v{AD}, vcc, v{rem}, v{rA}")
        a("s_nop 1")
        a(f"v_addc_co_u32 v{AD+1}, vcc, 0, v{n}, vcc")
        a(f"v_add_co_u32 v{AD+2}, vcc, v{AD}, v{dB}")
        a("s_nop 1")
        a(f"v_addc_co_u32 v{AD+3}, vcc, 0, v{AD+1}, vcc")

    def fprep():
        for it in range(5):
            a(f"v_add_u32 v{t[0]}, {it*256 - 256}, v0")
            a(f"v_mul_u32_u24 v{t[1]}, 52429, v{t[0]}")
            a(f"v_lshrrev_b32 v{t[1]}, 20, v{t[1]}")
            a(f"v_mul_u32_u24 v{t[2]}, 20, v{t[1]}")
            a(f"v_sub_u32 v{t[2]}, v{t[0]}, v{t[2]}")
            a(f"v_mul_u32_u24 v{t[3]}, {RS}, v{t[1]}")
            a(f"v_lshl_add_u32 v{LA+it}, v{t[2]}, 4, v{t[3]}")
            a(f"v_mul_u32_u24 v{t[3]}, 1280, v{t[1]}")
            a(f"v_lshl_add_u32 v{GA+it}, v{t[2]}, 3, v{t[3]}")
            a(f"v_lshlrev_b32 v{BO+it}, 3, v{t[2]}")

    join = f"{name}_bjoin"
    labs = [f"{name}_b{r}" for r in range(4)]
    for r in (1, 2, 3):
        a(f"s_cmp_eq_u32 s52, {r}")
        a(f"s_cbranch_scc1 {labs[r]}")
    for role in range(4):
        a.label(labs[role])
        slots = {k: [] for k in range(10)}
        pre_issue = {k: [] for k in range(10)}
        if role == 0:
            a("s_lshl_b32 s60, s46, 4")
            a("s_add_u32 s60, s60, s47")
            a("s_mul_i32 s61, s60, 10240")
            for m in range(10):
                a(f"buffer_load_dwordx4 {vr(D + 4*m, 4)}, v{t[12]}, s[8:11], s61 offen offset:{m*128}")
            nl = 10
        elif role in (1, 2):
            rowb, colb, sr_ = (3840, 240, 12) if role == 1 else (3072, 192, 16)
            a(f"s_mul_i32 s61, s46, {40*rowb}")
            a(f"s_mul_i32 s60, s47, {colb}")
            a("s_add_u32 s61, s61, s60")
            for m in range(40):
                a(f"buffer_load_dword v{D + m}, v{vl4}, s[{sr_}:{sr_+3}], s61 offen")
                if m < 39:
                    a(f"s_add_u32 s61, s61, {rowb}")
            nl = 40
        else:
            srd(a, 64, 34, 1536 * 2)
            a("s_mul_i32 s60, s47, 192")
            a(f"buffer_load_dword v{D}, v{vl4}, s[64:67], s60 offen")
            nl = 1
        a(f"buffer_load_dwordx2 {vr(vn,2)}, v{vz}, s[20:23], 0 offen sc1")
        nl += 1
        for i in range(4):
            a(f"v_mov_b32 v{ac+i}, 0")

        def chunk(lo, hi):
            def f():
                for m in range(lo, hi):
                    if role == 0:
                        unpack_acc(D + m, ac, ac + 1, ac + 2, ac + 3)
                    else:
                        unpack_acc(D + m, ac, ac + 1)
            return f
        if role in (0, 1, 2):
            for k, s_ in enumerate((2, 3, 4, 5)):
                slots[s_].append(chunk(10 * k, 10 * k + 10))
        if role == 0:
            def fin0():
                sm, sq = ac, ac + 2
                a(f"v_add_f32 v{sm}, v{ac}, v{ac+1}")
                a(f"v_add_f32 v{sq}, v{ac+2}, v{ac+3}")
                for mod in ("quad_perm:[1,0,3,2]", "quad_perm:[2,3,0,1]", "row_half_mirror"):
                    a("s_nop 1")
                    a(f"v_add_f32_dpp v{t[0]}, v{sm}, v{sm} {mod} row_mask:0xf bank_mask:0xf")
                    a(f"v_add_f32_dpp v{t[1]}, v{sq}, v{sq} {mod} row_mask:0xf bank_mask:0xf")
                    a(f"v_mov_b32 v{sm}, v{t[0]}")
                    a(f"v_mov_b32 v{sq}, v{t[1]}")
                mean, var, mbf, s1, r1, m2, s2, tmp = t[0], t[1], t[2], t[3], t[4], t[5], t[6], t[7]
                o = ac + 4
                a(f"s_mov_b32 s60, {hexf(1.0/640)}")
                a(f"s_mov_b32 s61, {hexf(EPS)}")
                a(f"v_mul_f32 v{mean}, s60, v{sm}")
                a(f"v_mul_f32 v{var}, s60, v{sq}")
                a(f"v_fma_f32 v{var}, -v{mean}, v{mean}, v{var}")
                a(f"v_max_f32 v{var}, 0, v{var}")
                rbf(a, mbf, mean)
                rbf(a, tmp, var)
                a(f"v_add_f32 v{tmp}, s61, v{tmp}")
                rbf(a, tmp, tmp)
                a(f"v_sqrt_f32 v{tmp}, v{tmp}")
                a("s_nop 0")
                rbf(a, s1, tmp)
                a(f"v_rcp_f32 v{r1}, v{s1}")
                a(f"v_sub_f32 v{o}, 0, v{mbf}")
                a(f"v_mov_b32 v{o+1}, v{r1}")
                a(f"v_sub_f32 v{tmp}, v{mean}, v{mbf}")
                a(f"v_mul_f32 v{tmp}, v{tmp}, v{r1}")
                rbf(a, m2, tmp)
                a(f"v_mul_f32 v{tmp}, v{var}, v{r1}")
                a(f"v_mul_f32 v{tmp}, v{tmp}, v{r1}")
                rbf(a, tmp, tmp)
                a(f"v_add_f32 v{tmp}, s61, v{tmp}")
                rbf(a, tmp, tmp)
                a(f"v_sqrt_f32 v{tmp}, v{tmp}")
                a("s_nop 0")
                rbf(a, s2, tmp)
                a(f"v_mul_f32 v{tmp}, v{s1}, v{s2}")
                a(f"v_rcp_f32 v{o+2}, v{tmp}")
                a(f"v_fma_f32 v{tmp}, v{m2}, v{s1}, v{mbf}")
                a(f"v_mul_f32 v{o+3}, v{tmp}, v{o+2}")
                a(f"v_sub_f32 v{o+3}, 0, v{o+3}")
                a(f"v_lshrrev_b32 v{t[8]}, 3, v1")
                a(f"v_lshlrev_b32 v{t[8]}, 4, v{t[8]}")
                a("s_lshl_b32 s60, s46, 4")
                a("s_add_u32 s60, s60, s47")
                a("s_lshl_b32 s62, s60, 3")
                a(f"s_add_u32 s62, s62, {WS_FSR}")
                a("s_lshl_b32 s60, s60, 7")
                a(f"s_add_u32 s60, s60, {WS_ST}")
            def st0():
                a(f"buffer_store_dwordx4 {vr(ac+4,4)}, v{t[8]}, s[4:7], s60 offen sc1")
            slots[5].append(fin0)
            pre_issue[6].append(st0)
        elif role in (1, 2):
            def st12():
                a("s_lshl_b32 s60, s47, 4")
                a("s_add_u32 s60, s60, s46")
                a("s_lshl_b32 s62, s60, 3")
                a(f"s_add_u32 s62, s62, {WS_FSC + (role-1)*2048}")
                a("s_lshl_b32 s60, s60, 10")
                a(f"s_add_u32 s60, s60, {WS_CS + (role-1)*512}")
                a(f"v_lshlrev_b32 v{t[8]}, 3, v1")
                a(f"buffer_store_dwordx2 {vr(ac,2)}, v{t[8]}, s[4:7], s60 offen sc1")
            pre_issue[6].append(st12)
        else:
            def b1n():
                a(f"v_lshlrev_b32 v{ac}, 16, v{D}")
                a(f"v_and_b32 v{ac+1}, 0xffff0000, v{D}")
                a(f"v_lshlrev_b32 v{t[0]}, 3, v1")
                a(f"v_add_u32 v{t[0]}, {LB1}, v{t[0]}")
                a(f"ds_write_b64 v{t[0]}, {vr(ac,2)}")
                a(f"v_mov_b32 v{t[0]}, {LFLAG}")
                a(f"ds_write_b32 v{t[0]}, v{vz}")
            slots[2].append(b1n)
        def rt_loads(ps):
            for j in range(8):
                a(f"global_load_ushort v{E + ps*8 + j}, {vr(AD0 + ps*4 + (2 if j >= 4 else 0), 2)}, off offset:{(j%4)*1280}")
        def xb_loads():
            srd(a, 64, 38, 640 * 2)
            a("s_mul_i32 s63, s50, 81920")
            a("s_mul_i32 s69, s51, 160")
            a("s_add_u32 s63, s63, s69")
            for it in range(5):
                a(f"buffer_load_dwordx2 {vr(XR+4*it,2)}, v{GA+it}, s[8:11], s63 offen")
                a(f"buffer_load_dwordx2 {vr(XR+4*it+2,2)}, v{BO+it}, s[64:67], s69 offen")
        def rt_pack():
            for i in range(12):
                a(f"v_lshl_or_b32 v{E+i}, v{E+2*i+1}, 16, v{E+2*i}")
            for ps in range(3):
                a(f"v_lshlrev_b32 v{vid+ps}, 4, v{vid+ps}")
        def rt_store():
            a(f"s_mov_b32 s63, {WS_WF}")
            for ps in range(3):
                a(f"buffer_store_dwordx4 {vr(E+ps*4,4)}, v{vid+ps}, s[4:7], s63 offen sc1")
        def xb_calc():
            for it in range(5):
                for h in range(2):
                    x_, b_ = XR + 4*it + h, XR + 4*it + 2 + h
                    a(f"v_lshlrev_b32 v{t[9]}, 16, v{x_}")
                    a(f"v_lshlrev_b32 v{t[10]}, 16, v{b_}")
                    a(f"v_add_f32 v{XB+it*4+2*h}, v{t[9]}, v{t[10]}")
                    a(f"v_and_b32 v{t[9]}, 0xffff0000, v{x_}")
                    a(f"v_and_b32 v{t[10]}, 0xffff0000, v{b_}")
                    a(f"v_add_f32 v{XB+it*4+2*h+1}, v{t[9]}, v{t[10]}")
        if role < 3:
            def fl():
                get_nonce()
                put_flag(a, "s62", vz, vn)
            pre_issue[7].append(fl)
        def gather1():
            if role == 0:
                a("s_lshl_b32 s60, s46, 7")
                a(f"s_add_u32 s60, s60, {WS_FSR}")
                a(f"v_and_b32 v{t[0]}, 15, v1")
                a(f"v_lshlrev_b32 v{t[0]}, 3, v{t[0]}")
                poll(a, name + "_sr", t[0], "s60", D, vr(vn, 2))
                a("s_lshl_b32 s60, s46, 11")
                a(f"s_add_u32 s60, s60, {WS_ST}")
                a("s_waitcnt vmcnt(0)")
                a(f"buffer_load_dwordx4 {vr(D,4)}, v{vl16}, s[4:7], s60 offen sc1")
                a(f"buffer_load_dwordx4 {vr(D+4,4)}, v{vl16}, s[4:7], s60 offen offset:1024 sc1")
            elif role in (1, 2):
                a("s_lshl_b32 s60, s47, 7")
                a(f"s_add_u32 s60, s60, {WS_FSC + (role-1)*2048}")
                a(f"v_and_b32 v{t[0]}, 15, v1")
                a(f"v_lshlrev_b32 v{t[0]}, 3, v{t[0]}")
                poll(a, name + "_sc", t[0], "s60", D, vr(vn, 2))
                a("s_lshl_b32 s60, s47, 14")
                a(f"s_add_u32 s60, s60, {WS_CS + (role-1)*512}")
                a("s_waitcnt vmcnt(0)")
                for m in range(16):
                    a(f"buffer_load_dwordx2 {vr(D + 2*m, 2)}, v{t[8]}, s[4:7], s60 offen offset:{(m%4)*1024} sc1")
                    if m % 4 == 3 and m < 15:
                        a("s_add_u32 s60, s60, 4096")
            else:
                get_nonce()
                a(f"v_mov_b32 v{t[0]}, {LNONCE}")
                a(f"ds_write_b64 v{t[0]}, {vr(vn,2)}")
                a("s_waitcnt vmcnt(0)")

        def gather2():
            if role == 0:
                a(f"v_add_u32 v{t[0]}, {LSTAT}, v{vl16}")
                a("s_waitcnt vmcnt(0)")
                a(f"ds_write_b128 v{t[0]}, {vr(D,4)}")
                a(f"ds_write_b128 v{t[0]}, {vr(D+4,4)} offset:1024")
            elif role in (1, 2):
                a(f"v_add_u32 v{t[0]}, {LCS + (role-1)*512}, v{t[8]}")
                a("s_waitcnt vmcnt(0)")
                for m in range(1, 16):
                    a(f"v_pk_add_f32 {vr(D,2)}, {vr(D,2)}, {vr(D+2*m,2)}")
                a(f"ds_write_b64 v{t[0]}, {vr(D,2)}")

        for stg in range(10):
            if stg <= 1:
                a(f"s_waitcnt vmcnt({11 + nl})")
            elif stg <= 8:
                a("s_waitcnt vmcnt(11)")
            a("s_barrier")
            for f in pre_issue[stg]: f()
            if stg <= 7:
                issue()
            for f in slots[stg]: f()
            if stg == 8:
                gather1()
        gather2()
        if role < 3:
            a(f"s_branch {join}")
    a.label(join)
    stamp(a, 2)
    a("s_waitcnt lgkmcnt(0)")
    a("s_barrier")
    a("s_setprio 0")
    for ps in range(3):
        decode(ps)
    fprep()
    for ps in range(3):
        rt_loads(ps)
    xb_loads()
    a("s_waitcnt vmcnt(10)")
    rt_pack()
    rt_store()
    a("s_waitcnt vmcnt(3)")
    xb_calc()
    a("s_lshl_b32 s60, s2, 2")
    a("s_add_u32 s60, s60, s52")
    a("s_lshl_b32 s60, s60, 3")
    a(f"s_add_u32 s60, s60, {WS_FW}")
    a("s_waitcnt vmcnt(0)")
    put_flag(a, "s60", vz, vn)
    R.release(mark)
    vl16b, vt2, vt2b = vid, vid + 1, vid + 2
    pt = BO
    assert pt % 2 == 0
    F = R.alloc("F", 80, 4)
    accv = R.alloc("accv", 32, 4)
    WB = AD0
    assert WB % 2 == 0
    srd(a, 16, 40, 2048 * 640 * 2)
    a("s_mul_i32 s58, s50, 81920")
    a("s_mul_i32 s59, s51, 160")
    a("s_add_u32 s58, s58, s59")
    a("s_mul_i32 s60, s52, 25600")
    a(f"v_add_u32 v{t[4]}, s60, v{vl16}")
    a(f"s_mul_i32 s61, s52, {64*RS}")
    a(f"v_mul_u32_u24 v{t[6]}, {RS}, v2")
    a(f"v_lshl_add_u32 v{t[6]}, v3, 4, v{t[6]}")
    a(f"v_add_u32 v{t[6]}, s61, v{t[6]}")
    a(f"v_and_b32 v{t[7]}, 7, v1")
    a(f"v_lshlrev_b32 v{t[7]}, 3, v{t[7]}")
    a(f"v_mov_b32 v{t[8]}, {LFLAG}")

    def accreg(i, n):
        return ar(i, n) if i < 64 else vr(accv + i - 64, n)

    a(f"v_add_u32 v{vl16b}, 0x1000, v{vl16}")
    a(f"v_and_b32 v{vt2}, 15, v1")
    a(f"v_lshl_add_u32 v{vt2}, v3, 4, v{vt2}")
    a(f"v_lshlrev_b32 v{vt2}, 4, v{vt2}")
    a(f"v_add_u32 v{vt2b}, 0x1000, v{vt2}")
    a(f"v_add_u32 v{t[5]}, s60, v{vt2}")
    for i in range(64):
        a(f"v_accvgpr_write_b32 a{i}, 0")
    for i in range(32):
        a(f"v_mov_b32 v{accv+i}, 0")
    a("s_mul_i32 s53, s50, 196608")
    a("s_mul_i32 s60, s52, 24576")
    a("s_add_u32 s53, s53, s60")
    a(f"s_add_u32 s53, s53, {WS_H}")
    a("s_add_u32 s54, s53, 98304")
    a("s_mul_i32 s56, s51, 136")
    a("s_mul_i32 s60, s52, 24")
    a("s_add_u32 s60, s60, s56")
    a("s_mul_i32 s55, s60, 2560")
    a(f"s_add_u32 s55, s55, {WS_WF}")
    a(f"v_bfe_u32 v{t[0]}, v1, 1, 2")
    a(f"v_lshlrev_b32 v{t[0]}, 5, v{t[0]}")
    a(f"v_and_b32 v{t[1]}, 1, v1")
    a(f"v_lshl_add_u32 v{t[0]}, v{t[1]}, 4, v{t[0]}")
    a("s_lshr_b32 s60, s50, 1")
    a("s_lshl_b32 s60, s60, 9")
    a("s_lshl_b32 s61, s52, 7")
    a("s_add_u32 s60, s60, s61")
    a("s_and_b32 s61, s50, 1")
    a("s_lshl_b32 s61, s61, 3")
    a("s_add_u32 s60, s60, s61")
    a(f"s_add_u32 s63, s60, {WS_FH}")
    a("s_lshl_b32 s60, s51, 10")
    a(f"s_add_u32 s64, s60, {WS_FW}")
    a(f"v_lshlrev_b32 v{t[2]}, 3, v1")
    a(f"v_add_u32 v{t[3]}, 512, v{t[2]}")
    stamp(a, 3)
    a("s_barrier")
    stamp(a, 4)
    poll(a, name + "_fw", t[2], "s64", pt, vr(vn, 2), extra=t[3])
    poll(a, name + "_fh", t[0], "s63", pt, vr(vn, 2))
    stamp(a, 5)

    def wload(dst, sreg, off):
        for k, (va, vb) in enumerate(((vl16, vl16b), (vl16, vl16b), (vt2, vt2b))):
            o = off + k * 1024
            v = va if o < 4096 else vb
            a(f"buffer_load_dwordx4 {vr(dst + k*4, 4)}, v{v}, s[4:7], s{sreg} offen offset:{o % 4096} sc1")

    def gl_ops(b):
        base = F + b * 20
        return [f"buffer_load_dwordx4 {vr(base,4)}, v{vl16}, s[4:7], s53 offen sc1",
                f"buffer_load_dwordx4 {vr(base+4,4)}, v{vl16}, s[4:7], s54 offen sc1",
                f"buffer_load_dwordx4 {vr(base+8,4)}, v{vl16}, s[4:7], s55 offen sc1",
                f"buffer_load_dwordx4 {vr(base+12,4)}, v{vl16}, s[4:7], s55 offen offset:1024 sc1",
                f"buffer_load_dwordx4 {vr(base+16,4)}, v{vt2}, s[4:7], s55 offen offset:2048 sc1",
                "s_add_u32 s53, s53, 1024\ns_add_u32 s54, s54, 1024\ns_add_u32 s55, s55, 2560"]

    def gstep(b, nxt, wait):
        if X_NOG: return
        a(f"s_waitcnt vmcnt({wait})")
        base = F + b * 20
        ops = gl_ops(nxt) if nxt is not None else [None] * 6
        for k in range(6):
            c = accreg(k * 16, 16)
            a(f"v_mfma_f32_32x32x16_bf16 {c}, {vr(base + 8 + (k//2)*4, 4)}, {vr(base + (k%2)*4, 4)}, {c}")
            if ops[k]: a(ops[k])

    a("s_setprio 0")
    for b in range(2):
        for o in gl_ops(b): a(o)
    a("s_mov_b32 s60, 0")
    gl = f"{name}_gl"
    a.label(gl)
    for b in range(3):
        gstep(b, (b + 2) % 3, 5)
    a("s_add_u32 s60, s60, 1")
    a("s_cmp_lt_u32 s60, 7")
    a(f"s_cbranch_scc1 {gl}")
    gstep(0, 2, 5)
    gstep(1, None, 5)
    gstep(2, None, 0)
    stamp(a, 6)
    a("s_lshl_b32 s60, s52, 3")
    a("s_add_u32 s60, s60, s56")
    a("s_add_u32 s60, s60, 96")
    a("s_mul_i32 s53, s60, 2560")
    a(f"s_add_u32 s53, s53, {WS_WF}")
    a("s_lshl_b32 s60, s52, 1")
    a("s_add_u32 s60, s60, s56")
    a("s_add_u32 s60, s60, 128")
    a("s_mul_i32 s54, s60, 2560")
    a(f"s_add_u32 s54, s54, {WS_WF}")
    a("s_waitcnt vmcnt(0)")
    def wo_ld(e):
        if e < 20:
            v = vl16 if (e % 8) < 4 else vl16b
            if e and e % 8 == 0:
                a("s_add_u32 s53, s53, 8192")
            a(f"buffer_load_dwordx4 {vr(F + (e%4)*4, 4)}, v{v}, s[4:7], s53 offen offset:{(e%4)*1024} sc1")
        else:
            v = vl16 if e < 24 else vl16b
            a(f"buffer_load_dwordx4 {vr(F + (e%4)*4, 4)}, v{v}, s[4:7], s54 offen offset:{(e%4)*1024} sc1")
    for e in range(3):
        wo_ld(e)
    for e in range(25):
        a(f"s_waitcnt vmcnt({min(2, 24-e)}) lgkmcnt(0)")
        a(f"ds_write_b128 v{t[4]}, {vr(F + (e%4)*4, 4)} offset:{e*1024}")
        if e + 3 < 25:
            wo_ld(e + 3)
    a("s_mul_i32 s60, s50, 81920")
    a("s_lshl_b32 s53, s52, 13")
    a("s_add_u32 s53, s53, s60")
    a(f"s_add_u32 s53, s53, {WS_O}")
    a("s_add_u32 s54, s53, 40960")
    a("s_lshl_b32 s55, s52, 11")
    a("s_add_u32 s55, s55, s60")
    a(f"s_add_u32 s55, s55, {WS_O + 32768}")
    a("s_add_u32 s56, s55, 40960")
    a("s_lshl_b32 s60, s50, 8")
    a("s_lshl_b32 s61, s52, 6")
    a("s_add_u32 s60, s60, s61")
    a(f"s_add_u32 s63, s60, {WS_FO}")
    a("s_waitcnt lgkmcnt(0)")
    stamp(a, 7)
    a("s_barrier")
    a(f"ds_read_b32 v{t[2]}, v{t[8]}")
    a("s_waitcnt lgkmcnt(0)")
    a(f"v_readfirstlane_b32 s60, v{t[2]}")
    nr = f"{name}_noredo"
    a("s_cmp_eq_u32 s60, 0")
    a(f"s_cbranch_scc1 {nr}")
    a("s_barrier")
    a("s_barrier")
    a("s_barrier")
    a.label(nr)
    stamp(a, 8)

    def wread(n, dst):
        a(f"ds_read_b128 {vr(dst,4)}, v{t[4]} offset:{n*2560}")
        a(f"ds_read_b128 {vr(dst+4,4)}, v{t[4]} offset:{n*2560 + 1024}")
        a(f"ds_read_b128 {vr(dst+8,4)}, v{t[5]} offset:{n*2560 + 2048}")
    poll(a, name + "_fo", t[7], "s63", pt, vr(vn, 2))
    stamp(a, 9)
    for n in range(10):
        for rt in range(2):
            if n < 8:
                sreg, off = 53 + rt, n * 1024
            else:
                sreg, off = 55 + rt, (n - 8) * 1024
            v = vl16 if off < 4096 else vl16b
            a(f"buffer_load_dwordx4 {vr(F + (n*2+rt)*4, 4)}, v{v}, s[4:7], s{sreg} offen offset:{off % 4096} sc1")
    wread(0, WB)
    for n in range(10):
        a(f"s_waitcnt vmcnt({18 - 2*n}) lgkmcnt(0)")
        for nt in range(3):
            for rt in range(2):
                c = accreg((nt*2+rt)*16, 16)
                a(f"v_mfma_f32_32x32x16_bf16 {c}, {vr(WB + nt*4, 4)}, {vr(F + (n*2+rt)*4, 4)}, {c}")
            if n < 9:
                adr, off = (t[4], (n+1)*2560 + nt*1024) if nt < 2 else (t[5], (n+1)*2560 + 2048)
                a(f"ds_read_b128 {vr(WB + nt*4, 4)}, v{adr} offset:{off}")
    stamp(a, 10)
    a("s_barrier")
    a("s_nop 7")
    for nt in range(3):
        for rt in range(2):
            for q in range(4 if nt < 2 else 2):
                a(f"ds_write_b128 v{t[6]}, {accreg((nt*2+rt)*16 + q*4, 4)} offset:{rt*32*RS + nt*128 + q*32}")
    a("s_waitcnt lgkmcnt(0)")
    a("s_barrier")
    PD = F
    for it in range(5):
        for w in range(4):
            a(f"ds_read_b128 {vr(PD + it*16 + w*4, 4)}, v{LA+it} offset:{w*64*RS}")
    for it in range(5):
        a(f"s_waitcnt lgkmcnt({min(15, 4*(4-it))})")
        p = PD + it * 16
        for i in range(2):
            a(f"v_pk_add_f32 {vr(p+2*i,2)}, {vr(p+2*i,2)}, {vr(p+4+2*i,2)}")
            a(f"v_pk_add_f32 {vr(p+8+2*i,2)}, {vr(p+8+2*i,2)}, {vr(p+12+2*i,2)}")
        for i in range(2):
            a(f"v_pk_add_f32 {vr(p+2*i,2)}, {vr(p+2*i,2)}, {vr(XB+it*4+2*i,2)}")
        for i in range(2):
            a(f"v_pk_add_f32 {vr(p+2*i,2)}, {vr(p+2*i,2)}, {vr(p+8+2*i,2)}")
        a(f"v_cvt_pk_bf16_f32 v{p+4}, v{p}, v{p+1}")
        a(f"v_cvt_pk_bf16_f32 v{p+5}, v{p+2}, v{p+3}")
        a(f"buffer_store_dwordx2 {vr(p+4,2)}, v{GA+it}, s[16:19], s58 offen")
    stamp(a, 11)
    stamp_flush(a, 12, 4, 0, 4, 5)
    dbg_flush(a, 12, [7, 8, 9, 10, 11], 10, 4, 37, 4, 5)
    a("s_endpgm")
```

```python
import sys, importlib
sys.path.insert(0, "gen")
from asmlib import *
import k1

HEADER = open("parallel_sum__softmax_full_mha__mixer_channel_mlp__prompt.s.ref").read().split("; Override launch")[0]

def build(out, kernels):
    a = Asm()
    a.raw(HEADER.rstrip())
    for (name, gen, grid, block, lds, vgpr) in kernels:
        a.raw(f"; @launch kernel={name} grid=({grid},1,1) block=({block},1,1) lds={lds}")
    a.raw('.amdgcn_target "amdgcn-amd-amdhsa--gfx950"')
    for (name, gen, grid, block, lds, vgpr) in kernels:
        gen(a, name)
    for (name, gen, grid, block, lds, vgpr) in kernels:
        kernel_desc(a, name, vgpr)
    open(out, "w").write(a.text())

if __name__ == "__main__":
    which = sys.argv[1] if len(sys.argv) > 1 else "all"
    out = sys.argv[2] if len(sys.argv) > 2 else "parallel_sum__softmax_full_mha__mixer_channel_mlp__prompt.s"
    import asmlib
    if "stamp" in sys.argv: asmlib.STAMP = True
    if "dbgstamp" in sys.argv: asmlib.STAMP = True; asmlib.DBGSTAMP = True
    if "nopf" in sys.argv: k1.PREFETCH = False
    for f in ("sc1","nt","sc0 sc1"):
        if "st="+f.replace(" ","") in sys.argv: k1.STFLAG = " "+f
    for f in ("NOCOMP","NODMA","NOSTAT","BARFIRST"):
        if f.lower() in sys.argv: setattr(k1, f, True)
    if which == "f":
        import f
        for fl in dir(f):
            if fl.startswith("X_") and fl.lower() in sys.argv: setattr(f, fl, True)
        NAME = "parallel_sum__softmax_full_mha__mixer_channel_mlp__prompt_kernel"
        a = Asm()
        a.raw(HEADER.rstrip())
        if "aslist" in sys.argv:
            a.raw(f"; @launch kernel={NAME} grid=(256,1,1) block=({f.BLOCK},1,1) lds={f.F_LDS}")
        else:
            a.raw(f"; @launch grid=(256,1,1) block=({f.BLOCK},1,1) lds={f.F_LDS}")
        a.raw('.amdgcn_target "amdgcn-amd-amdhsa--gfx950"')
        f.gen_f(a, NAME)
        kernel_desc(a, NAME, (f.VGPR, f.ACCUM))
        open(out, "w").write(a.text())
        sys.exit(0)
    ks = [("k1_kernel", k1.gen_k1, 256, 768, k1.K1_LDS, 168)]
    if which != "k1":
        import k2
        for f in ('NODMA','NOSYNC','NOLDS'):
            if 'x_'+f.lower() in sys.argv: setattr(k2, 'X_'+f, True)
        ks.append(("k2_kernel", k2.gen_k2, 256, k2.BLOCK, k2.K2_LDS, (k2.VGPR, k2.ACCUM)))
        if which == "k123":
            import k3
            ks.append(("k3_kernel", k3.gen_k3, 256, k3.BLOCK, k3.K3_LDS, k3.VGPR))
    build(out, ks)
```

```python
import struct


def f32bits(x):
    return struct.unpack("<I", struct.pack("<f", x))[0]


def hexf(x):
    return "0x%08x" % f32bits(x)


class Asm:
    def __init__(self):
        self.lines = []
        self._uid = 0

    def __call__(self, s, *more):
        for t in (s,) + more:
            for ln in t.split("\n"):
                ln = ln.strip()
                if ln:
                    self.lines.append("    " + ln)

    def label(self, name):
        self.lines.append(name + ":")

    def comment(self, s):
        self.lines.append("    ; " + s)

    def raw(self, s):
        self.lines.append(s)

    def uid(self, base="L"):
        self._uid += 1
        return f"{base}_{self._uid}"

    def text(self):
        return "\n".join(self.lines) + "\n"


def vr(base, n=1):
    if n == 1:
        return f"v{base}"
    return f"v[{base}:{base + n - 1}]"


def sr(base, n=1):
    if n == 1:
        return f"s{base}"
    return f"s[{base}:{base + n - 1}]"


class Regs:
    def __init__(self, start=0, limit=256):
        self.next = start
        self.limit = limit
        self.names = {}
        self.hw = start

    def alloc(self, name, n=1, align=1):
        b = (self.next + align - 1) // align * align
        self.next = b + n
        assert self.next <= self.limit, f"out of registers allocating {name}: {self.next} > {self.limit}"
        self.names[name] = b
        self.hw = max(self.hw, self.next)
        return b

    def mark(self):
        return self.next

    def release(self, mark):
        self.next = mark


def srd(a, d, ptr, nbytes):
    a(f"s_mov_b32 s{d}, s{ptr}")
    a(f"s_and_b32 s{d+1}, s{ptr+1}, 0xffff")
    a(f"s_mov_b32 s{d+2}, {nbytes}")
    a(f"s_mov_b32 s{d+3}, 0x00020000")


def kernel_header(a, name):
    a.raw(".text")
    a.raw(f".globl {name}")
    a.raw(".p2align 8")
    a.raw(f".type {name},@function")
    a.label(name)


def kernel_desc(a, name, vgpr, sgpr=102):
    if isinstance(vgpr, tuple):
        vgpr, acc = vgpr
    else:
        acc = (vgpr + 3) // 4 * 4
    a.raw('.section .rodata,"a"')
    a.raw(".p2align 6")
    a.raw(f".amdhsa_kernel {name}")
    a.raw(f"  .amdhsa_next_free_vgpr {vgpr}")
    a.raw(f"  .amdhsa_next_free_sgpr {sgpr}")
    a.raw(f"  .amdhsa_accum_offset {acc}")
    a.raw("  .amdhsa_group_segment_fixed_size 0")
    a.raw("  .amdhsa_kernarg_size 88")
    a.raw("  .amdhsa_user_sgpr_count 2")
    a.raw("  .amdhsa_user_sgpr_kernarg_segment_ptr 1")
    a.raw("  .amdhsa_system_sgpr_workgroup_id_x 1")
    a.raw("  .amdhsa_float_denorm_mode_32 3")
    a.raw(".end_amdhsa_kernel")


STAMP = False
SB = 64
WS_STAMP = 0x4000000
def stamp(a, idx, real=False):
    if not STAMP:
        return
    a(f"s_mem{'real' if real else ''}time s[{SB+2*idx}:{SB+1+2*idx}]")

def stamp_flush(a, n, wsrd, kidx, vt0, vt1):
    if not STAMP or DBGSTAMP:
        return
    a("s_waitcnt lgkmcnt(0) vmcnt(0)")
    a(f"s_memrealtime s[{SB+2*n}:{SB+1+2*n}]")
    a("s_waitcnt lgkmcnt(0)")
    a("s_lshl_b32 s62, s2, 4")
    a("s_add_u32 s62, s62, s3")
    a("s_lshl_b32 s62, s62, 6")
    a(f"s_add_u32 s62, s62, {WS_STAMP + kidx*0x100000}")
    a("s_mov_b64 exec, 1")
    a(f"v_mov_b32 v{vt0}, 0")
    for i in range(n+1):
        a(f"v_mov_b32 v{vt1}, s{SB+2*i}")
        a(f"buffer_store_dword v{vt1}, v{vt0}, s[{wsrd}:{wsrd+3}], s62 offen offset:{4*i}")
        a("s_nop 1")


DBGSTAMP = False
def dbg_flush(a, n, idxs, word0, wave, wg, vt0, vt1):
    if not DBGSTAMP:
        return
    lab = a.uid("dbgf")
    a("s_waitcnt lgkmcnt(0) vmcnt(0)")
    a(f"s_memrealtime s[{SB+2*n}:{SB+1+2*n}]")
    a("s_waitcnt lgkmcnt(0)")
    a(f"s_cmp_lg_u32 s2, {wg}")
    a(f"s_cbranch_scc1 {lab}")
    a(f"s_cmp_lg_u32 s3, {wave}")
    a(f"s_cbranch_scc1 {lab}")
    srd(a, 20, 42, 256)
    a("s_mov_b64 exec, 1")
    a(f"v_mov_b32 v{vt0}, 0")
    for k, i in enumerate(idxs):
        a(f"s_sub_u32 s62, s{SB+2*i}, s{SB+2}")
        a(f"v_mov_b32 v{vt1}, s62")
        a(f"buffer_store_dword v{vt1}, v{vt0}, s[20:23], 0 offen offset:{4*(word0+k)}")
        a("s_nop 1")
    a(f"s_sub_u32 s62, s{SB+2*n}, s{SB}")
    a(f"v_mov_b32 v{vt1}, s62")
    a(f"buffer_store_dword v{vt1}, v{vt0}, s[20:23], 0 offen offset:{4*(word0+len(idxs))}")
    a.label(lab)
```

```python
import math
from asmlib import *
import asmlib

BLOCK = 512
ACCUM = 192
NAGPR = 64
VGPR = ACCUM + NAGPR

WS_QK = 0
WS_VT = 0x600000
WS_H = 0xA00000
WS_O = 0x1000000
WS_WF = 0x1300000
WS_FLAG = 0x1700000
WS_FQ = WS_FLAG
WS_FH = WS_FLAG + 0x2000
WS_FW = WS_FLAG + 0xA000
WS_FO = WS_FLAG + 0x6000
WS_FSR = WS_FLAG + 0x8000
WS_FSC = WS_FLAG + 0x9000
WS_ST = WS_FLAG + 0x10000
WS_CS = WS_FLAG + 0x20000
WS_BYTES = 268435456
GSTRIDE = 2048 * 48

LX = 0
LQ = 49152
L1 = 98304
LSTAT = 135168
LCS = 137216
LB1 = 138240
LNONCE = 138752
LFLAG = 138768
LRT = 138816
LPUB = LRT + 5 * 3072
F_LDS = LPUB + 128 + 4096
LWO = 0
LM = 102400
LC = 110592
RS = 336
LH = 49152

QSCALE = (20 ** -0.5) * math.log2(math.e)
EPS = 1e-5
SPIN_MAX = 100000
X_NOG = False
X_NOKV = False
X_P1 = False
X_PACE = False
X_PLAIN = False


def ar(base, n=1):
    return f"a{base}" if n == 1 else f"a[{base}:{base+n-1}]"


def rbf(a, d, s):
    a(f"v_cvt_pk_bf16_f32 v{d}, v{s}, v{s}")
    a(f"v_lshlrev_b32 v{d}, 16, v{d}")


def poll(a, name, vaddr, soff, vtmp, nonce, extra=None):
    lp, go = a.uid(name + "_p"), a.uid(name + "_g")
    a(f"s_mov_b32 s68, {SPIN_MAX}")
    a.label(lp)
    a(f"buffer_load_dwordx2 {vr(vtmp,2)}, v{vaddr}, s[4:7], {soff} offen sc1")
    if extra:
        a(f"buffer_load_dwordx2 {vr(vtmp+2,2)}, v{extra}, s[4:7], {soff} offen sc1")
    a("s_sub_u32 s68, s68, 1")
    a("s_cmp_eq_u32 s68, 0")
    a(f"s_cbranch_scc1 {go}")
    a("s_waitcnt vmcnt(0)")
    a(f"v_cmp_ne_u64 vcc, {nonce}, {vr(vtmp,2)}")
    if extra:
        a(f"v_cmp_ne_u64 s[66:67], {nonce}, {vr(vtmp+2,2)}")
        a("s_or_b64 vcc, vcc, s[66:67]")
    a(f"s_cbranch_vccz {go}")
    a("s_sleep 4")
    a(f"s_branch {lp}")
    a.label(go)


def put_flag(a, soff, vz, vn):
    a("s_mov_b64 exec, 1")
    a(f"buffer_store_dwordx2 {vr(vn,2)}, v{vz}, s[4:7], {soff} offen sc1")
    a("s_mov_b64 exec, -1")


def decode(a, ps, vid, AD0, t, swave):
    idr = vid + ps
    AD, AD2 = AD0[2*ps], AD0[2*ps+1]
    a("s_lshl_b32 s60, s2, 2")
    a(f"s_add_u32 s60, s60, s{swave}")
    a("s_mul_i32 s60, s60, 170")
    a("s_mov_b32 s61, 197380")
    a("s_mov_b32 s63, 26843546")
    a("s_movk_i32 s69, 96")
    a(f"v_add_u32 v{idr}, s60, v1")
    if ps:
        a(f"v_add_u32 v{idr}, {64*ps}, v{idr}")
    if ps == 2:
        a("s_add_u32 s60, s60, 169")
        a(f"v_min_u32 v{idr}, s60, v{idr}")
    cb, rem, step, it, tile, n, hf, rA, dB, col = t[0], t[1], t[2], t[3], t[4], t[5], t[6], t[7], t[8], t[9]
    a(f"v_mul_hi_u32 v{cb}, v{idr}, s61")
    a(f"v_mul_u32_u24 v{rem}, 21760, v{cb}")
    a(f"v_sub_u32 v{rem}, v{idr}, v{rem}")
    a(f"v_mul_hi_u32 v{step}, v{rem}, s63")
    a(f"v_mul_u32_u24 v{it}, 160, v{step}")
    a(f"v_sub_u32 v{it}, v{rem}, v{it}")
    a(f"v_lshrrev_b32 v{tile}, 6, v{it}")
    a(f"v_cmp_eq_u32 vcc, 2, v{tile}")
    a(f"v_and_b32 v{n}, 31, v{it}")
    a(f"v_bfe_u32 v{hf}, v{it}, 5, 1")
    a(f"v_and_b32 v{rem}, 15, v{it}")
    a(f"v_bfe_u32 v{it}, v{it}, 4, 1")
    a(f"v_cndmask_b32 v{n}, v{n}, v{rem}, vcc")
    a(f"v_cndmask_b32 v{hf}, v{hf}, v{it}, vcc")
    a(f"v_mul_u32_u24 v{col}, 80, v{cb}")
    a(f"v_lshl_add_u32 v{col}, v{tile}, 5, v{col}")
    a(f"v_add_u32 v{col}, v{col}, v{n}")
    a(f"v_lshlrev_b32 v{rA}, 4, v{step}")
    a(f"v_lshl_add_u32 v{rA}, v{hf}, 2, v{rA}")
    a(f"v_mov_b32 v{dB}, 8")
    a(f"v_subrev_u32 v{rem}, 96, v{step}")
    a(f"v_mul_u32_u24 v{it}, 20, v{rem}")
    a(f"v_lshl_add_u32 v{it}, v{hf}, 2, v{it}")
    a(f"v_cmp_le_u32 s[64:65], s69, v{step}")
    a(f"v_cmp_le_u32 vcc, 0x80, v{step}")
    a(f"v_subrev_u32 v{rem}, 128, v{step}")
    a(f"v_cndmask_b32 v{rA}, v{rA}, v{it}, s[64:65]")
    a(f"v_mul_u32_u24 v{it}, 80, v{rem}")
    a(f"v_mul_u32_u24 v{rem}, 40, v{hf}")
    a(f"v_add3_u32 v{it}, v{it}, v{rem}, 16")
    a(f"v_cndmask_b32 v{rA}, v{rA}, v{it}, vcc")
    a(f"v_cndmask_b32 v{dB}, v{dB}, 20, vcc")
    a(f"v_mul_u32_u24 v{rA}, 1280, v{rA}")
    a(f"v_lshl_add_u32 v{rA}, v{col}, 1, v{rA}")
    a(f"v_mul_u32_u24 v{dB}, 1280, v{dB}")
    a(f"v_mov_b32 v{rem}, s36")
    a(f"v_mov_b32 v{it}, s28")
    a(f"v_cndmask_b32 v{rem}, v{rem}, v{it}, s[64:65]")
    a(f"v_mov_b32 v{n}, s37")
    a(f"v_mov_b32 v{it}, s29")
    a(f"v_cndmask_b32 v{n}, v{n}, v{it}, s[64:65]")
    a(f"v_add_co_u32 v{AD}, vcc, v{rem}, v{rA}")
    a("s_nop 1")
    a(f"v_addc_co_u32 v{AD+1}, vcc, 0, v{n}, vcc")
    a(f"v_add_co_u32 v{AD2}, vcc, v{AD}, v{dB}")
    a("s_nop 1")
    a(f"v_addc_co_u32 v{AD2+1}, vcc, 0, v{AD+1}, vcc")


def gen_f(a, name):
    asmlib.SB = 70
    kernel_header(a, name)
    done = f"{name}_done"
    a("s_cmp_ge_u32 s2, 256")
    a(f"s_cbranch_scc1 {done}")
    stamp(a, 0, True)
    stamp(a, 1)
    a("s_load_dwordx16 s[24:39], s[0:1], 0")
    a("s_load_dwordx4 s[40:43], s[0:1], 64")
    a("s_load_dwordx2 s[44:45], s[0:1], 80")
    a("v_lshrrev_b32 v2, 6, v0")
    a("v_and_b32 v1, 63, v0")
    a("s_and_b32 s56, s2, 7")
    a("v_readfirstlane_b32 s3, v2")
    a("s_lshr_b32 s57, s2, 3")
    a("s_and_b32 s58, s57, 7")
    a("s_lshr_b32 s59, s57, 3")
    a("s_and_b32 s60, s56, 1")
    a("s_lshl_b32 s60, s60, 3")
    a("s_add_u32 s46, s60, s58")
    a("s_lshr_b32 s60, s56, 1")
    a("s_lshl_b32 s60, s60, 2")
    a("s_add_u32 s47, s60, s59")
    a("s_lshl_b32 s60, s56, 2")
    a("s_add_u32 s48, s60, s59")
    a("s_mov_b32 s49, s58")
    a("s_and_b32 s60, s56, 3")
    a("s_lshl_b32 s60, s60, 3")
    a("s_add_u32 s50, s60, s58")
    a("s_lshr_b32 s60, s56, 2")
    a("s_lshl_b32 s60, s60, 2")
    a("s_add_u32 s51, s60, s59")
    a("v_and_b32 v2, 31, v1")
    a("v_lshrrev_b32 v3, 5, v1")
    a("s_cmp_ge_u32 s3, 4")
    a(f"s_cbranch_scc0 {name}_A")
    gen_b(a, name)
    a.label(f"{name}_A")
    gen_a(a, name)
    a.label(done)
    a("s_endpgm")


def gen_a(a, name):
    R = Regs(4, ACCUM)
    t = [R.alloc(f"t{i}") for i in range(10)]
    vn = R.alloc("vn", 2, 2)
    vz = R.alloc("vz")
    vl16 = R.alloc("vl16")
    mark = R.mark()
    vxa = R.alloc("vxa", 8)
    vwa = R.alloc("vwa", 4)
    acc = R.alloc("acc", 112, 4)
    X = R.alloc("X", 16, 4)
    W = R.alloc("W", 32, 4)
    a("s_and_b32 s52, s3, 1")
    a("s_lshr_b32 s53, s3, 1")
    a("s_lshl_b32 s60, s52, 6")
    a("s_lshl_b32 s61, s53, 5")
    a("s_add_u32 s60, s60, s61")
    a(f"v_add_u32 v{t[0]}, s60, v2")
    a(f"v_lshrrev_b32 v{t[1]}, 1, v{t[0]}")
    a(f"v_and_b32 v{t[1]}, 7, v{t[1]}")
    a(f"v_xor_b32 v{t[1]}, v{t[1]}, v3")
    a(f"v_lshlrev_b32 v{t[1]}, 4, v{t[1]}")
    a(f"v_lshl_add_u32 v{vxa}, v{t[0]}, 7, v{t[1]}")
    for kk in range(1, 4):
        a(f"v_xor_b32 v{vxa+kk}, {kk << 5}, v{vxa}")
    for kk in range(4):
        a(f"v_xor_b32 v{vxa+4+kk}, 0x1000, v{vxa+kk}")
    a(f"v_bfe_u32 v{t[0]}, v1, 2, 2")
    a(f"v_and_b32 v{t[1]}, 3, v1")
    a(f"v_bfe_u32 v{t[2]}, v1, 4, 1")
    a(f"v_lshlrev_b32 v{t[4]}, 5, v{t[2]}")
    a(f"v_lshl_add_u32 v{t[4]}, v{t[1]}, 3, v{t[4]}")
    a(f"v_lshl_add_u32 v{t[5]}, v3, 3, v{t[0]}")
    a("s_mul_i32 s60, s53, 120")
    a(f"v_lshlrev_b32 v{t[6]}, 8, v{t[5]}")
    a(f"v_add_u32 v{t[6]}, {LQ}, v{t[6]}")
    for tt in range(2):
        a(f"v_add_u32 v{t[7]}, s60, v{t[4]}")
        if tt:
            a(f"v_add_u32 v{t[7]}, 64, v{t[7]}")
        a(f"v_lshrrev_b32 v{t[8]}, 6, v{t[7]}")
        a(f"v_xor_b32 v{t[8]}, v{t[8]}, v{t[0]}")
        a(f"v_and_b32 v{t[7]}, 63, v{t[7]}")
        a(f"v_lshl_add_u32 v{t[7]}, v{t[8]}, 6, v{t[7]}")
        a(f"v_add_u32 v{vwa+tt}, v{t[7]}, v{t[6]}")
    a(f"v_mul_u32_u24 v{t[6]}, 192, v{t[5]}")
    a(f"v_add3_u32 v{t[6]}, v{t[6]}, v{t[4]}, 64")
    a(f"v_add_u32 v{vwa+3}, {L1}, v{t[6]}")
    a("s_lshl_b32 s60, s53, 7")
    a("s_sub_u32 s60, s60, 64")
    a(f"v_add_u32 v{vwa+2}, s60, v{vwa+3}")
    a(f"v_mov_b32 v{vz}, 0")
    a(f"v_lshlrev_b32 v{vl16}, 4, v1")
    a("s_waitcnt lgkmcnt(0)")
    srd(a, 4, 44, WS_BYTES)
    D = acc
    ac = acc + 48
    l12, l3, lj = f"{name}_s12", f"{name}_s3", f"{name}_sj"
    for i in range(8):
        a(f"v_mov_b32 v{ac+i}, 0")
    a("s_cmp_eq_u32 s3, 3")
    a(f"s_cbranch_scc1 {l3}")
    a("s_cmp_lg_u32 s3, 0")
    a(f"s_cbranch_scc1 {l12}")
    srd(a, 8, 24, 2048 * 640 * 2)
    a(f"v_lshrrev_b32 v{t[8]}, 3, v1")
    a(f"v_mul_u32_u24 v{t[0]}, 1280, v{t[8]}")
    a(f"v_and_b32 v{t[1]}, 7, v1")
    a(f"v_lshl_add_u32 v{t[0]}, v{t[1]}, 4, v{t[0]}")
    a("s_lshl_b32 s60, s46, 4")
    a("s_add_u32 s60, s60, s47")
    a("s_mul_i32 s61, s60, 10240")
    for m in range(10):
        a(f"buffer_load_dwordx4 {vr(D + 4*m, 4)}, v{t[0]}, s[8:11], s61 offen offset:{m*128}")
    for m in range(40):
        if m % 4 == 0:
            a(f"s_waitcnt vmcnt({9 - m//4})")
        a(f"v_lshlrev_b32 v{t[0]}, 16, v{D+m}")
        a(f"v_and_b32 v{t[1]}, 0xffff0000, v{D+m}")
        a(f"v_add_f32 v{ac}, v{ac}, v{t[0]}")
        a(f"v_add_f32 v{ac+1}, v{ac+1}, v{t[1]}")
        a(f"v_fmac_f32 v{ac+2}, v{t[0]}, v{t[0]}")
        a(f"v_fmac_f32 v{ac+3}, v{t[1]}, v{t[1]}")
    sm, sq = ac, ac + 2
    a(f"v_add_f32 v{sm}, v{ac}, v{ac+1}")
    a(f"v_add_f32 v{sq}, v{ac+2}, v{ac+3}")
    for mod in ("quad_perm:[1,0,3,2]", "quad_perm:[2,3,0,1]", "row_half_mirror"):
        a("s_nop 1")
        a(f"v_add_f32_dpp v{t[0]}, v{sm}, v{sm} {mod} row_mask:0xf bank_mask:0xf")
        a(f"v_add_f32_dpp v{t[1]}, v{sq}, v{sq} {mod} row_mask:0xf bank_mask:0xf")
        a(f"v_mov_b32 v{sm}, v{t[0]}")
        a(f"v_mov_b32 v{sq}, v{t[1]}")
    mean, var, mbf, s1, r1, m2, s2, tmp_ = t[0], t[1], t[2], t[3], t[4], t[5], t[6], t[7]
    o = ac + 4
    a(f"s_mov_b32 s60, {hexf(1.0/640)}")
    a(f"s_mov_b32 s61, {hexf(EPS)}")
    a(f"v_mul_f32 v{mean}, s60, v{sm}")
    a(f"v_mul_f32 v{var}, s60, v{sq}")
    a(f"v_fma_f32 v{var}, -v{mean}, v{mean}, v{var}")
    a(f"v_max_f32 v{var}, 0, v{var}")
    rbf(a, mbf, mean)
    rbf(a, tmp_, var)
    a(f"v_add_f32 v{tmp_}, s61, v{tmp_}")
    rbf(a, tmp_, tmp_)
    a(f"v_sqrt_f32 v{tmp_}, v{tmp_}")
    a("s_nop 0")
    rbf(a, s1, tmp_)
    a(f"v_rcp_f32 v{r1}, v{s1}")
    a(f"v_sub_f32 v{o}, 0, v{mbf}")
    a(f"v_mov_b32 v{o+1}, v{r1}")
    a(f"v_sub_f32 v{tmp_}, v{mean}, v{mbf}")
    a(f"v_mul_f32 v{tmp_}, v{tmp_}, v{r1}")
    rbf(a, m2, tmp_)
    a(f"v_mul_f32 v{tmp_}, v{var}, v{r1}")
    a(f"v_mul_f32 v{tmp_}, v{tmp_}, v{r1}")
    rbf(a, tmp_, tmp_)
    a(f"v_add_f32 v{tmp_}, s61, v{tmp_}")
    rbf(a, tmp_, tmp_)
    a(f"v_sqrt_f32 v{tmp_}, v{tmp_}")
    a("s_nop 0")
    rbf(a, s2, tmp_)
    a(f"v_mul_f32 v{tmp_}, v{s1}, v{s2}")
    a(f"v_rcp_f32 v{o+2}, v{tmp_}")
    a(f"v_fma_f32 v{tmp_}, v{m2}, v{s1}, v{mbf}")
    a(f"v_mul_f32 v{o+3}, v{tmp_}, v{o+2}")
    a(f"v_sub_f32 v{o+3}, 0, v{o+3}")
    a(f"v_lshlrev_b32 v{t[8]}, 4, v{t[8]}")
    a(f"v_add_u32 v{t[8]}, {LPUB}, v{t[8]}")
    a(f"ds_write_b128 v{t[8]}, {vr(o,4)}")
    a(f"s_branch {lj}")
    a.label(l12)
    lq, lq2 = f"{name}_sq", f"{name}_sq2"
    a("s_cmp_eq_u32 s3, 1")
    a(f"s_cbranch_scc1 {lq}")
    srd(a, 8, 32, 640 * 1536 * 2)
    a("s_movk_i32 s62, 3072")
    a("s_mul_i32 s60, s47, 192")
    a(f"s_branch {lq2}")
    a.label(lq)
    srd(a, 8, 26, 640 * 1920 * 2)
    a("s_movk_i32 s62, 3840")
    a("s_mul_i32 s60, s47, 240")
    a.label(lq2)
    a("s_mul_i32 s61, s46, 40")
    a("s_mul_i32 s61, s61, s62")
    a("s_add_u32 s61, s61, s60")
    a(f"v_lshrrev_b32 v{t[8]}, 4, v1")
    a(f"v_mul_lo_u32 v{t[0]}, v{t[8]}, s62")
    a(f"v_and_b32 v{t[9]}, 15, v1")
    a(f"v_lshl_add_u32 v{t[0]}, v{t[9]}, 4, v{t[0]}")
    a("s_lshl_b32 s62, s62, 2")
    for m in range(10):
        a(f"buffer_load_dwordx4 {vr(D + 4*m, 4)}, v{t[0]}, s[8:11], s61 offen")
        if m < 9:
            a("s_add_u32 s61, s61, s62")
    for m in range(40):
        if m % 4 == 0:
            a(f"s_waitcnt vmcnt({9 - m//4})")
        a(f"v_lshlrev_b32 v{t[0]}, 16, v{D+m}")
        a(f"v_and_b32 v{t[1]}, 0xffff0000, v{D+m}")
        a(f"v_add_f32 v{ac + 2*(m%4)}, v{ac + 2*(m%4)}, v{t[0]}")
        a(f"v_add_f32 v{ac + 2*(m%4) + 1}, v{ac + 2*(m%4) + 1}, v{t[1]}")
    a("s_lshl_b32 s60, s3, 11")
    a(f"s_add_u32 s60, s60, {LPUB + 128 - 2048}")
    a(f"v_lshl_add_u32 v{t[8]}, v1, 5, s60")
    a(f"ds_write_b128 v{t[8]}, {vr(ac,4)}")
    a(f"ds_write_b128 v{t[8]}, {vr(ac+4,4)} offset:16")
    a(f"s_branch {lj}")
    a.label(l3)
    srd(a, 8, 34, 1536 * 2)
    a("s_mul_i32 s60, s47, 192")
    a(f"v_lshlrev_b32 v{t[0]}, 2, v1")
    a(f"buffer_load_dword v{D}, v{t[0]}, s[8:11], s60 offen")
    a(f"v_lshlrev_b32 v{t[0]}, 3, v1")
    a(f"v_add_u32 v{t[0]}, {LB1}, v{t[0]}")
    a(f"v_mov_b32 v{t[1]}, {LFLAG}")
    a(f"ds_write_b32 v{t[1]}, v{vz}")
    a("s_waitcnt vmcnt(0)")
    a(f"v_lshlrev_b32 v{ac}, 16, v{D}")
    a(f"v_and_b32 v{ac+1}, 0xffff0000, v{D}")
    a(f"ds_write_b64 v{t[0]}, {vr(ac,2)}")
    a.label(lj)
    a("s_waitcnt lgkmcnt(0)")
    for i in range(112):
        a(f"v_mov_b32 v{acc+i}, 0")
    a("s_movk_i32 s63, 16384")
    a("s_movk_i32 s65, 12288")

    def reads(kk):
        p = kk % 2
        for rt in range(2):
            a(f"ds_read_b128 {vr(X + p*8 + rt*4, 4)}, v{vxa + rt*4 + kk}")
        for tt in range(4):
            ks, hs = (4096, 1024) if tt < 2 else (3072, 768)
            for h in range(2):
                a(f"ds_read_b64_tr_b16 {vr(W + p*16 + tt*4 + h*2, 2)}, v{vwa+tt} offset:{kk*ks + h*hs}")

    def mf(p, k):
        tt, rt = (k // 2, k % 2) if k < 6 else (3, 0)
        c = acc + k * 16
        a(f"v_mfma_f32_32x32x16_bf16 {vr(c,16)}, {vr(W + p*16 + tt*4, 4)}, {vr(X + p*8 + rt*4, 4)}, {vr(c,16)}")

    a("s_mov_b32 s60, 0")
    a("s_mov_b32 s61, 0")
    a("s_mov_b32 s69, 0")
    a("s_barrier")
    stamp(a, 2)
    if asmlib.STAMP: a("s_waitcnt lgkmcnt(0)")
    reads(0)
    a("s_waitcnt lgkmcnt(0)")
    def read_ops(kk):
        p = kk % 2
        def xr(rt): return f"ds_read_b128 {vr(X + p*8 + rt*4, 4)}, v{vxa + rt*4 + kk}"
        def wr(tt, h):
            ks, hs = (4096, 1024) if tt < 2 else (3072, 768)
            return f"ds_read_b64_tr_b16 {vr(W + p*16 + tt*4 + h*2, 2)}, v{vwa+tt} offset:{kk*ks + h*hs}"
        return [xr(0), wr(0, 0), wr(0, 1), xr(1), wr(1, 0), wr(1, 1), wr(2, 0), wr(2, 1), wr(3, 0), wr(3, 1)]

    def stage(extra):
        for kk in range(4):
            p = kk % 2
            ops = read_ops((kk + 1) % 4)
            waits = {0: 7, 1: 8, 2: 8, 4: 10, 6: 10}
            if kk == 3:
                waits = {}
                a("s_waitcnt lgkmcnt(0)")
                skip = a.uid(f"{name}_a1last")
                if not extra:
                    a("s_cmp_eq_u32 s60, 9")
                    a(f"s_cbranch_scc1 {skip}")
                if X_P1:
                    a("s_memtime s[66:67]")
                    a("s_waitcnt lgkmcnt(0)")
                    a("s_sub_u32 s69, s69, s66")
                a("s_barrier")
                if X_P1:
                    a("s_memtime s[66:67]")
                    a("s_waitcnt lgkmcnt(0)")
                    a("s_add_u32 s69, s69, s66")
                a.label(skip)
            for k in range(7):
                if k in waits:
                    a(f"s_waitcnt lgkmcnt({waits[k]})")
                mf(p, k)
                if extra and kk * 7 + k < len(extra):
                    a(extra[kk * 7 + k])
                if k < 5:
                    a(ops[2*k])
                    a(ops[2*k+1])
                if kk == 2 and k == 4:
                    a("s_add_u32 s61, s61, 1")
                    a("s_cmp_eq_u32 s61, 3")
                    a("s_cselect_b32 s61, 0, s61")
                    a(f"s_cselect_b32 s62, {(-2*16384) & 0xffffffff:#x}, s63")
                    a(f"s_cselect_b32 s64, {(-2*12288) & 0xffffffff:#x}, s65")
                if kk == 2 and k == 5:
                    for r in range(vxa, vxa + 6):
                        a(f"v_add_u32 v{r}, s62, v{r}")
                if kk == 2 and k == 6:
                    for r in range(vxa + 6, vxa + 10):
                        a(f"v_add_u32 v{r}, s62, v{r}")
                    for r in (vwa + 2, vwa + 3):
                        a(f"v_add_u32 v{r}, s64, v{r}")

    loop = f"{name}_a1"
    a.raw(".p2align 6")
    a.label(loop)
    stage(None)
    a("s_add_u32 s60, s60, 1")
    a("s_cmp_lt_u32 s60, 10")
    a(f"s_cbranch_scc1 {loop}")
    assert vwa == vxa + 8
    a("s_waitcnt vmcnt(0) lgkmcnt(0)")
    stamp(a, 3)
    st = X
    rs = X + 8
    csr = W
    pk = vxa
    tmp = vxa + 4
    assert vxa % 2 == 0
    assert acc == vwa + 6
    sa = [vwa + 4, vwa + 5, t[7], t[8]]
    a("s_lshl_b32 s60, s52, 10")
    a("s_lshl_b32 s61, s53, 9")
    a("s_add_u32 s60, s60, s61")
    a(f"s_add_u32 s60, s60, {LSTAT}")
    a(f"v_lshl_add_u32 v{t[0]}, v2, 4, s60")
    a(f"v_xor_b32 v{t[9]}, 0x200, v{t[0]}")
    assert LSTAT % 1024 == 0
    a("s_mul_i32 s60, s53, 240")
    a(f"s_add_u32 s60, s60, {LCS}")
    a(f"v_lshl_add_u32 v{t[1]}, v3, 4, s60")
    a("s_mul_i32 s54, s47, 6")
    a("s_mul_i32 s60, s53, 3")
    a("s_add_u32 s54, s54, s60")
    a(f"s_mov_b32 s60, {hexf(QSCALE)}")
    for g in range(3):
        a(f"s_add_u32 s61, s54, {g}")
        a("s_cmp_lt_u32 s61, 32")
        a(f"s_cselect_b32 s{62+g}, s60, 1.0")
    a("s_mul_i32 s60, s3, 12288")
    a("s_mul_i32 s61, s53, 1536")
    a(f"v_mul_u32_u24 v{t[2]}, 48, v2")
    a(f"v_add_u32 v{t[2]}, s60, v{t[2]}")
    a(f"v_mul_u32_u24 v{t[3]}, 3040, v3")
    a(f"v_add_u32 v{t[4]}, s61, v{t[2]}")
    a(f"v_subrev_u32 v{t[2]}, s61, v{t[2]}")
    a(f"v_add_u32 v{t[2]}, 1536, v{t[2]}")
    a(f"v_lshl_add_u32 v{sa[0]}, v3, 3, v{t[4]}")
    a(f"v_add_u32 v{sa[1]}, v{t[3]}, v{t[4]}")
    a(f"v_lshl_add_u32 v{sa[2]}, v3, 3, v{t[2]}")
    a(f"v_add_u32 v{sa[3]}, v{t[3]}, v{t[2]}")
    a(f"v_mul_u32_u24 v{t[2]}, 48, v1")
    a(f"v_add_u32 v{t[2]}, s60, v{t[2]}")
    a(f"v_lshl_add_u32 v{t[3]}, v1, 4, s60")
    a(f"v_bfe_u32 v{t[5]}, v1, 2, 2")
    a(f"v_lshl_add_u32 v{t[5]}, v3, 3, v{t[5]}")
    a(f"v_mul_u32_u24 v{t[5]}, 48, v{t[5]}")
    a(f"v_bfe_u32 v{t[6]}, v1, 4, 1")
    a(f"v_lshl_add_u32 v{t[5]}, v{t[6]}, 5, v{t[5]}")
    a(f"v_and_b32 v{t[6]}, 3, v1")
    a(f"v_lshl_add_u32 v{t[5]}, v{t[6]}, 3, v{t[5]}")
    a(f"v_add_u32 v{t[5]}, s60, v{t[5]}")
    a("s_lshl_b32 s55, s46, 1")
    a("s_add_u32 s55, s55, s52")
    a("v_cmp_eq_u32 vcc, 1, v3")
    a("v_cmp_gt_u32 s[66:67], 21, v2")
    a(f"v_mov_b32 v{pk}, 0x3f803f80")
    a(f"v_mov_b32 v{pk+1}, 0x3f80")
    a(f"v_mov_b32 v{t[6]}, {LNONCE}")
    a("s_barrier")
    stamp(a, 4)
    if X_P1:
        a("s_waitcnt lgkmcnt(0)")
        a(f"s_add_u32 s{asmlib.SB+8}, s{asmlib.SB+2}, s69")
    a(f"ds_read_b128 {vr(st,4)}, v{t[0]}")
    a(f"ds_read_b128 {vr(st+4,4)}, v{t[9]}")
    for tp in range(2):
        for q in range(4):
            a(f"ds_read_b128 {vr(csr + tp*16 + q*4, 4)}, v{t[1]} offset:{tp*128 + q*32}")
    a(f"ds_read_b64 {vr(vn,2)}, v{t[6]}")
    for g in range(3):
        a(f"ds_write_b64 v{t[2]}, {vr(pk,2)} offset:{g*3072 + 40}")
    a("s_waitcnt lgkmcnt(12)" if not asmlib.STAMP else "s_waitcnt lgkmcnt(0)")
    for rt in range(2):
        for g in range(3):
            a(f"v_mul_f32 v{rs + rt*4 + g}, s{62+g}, v{st + rt*4 + 1}")
        a(f"v_cndmask_b32 v{rs + rt*4 + 3}, v{rs + rt*4}, v{rs + rt*4 + 1}, vcc")
    a("s_waitcnt lgkmcnt(3)")
    for tp in range(2):
        for rt in range(2):
            c = acc + (tp * 2 + rt) * 16
            for q in range(4):
                pc0 = 8 * tp + 2 * q
                g, d4 = pc0 // 5, pc0 % 5
                wrap = d4 == 4
                rsel = rs + rt * 4 + (3 if (wrap and g == 0) else g)
                rp, rsl = rsel & ~1, rsel & 1
                tb = tmp + (q % 2) * 4
                for i in range(2):
                    a(f"v_pk_fma_f32 {vr(tb+2*i,2)}, {vr(st + rt*4,2)}, {vr(csr + tp*16 + q*4 + 2*i,2)}, {vr(c + q*4 + 2*i,2)} op_sel_hi:[0,1,1]")
                for i in range(2):
                    a(f"v_pk_mul_f32 {vr(tb+2*i,2)}, {vr(tb+2*i,2)}, {vr(rp,2)} op_sel:[0,{rsl}] op_sel_hi:[1,{rsl}]")
                pb = pk + (q % 2) * 2
                a(f"v_cvt_pk_bf16_f32 v{pb}, v{tb}, v{tb+1}")
                a(f"v_cvt_pk_bf16_f32 v{pb+1}, v{tb+2}, v{tb+3}")
                a(f"ds_write_b64 v{sa[rt*2 + (1 if wrap else 0)]}, {vr(pb,2)} offset:{g*3072 + d4*8}")
    b1r = csr + 16

    def cb_reads(tsel):
        if tsel == 0:
            a("s_lshl_b32 s61, s53, 8")
        else:
            a("s_movk_i32 s61, 128")
        a(f"v_lshl_add_u32 v{t[8]}, v3, 4, s61")
        a(f"v_add_u32 v{t[9]}, {LCS + 512}, v{t[8]}")
        a(f"v_add_u32 v{t[8]}, {LB1}, v{t[8]}")
        for q in range(4):
            a(f"ds_read_b128 {vr(csr + q*4, 4)}, v{t[9]} offset:{q*32}")
            a(f"ds_read_b128 {vr(b1r + q*4, 4)}, v{t[8]} offset:{q*32}")

    a("s_waitcnt lgkmcnt(0)")
    for g in range(3):
        lv = f"{name}_v{g}"
        le = f"{name}_ve{g}"
        a(f"s_add_u32 s61, s54, {g}")
        a("s_cmp_ge_u32 s61, 64")
        a(f"s_cbranch_scc1 {lv}")
        for e in range(3):
            a(f"ds_read_b128 {vr(acc + g*16 + e*4, 4)}, v{t[3]} offset:{g*3072 + e*1024}")
        a("s_mul_i32 s60, s61, 98304")
        a("s_mul_i32 s61, s55, 3072")
        a("s_add_u32 s60, s60, s61")
        for e in range(3):
            a(f"s_waitcnt lgkmcnt({2-e})")
            a(f"buffer_store_dwordx4 {vr(acc + g*16 + e*4, 4)}, v{vl16}, s[4:7], s60 offen offset:{e*1024} sc1")
        a(f"s_branch {le}")
        a.label(lv)
        for e in range(4):
            for h in range(2):
                a(f"ds_read_b64_tr_b16 {vr(acc + g*16 + e*4 + h*2, 2)}, v{t[5]} offset:{g*3072 + e*768 + h*192}")
        a("s_sub_u32 s60, s61, 64")
        a("s_lshl_b32 s60, s60, 17")
        a("s_lshl_b32 s61, s55, 12")
        a("s_add_u32 s60, s60, s61")
        a(f"s_add_u32 s60, s60, {WS_VT}")
        a("s_mov_b64 exec, s[66:67]")
        for e in range(4):
            a(f"s_waitcnt lgkmcnt({6-2*e})")
            a(f"buffer_store_dwordx4 {vr(acc + g*16 + e*4, 4)}, v{vl16}, s[4:7], s60 offen offset:{e*1024} sc1")
        a("s_mov_b64 exec, -1")
        a.label(le)
    stamp(a, 5)
    cb_reads(0)
    u = acc + 48
    kc = t[0] if t[0] % 2 == 0 else t[1]
    assert kc + 1 in t
    k0 = -2.0 * math.log2(math.e) * math.sqrt(2.0 / math.pi)
    k1 = k0 * 0.044715
    a(f"v_mov_b32 v{kc}, {hexf(k1)}")
    a(f"v_mov_b32 v{kc+1}, {hexf(k0)}")
    a("s_mul_i32 s60, s3, 10240")
    a(f"s_add_u32 s60, s60, {LH}")
    a(f"v_add_u32 v{t[2]}, s60, v{vl16}")
    a("s_lshl_b32 s60, s47, 4")
    a("s_add_u32 s60, s60, s46")
    a("s_lshl_b32 s60, s60, 2")
    a("s_add_u32 s60, s60, s3")
    a("s_lshl_b32 s60, s60, 3")
    a(f"s_add_u32 s58, s60, {WS_FQ}")
    for k, (tile, rt) in enumerate(((4, 0), (5, 1), (6, 0))):
        c = acc + tile * 16
        sp = st + rt * 4 + 2
        if k != 1:
            a("s_waitcnt lgkmcnt(0)")
        for i in range(8):
            a(f"v_pk_fma_f32 {vr(u+2*i,2)}, {vr(sp,2)}, {vr(csr+2*i,2)}, {vr(b1r+2*i,2)} op_sel:[1,0,0] op_sel_hi:[1,1,1]")
        if k == 1:
            cb_reads(1)
        for i in range(8):
            a(f"v_pk_fma_f32 {vr(u+2*i,2)}, {vr(c+2*i,2)}, {vr(sp,2)}, {vr(u+2*i,2)} op_sel_hi:[1,0,1]")
        wv = c
        for i in range(8):
            a(f"v_pk_mul_f32 {vr(wv+2*i,2)}, {vr(u+2*i,2)}, {vr(u+2*i,2)}")
        for i in range(8):
            a(f"v_pk_fma_f32 {vr(wv+2*i,2)}, {vr(wv+2*i,2)}, {vr(kc,2)}, {vr(kc,2)} op_sel:[0,0,1] op_sel_hi:[1,0,1]")
        for i in range(8):
            a(f"v_pk_mul_f32 {vr(wv+2*i,2)}, {vr(wv+2*i,2)}, {vr(u+2*i,2)}")
        for i in range(16):
            a(f"v_exp_f32 v{wv+i}, v{wv+i}")
        if k == 1:
            a("s_waitcnt vmcnt(0)")
            put_flag(a, "s58", vz, vn)
            stamp(a, 6)
        for i in range(8):
            a(f"v_pk_add_f32 {vr(wv+2*i,2)}, {vr(wv+2*i,2)}, 1.0 op_sel_hi:[1,0]")
        for i in range(16):
            a(f"v_rcp_f32 v{wv+i}, v{wv+i}")
        for i in range(8):
            a(f"v_pk_mul_f32 {vr(u+2*i,2)}, {vr(u+2*i,2)}, {vr(wv+2*i,2)}")
        for i in range(8):
            a(f"v_cvt_pk_bf16_f32 v{wv+i}, v{u+2*i}, v{u+2*i+1}")
        a(f"ds_write_b128 v{t[2]}, {vr(wv,4)} offset:{k*2048}")
        a(f"ds_write_b128 v{t[2]}, {vr(wv+4,4)} offset:{k*2048 + 1024}")
    stamp(a, 7)
    R.release(mark)
    vk1 = R.alloc("vk1")
    vk2 = R.alloc("vk2")
    vvv = R.alloc("vvv")
    vq1 = R.alloc("vq1")
    vq2 = R.alloc("vq2")
    vmx = R.alloc("vmx", 2, 2)
    pk2 = R.alloc("pk2", 4, 2)
    S = R.alloc("S", 32, 4)
    P = R.alloc("P", 16, 4)
    K = R.alloc("K", 32, 4)
    V = R.alloc("V", 32, 4)
    Q = R.alloc("Q", 32, 4)
    AO = 0
    a(f"v_mul_u32_u24 v{t[0]}, 48, v2")
    a(f"v_lshl_add_u32 v{vq1}, v3, 4, v{t[0]}")
    a(f"v_lshlrev_b32 v{t[1]}, 30, v3")
    a(f"v_add3_u32 v{vq2}, v{t[0]}, v{t[1]}, 32")
    a(f"v_and_b32 v{t[2]}, 0x13, v2")
    a(f"v_bfe_u32 v{t[3]}, v2, 2, 1")
    a(f"v_lshl_or_b32 v{t[2]}, v{t[3]}, 3, v{t[2]}")
    a(f"v_bfe_u32 v{t[3]}, v2, 3, 1")
    a(f"v_lshl_or_b32 v{t[2]}, v{t[3]}, 2, v{t[2]}")
    a(f"v_mul_u32_u24 v{t[2]}, 48, v{t[2]}")
    a(f"v_lshl_add_u32 v{vk1}, v3, 4, v{t[2]}")
    a(f"v_add3_u32 v{vk2}, v{t[2]}, v{t[1]}, 32")
    a("v_cmp_lt_u32 vcc, 20, v2")
    a(f"v_mov_b32 v{t[3]}, 0x40000000")
    a("v_cmp_eq_u32 s[56:57], 0, v3")
    a(f"v_cndmask_b32 v{t[3]}, 0, v{t[3]}, vcc")
    a(f"v_add_u32 v{vvv}, v{t[3]}, v{vl16}")
    def gword(dst, add):
        a(f"s_add_u32 s60, s48, {add}")
        a("s_mul_i32 s61, s60, 43")
        a("s_lshr_b32 s61, s61, 8")
        a("s_mul_i32 s62, s61, 6")
        a("s_sub_u32 s62, s60, s62")
        a("s_cmp_ge_u32 s62, 3")
        a("s_cselect_b32 s62, 16, 0")
        a("s_lshl_b32 s61, s61, 9")
        a(f"s_add_u32 s{dst}, s61, s62")
    gword(63, 32)
    gword(64, 64)
    gword(65, 0)
    a(f"v_lshrrev_b32 v{t[4]}, 1, v2")
    a(f"v_lshlrev_b32 v{t[4]}, 5, v{t[4]}")
    a(f"v_and_b32 v{t[5]}, 1, v2")
    a(f"v_lshl_add_u32 v{t[4]}, v{t[5]}, 3, v{t[4]}")
    a(f"v_mov_b32 v{t[5]}, s63")
    a(f"v_mov_b32 v{t[6]}, s64")
    a(f"v_cndmask_b32 v{t[5]}, v{t[6]}, v{t[5]}, s[56:57]")
    a(f"v_add_u32 v{t[5]}, v{t[5]}, v{t[4]}")
    a(f"v_add_u32 v{t[4]}, s65, v{t[4]}")
    a(f"s_mul_i32 s60, s48, {GSTRIDE}")
    a(f"s_add_u32 s54, s60, {WS_QK + 32*GSTRIDE}")
    a("s_lshl_b32 s61, s49, 1")
    a("s_add_u32 s61, s61, s52")
    a("s_mul_i32 s61, s61, 6144")
    a("s_add_u32 s55, s60, s61")
    a("s_mul_i32 s61, s53, 49152")
    a("s_add_u32 s62, s54, s61")
    a("s_lshl_b32 s60, s48, 17")
    a("s_lshl_b32 s61, s53, 16")
    a("s_add_u32 s63, s60, s61")
    a(f"s_add_u32 s63, s63, {WS_VT}")
    for i in range(64):
        a(f"v_accvgpr_write_b32 a{AO+i}, 0")
    for qt in range(4):
        a(f"v_mov_b32 v{Q+qt*8+6}, 0")
        a(f"v_mov_b32 v{Q+qt*8+7}, 0")
    a(f"v_mov_b32 v{t[6]}, {LFLAG}")
    stamp(a, 8)
    a(f"s_mov_b32 s61, {WS_FQ}")
    poll(a, name + "_fq", t[5], "s61", pk2, vr(vn, 2), extra=t[4])
    stamp(a, 9)
    a("s_mov_b32 s58, 1")
    a("s_waitcnt vmcnt(0)")

    def kload(buf, soff, off=0, SC=" sc1"):
        a(f"buffer_load_dwordx4 {vr(K + buf*8, 4)}, v{vk1}, s[4:7], {soff} offen offset:{off}{SC}")
        a(f"buffer_load_dwordx4 {vr(K + buf*8 + 4, 4)}, v{vk2}, s[4:7], {soff} offen offset:{off}{SC}")

    def vload(buf, soff, off=0, SC=" sc1"):
        a(f"buffer_load_dwordx4 {vr(V + buf*8, 4)}, v{vvv}, s[4:7], {soff} offen offset:{off}{SC}")
        a(f"buffer_load_dwordx4 {vr(V + buf*8 + 4, 4)}, v{vvv}, s[4:7], {soff} offen offset:{off + 1024}{SC}")

    def qk(dst, kbuf, qt, part):
        c = "0" if part == 0 else vr(dst, 16)
        a(f"v_mfma_f32_32x32x16_bf16 {vr(dst,16)}, {vr(K + kbuf*8 + part*4, 4)}, {vr(Q + qt*8 + part*4, 4)}, {c}")

    def pv(qt, pb, vbuf, part):
        a(f"v_mfma_f32_32x32x16_bf16 {ar(AO + qt*16,16)}, {vr(V + vbuf*8 + part*4, 4)}, {vr(P + pb*8 + part*4, 4)}, {ar(AO + qt*16,16)}")

    def first_loads():
        kload(0, "s62")
        vload(0, "s63")
        kload(1, "s62", 1536)
        vload(1, "s63", 2048)
        a("s_add_u32 s64, s62, 3072")
        a("s_add_u32 s65, s63, 4096")
        kload(2, "s64")
        vload(2, "s65")

    for i in range(4):
        a("s_lshl_b32 s60, s53, 1")
        a(f"s_add_u32 s60, s60, {i}")
        a("s_and_b32 s60, s60, 3")
        a("s_mul_i32 s60, s60, 1536")
        a("s_add_u32 s60, s60, s55")
        a(f"buffer_load_dwordx4 {vr(Q + i*8, 4)}, v{vq1}, s[4:7], s60 offen sc1")
        a(f"buffer_load_dwordx2 {vr(Q + i*8 + 4, 2)}, v{vq2}, s[4:7], s60 offen sc1")
        if i == 0:
            kload(0, "s62")
    vload(0, "s63")
    kload(1, "s62", 1536)
    vload(1, "s63", 2048)
    a("s_add_u32 s64, s62, 3072")
    a("s_add_u32 s65, s63, 4096")
    kload(2, "s64")
    vload(2, "s65")
    first = f"{name}_first"
    a("s_waitcnt vmcnt(8) lgkmcnt(0)")
    a("s_barrier")
    a(f"s_branch {first}")
    restart = f"{name}_restart"
    a.label(restart)
    for i in range(64):
        a(f"v_accvgpr_write_b32 a{AO+i}, 0")
    a(f"v_mov_b32 v{vmx}, 0xff800000")
    a(f"v_mov_b32 v{vmx+1}, 0xff800000")
    a("s_mov_b32 s60, s54")
    a("s_mov_b32 s61, s58")
    a("s_lshl_b32 s64, s52, 12")
    a("s_lshl_b32 s65, s53, 10")
    a("s_add_u32 s64, s64, s65")
    a(f"s_add_u32 s64, s64, {LM}")
    a(f"v_lshl_add_u32 v{t[4]}, v1, 3, s64")
    mx = f"{name}_mx"
    a.label(mx)
    kload(3, "s60")
    a("s_waitcnt vmcnt(0)")
    for qt in range(2):
        qk(S + qt*16, 3, qt, 0)
        qk(S + qt*16, 3, qt, 1)
    a("s_nop 7")
    a("s_add_u32 s60, s60, 1536")
    a("s_sub_u32 s61, s61, 1")
    for qt in range(2):
        for i in range(8):
            a(f"v_max3_f32 v{vmx+qt}, v{S+qt*16+2*i}, v{S+qt*16+2*i+1}, v{vmx+qt}")
    a("s_cmp_lg_u32 s61, 0")
    a(f"s_cbranch_scc1 {mx}")
    for qt in range(2):
        m = vmx + qt
        a(f"v_mov_b32 v{t[2]}, v{m}")
        a(f"v_mov_b32 v{t[3]}, v{m}")
        a("s_nop 1")
        a(f"v_permlane32_swap_b32 v{t[2]}, v{t[3]}")
        a("s_nop 1")
        a(f"v_max_f32 v{m}, v{t[2]}, v{t[3]}")
        a(f"v_sub_f32 v{m}, 0, v{m}")
        a(f"v_and_b32 v{t[2]}, 0xffff0000, v{m}")
        a(f"v_sub_f32 v{m}, v{m}, v{t[2]}")
        a(f"v_and_b32 v{t[3]}, 0xffff0000, v{m}")
        a(f"v_sub_f32 v{m}, v{m}, v{t[3]}")
        a(f"v_lshrrev_b32 v{t[2]}, 16, v{t[2]}")
        a(f"v_or_b32 v{t[2]}, v{t[2]}, v{t[3]}")
        a(f"v_lshrrev_b32 v{t[3]}, 16, v{m}")
        a(f"v_cndmask_b32 v{pk2}, 0, v{t[2]}, s[56:57]")
        a(f"v_cndmask_b32 v{pk2+1}, 0, v{t[3]}, s[56:57]")
        a(f"ds_write_b64 v{t[4]}, {vr(pk2,2)} offset:{qt*512}")
        a(f"ds_write_b64 v{t[4]}, {vr(pk2,2)} offset:{qt*512 + 2048}")
    first_loads()
    a("s_waitcnt lgkmcnt(0)")
    a("s_barrier")
    for i in range(4):
        a(f"ds_read_b64 {vr(Q + i*8 + 6, 2)}, v{t[4]} offset:{i*512}")
    a.label(first)
    for i in range(4):
        a(f"v_mov_b32 v{V+28+i}, 0")
        a(f"v_mov_b32 v{P+12+i}, 0")
    a("s_waitcnt vmcnt(8) lgkmcnt(0)")
    stamp(a, 10)
    qk(S, 0, 0, 0)
    qk(S, 0, 0, 1)
    a("s_add_u32 s64, s62, 4608")
    a("s_add_u32 s65, s63, 6144")
    a("s_mov_b32 s60, 0")
    a("s_nop 6")

    def unit(uu, hooks):
        buf, u = uu // 4, uu % 4
        sb = u % 2
        Xs = S + sb * 16
        Y = S + (1 - sb) * 16
        nq = (u + 1) % 4
        kb = buf if u < 3 else (buf + 1) % 4
        pq = (u - 1) % 4
        pvb = buf if u > 0 else (buf - 1) % 4
        def e(r):
            for i in r: a(f"v_exp_f32 v{Xs+i}, v{Xs+i}")
        def c(r):
            for i in r: a(f"v_cvt_pk_bf16_f32 v{P+sb*8+i}, v{Xs+2*i}, v{Xs+2*i+1}")
        def h(k):
            if k in hooks: hooks[k]()
        h(0)
        qk(Y, kb, nq, 0)
        e(range(4))
        qk(Y, kb, nq, 1)
        e(range(4, 8))
        pv(pq, 1 - sb, pvb, 1)
        h(1)
        c(range(4))
        e(range(8, 12))
        pv(u, sb, buf, 0)
        h(2)
        e(range(12, 16))
        c(range(4, 8))

    loop = f"{name}_loop"
    a.raw(".p2align 6")
    a.label(loop)
    for uu in range(16):
        tl, u = uu // 4, uu % 4
        hk = {}
        if u == 0:
            if not X_NOKV:
                hk[1] = lambda tl=tl: kload((tl + 3) % 4, "s64", (tl % 2) * 1536, "")
                hk[2] = lambda tl=tl: vload((tl + 3) % 4, "s65", (tl % 2) * 2048, "")
        if u == 1 and tl % 2 == 1:
            hk[1] = lambda: a("s_add_u32 s64, s64, 3072")
            hk[2] = lambda: a("s_add_u32 s65, s65, 4096")
        if uu == 1:
            def hw():
                a("s_cmp_eq_u32 s60, 7")
                a("s_cselect_b32 s64, s62, s64")
            hk[1] = hw
            hk[2] = lambda: a("s_cselect_b32 s65, s63, s65")
        if u == 3:
            hk[0] = lambda: a("s_waitcnt vmcnt(8)")
        if uu == 14:
            hk[1] = lambda: a("s_add_u32 s60, s60, 1")
            hk[2] = lambda: a("s_cmp_lt_u32 s60, 8")
        unit(uu, hk)
    a(f"s_cbranch_scc1 {loop}")
    a("s_nop 1")
    pv(3, 1, 3, 1)
    stamp(a, 11)
    a("s_xor_b32 s60, s3, 2")
    a("s_mul_i32 s60, s60, 6144")
    a(f"s_add_u32 s60, s60, {LC}")
    a(f"v_add_u32 v{t[0]}, s60, v{vl16}")
    a("s_mul_i32 s60, s3, 6144")
    a(f"s_add_u32 s60, s60, {LC}")
    a(f"v_add_u32 v{t[3]}, s60, v{vl16}")
    a(f"s_mov_b32 s60, {hexf(2.0**100)}")
    a("s_nop 3")
    for j in range(3):
        a(f"ds_write_b128 v{t[0]}, {ar(AO + 32 + j*4, 4)} offset:{j*1024}")
    for i in range(4):
        a(f"v_accvgpr_read_b32 v{S+i}, a{AO + i*16 + 8}")
    for j in range(3):
        a(f"ds_write_b128 v{t[0]}, {ar(AO + 48 + j*4, 4)} offset:{3072 + j*1024}")
    a(f"v_min_f32 v{S+4}, v{S}, v{S+1}")
    a(f"v_min3_f32 v{S+4}, v{S+4}, v{S+2}, v{S+3}")
    for i in range(1, 4):
        a(f"v_add_f32 v{S}, v{S}, v{S+i}")
    a(f"s_mov_b32 s61, {hexf(2.0**-60)}")
    a(f"v_cmp_nge_f32 vcc, s60, v{S}")
    a(f"v_cmp_nle_f32 s[66:67], s61, v{S+4}")
    a("s_or_b64 vcc, vcc, s[66:67]")
    a("s_andn2_b64 vcc, vcc, s[56:57]")
    nb = f"{name}_notbad"
    if X_NOKV: a("s_branch " + nb)
    a("s_cbranch_vccz " + nb)
    a(f"v_mov_b32 v{t[7]}, 1")
    a(f"ds_write_b32 v{t[6]}, v{t[7]}")
    a.label(nb)
    a("s_lshl_b32 s60, s49, 3")
    a("s_lshl_b32 s61, s52, 2")
    a("s_add_u32 s60, s60, s61")
    a("s_lshl_b32 s61, s53, 1")
    a("s_add_u32 s60, s60, s61")
    a("s_lshr_b32 s66, s60, 1")
    a("s_mul_i32 s60, s60, 40960")
    a(f"s_add_u32 s60, s60, {WS_O}")
    a("s_lshl_b32 s64, s48, 10")
    a("s_add_u32 s64, s64, s60")
    a("s_lshr_b32 s65, s48, 2")
    a("s_add_u32 s65, s65, 32")
    a("s_lshl_b32 s65, s65, 10")
    a("s_add_u32 s65, s65, s60")
    a("s_bfe_u32 s60, s48, 0x10001")
    a("s_lshl_b32 s60, s60, 9")
    a("s_add_u32 s65, s65, s60")
    a("s_and_b32 s60, s48, 1")
    a("s_lshl_b32 s60, s60, 3")
    a("s_add_u32 s65, s65, s60")
    a("s_lshl_b32 s66, s66, 8")
    a("s_lshl_b32 s60, s48, 3")
    a("s_add_u32 s66, s66, s60")
    a(f"s_add_u32 s66, s66, {WS_FO}")
    a("s_waitcnt vmcnt(0)")
    for i in range(24):
        a(f"v_accvgpr_read_b32 v{P + i}, a{AO + (i//12)*16 + i%12}")
    a("s_waitcnt lgkmcnt(0)")
    a("s_barrier")
    a(f"ds_read_b32 v{t[7]}, v{t[6]}")
    for k in range(6):
        a(f"ds_read_b128 {vr(S + k*4, 4)}, v{t[3]} offset:{k*1024}")
    a("s_waitcnt lgkmcnt(6)")
    a(f"v_readfirstlane_b32 s60, v{t[7]}")
    fin = f"{name}_fin"
    a("s_cmp_eq_u32 s60, 0")
    a(f"s_cbranch_scc1 {fin}")
    a("s_cmp_eq_u32 s58, 64")
    a(f"s_cbranch_scc1 {fin}")
    a("s_mov_b32 s58, 64")
    a("s_waitcnt lgkmcnt(0)")
    a("s_barrier")
    a(f"s_branch {restart}")
    a.label(fin)
    a("s_waitcnt lgkmcnt(0)")
    for qt in range(2):
        o = S + qt * 12
        for i in range(6):
            a(f"v_pk_add_f32 {vr(o+2*i,2)}, {vr(o+2*i,2)}, {vr(P + qt*12 + 2*i,2)}")
        a(f"v_rcp_f32 v{t[0]}, v{o+8}")
        a("s_nop 0")
        a(f"v_mov_b32 v{t[1]}, v{t[0]}")
        a("s_nop 1")
        a(f"v_permlane32_swap_b32 v{t[0]}, v{t[1]}")
        a("s_nop 1")
        for i in range(12):
            a(f"v_mul_f32 v{o+i}, v{o+i}, v{t[1]}")
        pq_ = V + qt * 8
        for i in range(6):
            a(f"v_cvt_pk_bf16_f32 v{pq_+i}, v{o+2*i}, v{o+2*i+1}")
        a(f"buffer_store_dwordx4 {vr(pq_,4)}, v{vl16}, s[4:7], s64 offen sc1")
        a("s_mov_b64 exec, s[56:57]")
        a(f"buffer_store_dwordx2 {vr(pq_+4,2)}, v{vl16}, s[4:7], s65 offen sc1")
        a("s_mov_b64 exec, -1")
        if qt == 0:
            a("s_add_u32 s64, s64, 40960")
            a("s_add_u32 s65, s65, 40960")
    a("s_waitcnt vmcnt(0)")
    put_flag(a, "s66", vz, vn)
    stamp(a, 12)
    stamp_flush(a, 13, 4, 0, 4, 5)
    dbg_flush(a, 13, [2, 3, 6, 7, 9, 10, 11], 2, 0, 37, 4, 5)


def gen_b(a, name):
    R = Regs(4, ACCUM)
    t = [R.alloc(f"t{i}") for i in range(14)]
    vn = R.alloc("vn", 2, 2)
    vz = R.alloc("vz")
    vl16 = R.alloc("vl16")
    vl4 = R.alloc("vl4")
    vid = R.alloc("vid", 3)
    AD0 = R.alloc("AD", 12, 2)
    vrr = AD0
    vrc = AD0 + 3
    LA = R.alloc("LA", 5)
    GA = R.alloc("GA", 5)
    BO = R.alloc("BO", 5)
    XB = R.alloc("XB", 20, 2)
    mark = R.mark()
    vx = R.alloc("vx", 4)
    vq = R.alloc("vq", 4)
    v1_ = R.alloc("v1", 3)
    D = R.alloc("D", 44, 4)
    ac = R.alloc("ac", 8, 4)
    E = R.alloc("E", 24, 4)
    XR = R.alloc("XR", 20, 2)
    a("s_setprio 3")
    a("s_sub_u32 s52, s3, 4")
    a(f"v_lshrrev_b32 v{t[0]}, 3, v1")
    a(f"v_mul_u32_u24 v{t[0]}, 1280, v{t[0]}")
    a(f"v_and_b32 v{t[1]}, 7, v1")
    a(f"v_lshl_add_u32 v{t[12]}, v{t[1]}, 4, v{t[0]}")
    a(f"v_lshrrev_b32 v{t[2]}, 4, v1")
    a(f"v_xor_b32 v{t[3]}, v{t[1]}, v{t[2]}")
    a(f"v_xor_b32 v{t[4]}, 4, v{t[3]}")
    for e in range(4):
        a(f"v_lshl_add_u32 v{vx+e}, v{t[3 + (e%2)]}, 4, v{t[0]}")
        if e:
            a(f"v_add_u32 v{vx+e}, {e*(10240-1024)}, v{vx+e}")
    a(f"v_mul_u32_u24 v{t[0]}, 3840, v{t[2]}")
    a(f"v_and_b32 v{t[1]}, 15, v1")
    a(f"v_lshlrev_b32 v{t[3]}, 2, v{t[2]}")
    a(f"v_xor_b32 v{t[1]}, v{t[1]}, v{t[3]}")
    a(f"v_lshl_add_u32 v{vq}, v{t[1]}, 4, v{t[0]}")
    for e in range(1, 4):
        a(f"v_add_u32 v{vq+e}, {e*(4*3840-1024)}, v{vq}")
    for e in range(3):
        a(f"v_add_u32 v{t[0]}, {64*e}, v1")
        a(f"v_mul_u32_u24 v{t[1]}, 43691, v{t[0]}")
        a(f"v_lshrrev_b32 v{t[1]}, 19, v{t[1]}")
        a(f"v_mul_u32_u24 v{t[2]}, 12, v{t[1]}")
        a(f"v_sub_u32 v{t[2]}, v{t[0]}, v{t[2]}")
        a(f"v_mov_b32 v{vrr+e}, v{t[1]}")
        a(f"v_lshlrev_b32 v{vrc+e}, 4, v{t[2]}")
        a(f"v_mul_u32_u24 v{t[1]}, 3072, v{t[1]}")
        a(f"v_lshl_add_u32 v{v1_+e}, v{t[2]}, 4, v{t[1]}")
        if e:
            a(f"v_subrev_u32 v{v1_+e}, {1024*e}, v{v1_+e}")
    a("s_lshl_b32 s60, s46, 2")
    a("s_add_u32 s60, s60, s52")
    a("s_mul_i32 s53, s60, 40960")
    a("s_mul_i32 s54, s52, 61440")
    a("s_mul_i32 s60, s47, 240")
    a("s_add_u32 s54, s54, s60")
    a("s_mul_i32 s55, s52, 49152")
    a("s_mul_i32 s60, s47, 192")
    a("s_add_u32 s55, s55, s60")
    a("s_lshl_b32 s56, s52, 12")
    a("s_mul_i32 s57, s52, 3072")
    a(f"s_add_u32 s57, s57, {L1}")
    a("s_mov_b32 s58, 0")
    a("s_mov_b32 s59, 0")
    a(f"v_mov_b32 v{vz}, 0")
    a(f"v_lshlrev_b32 v{vl16}, 4, v1")
    a(f"v_lshlrev_b32 v{vl4}, 2, v1")
    a("s_waitcnt lgkmcnt(0)")
    srd(a, 8, 24, 2048 * 640 * 2)
    srd(a, 12, 26, 640 * 1920 * 2)
    srd(a, 16, 32, 640 * 1536 * 2)

    def issue():
        a("s_add_u32 m0, s56, s58")
        a("s_nop 0")
        for e in range(4):
            a(f"buffer_load_dwordx4 v{vx+e}, s[8:11], s53 offen offset:{e*1024} lds")
        a(f"s_add_u32 m0, m0, {LQ}")
        a("s_add_u32 s53, s53, 128")
        for e in range(4):
            a(f"buffer_load_dwordx4 v{vq+e}, s[12:15], s54 offen offset:{e*1024} lds")
        a("s_add_u32 m0, s57, s59")
        a("s_add_u32 s54, s54, 245760")
        for e in range(3):
            a(f"buffer_load_dwordx4 v{v1_+e}, s[16:19], s55 offen offset:{e*1024} lds")
        a("s_add_u32 s55, s55, 196608")
        a("s_add_u32 s58, s58, 16384")
        a("s_add_u32 s59, s59, 12288")
        a("s_cmp_eq_u32 s58, 49152")
        a("s_cselect_b32 s58, 0, s58")
        a("s_cselect_b32 s59, 0, s59")

    issue()
    srd(a, 4, 44, WS_BYTES)
    srd(a, 20, 42, 256)
    nn = f"{name}_nononce"
    a("s_lshl_b32 s60, s2, 2")
    a("s_add_u32 s60, s60, s52")
    a("s_cmp_lg_u32 s60, 3")
    a(f"s_cbranch_scc1 {nn}")
    a("s_memrealtime s[60:61]")
    a("s_waitcnt lgkmcnt(0)")
    a("s_or_b32 s60, s60, 1")
    a(f"v_mov_b32 v{vn}, s60")
    a(f"v_mov_b32 v{vn+1}, s61")
    a("s_mov_b64 exec, 1")
    a(f"buffer_store_dwordx2 {vr(vn,2)}, v{vz}, s[20:23], 0 offen sc1")
    a("s_mov_b64 exec, -1")
    a.label(nn)
    issue()

    def get_nonce():
        lp, go = a.uid(name + "_np"), a.uid(name + "_ng")
        a(f"s_mov_b32 s68, {SPIN_MAX}")
        a.label(lp)
        a(f"v_cmp_ne_u32 vcc, 0, v{vn}")
        a(f"s_cbranch_vccnz {go}")
        a("s_sub_u32 s68, s68, 1")
        a("s_cmp_eq_u32 s68, 0")
        a(f"s_cbranch_scc1 {go}")
        a(f"buffer_load_dwordx2 {vr(vn,2)}, v{vz}, s[20:23], 0 offen sc1")
        a("s_waitcnt vmcnt(0)")
        a(f"s_branch {lp}")
        a.label(go)

    def fprep():
        for it in range(5):
            a(f"v_add_u32 v{t[0]}, {it*256 - 256}, v0")
            a(f"v_mul_u32_u24 v{t[1]}, 52429, v{t[0]}")
            a(f"v_lshrrev_b32 v{t[1]}, 20, v{t[1]}")
            a(f"v_mul_u32_u24 v{t[2]}, 20, v{t[1]}")
            a(f"v_sub_u32 v{t[2]}, v{t[0]}, v{t[2]}")
            a(f"v_mul_u32_u24 v{t[3]}, {RS}, v{t[1]}")
            a(f"v_lshl_add_u32 v{LA+it}, v{t[2]}, 4, v{t[3]}")
            a(f"v_mul_u32_u24 v{t[3]}, 1280, v{t[1]}")
            a(f"v_lshl_add_u32 v{GA+it}, v{t[2]}, 3, v{t[3]}")
            a(f"v_lshlrev_b32 v{BO+it}, 3, v{t[2]}")

    fprep()

    def rt_fetch(slot_sgpr_expr, usg):
        lw, lt, lg = a.uid("rtw"), a.uid("rtt"), a.uid("rtg")
        a(f"s_mul_hi_u32 s60, s{usg}, {-(-2**32 // 136)}")
        a("s_mul_i32 s61, s60, 136")
        a(f"s_sub_u32 s61, s{usg}, s61")
        a("s_mul_i32 s60, s60, 160")
        a("s_cmp_ge_u32 s61, 96")
        a(f"s_cbranch_scc1 {lw}")
        srd(a, 64, 36, 1536 * 640 * 2)
        a("s_mul_i32 s61, s61, 20480")
        for e in range(3):
            a(f"v_mov_b32 v{t[e]}, v{vrr+e}")
        a(f"s_branch {lg}")
        a.label(lw)
        srd(a, 64, 28, 640 * 640 * 2)
        a("s_cmp_ge_u32 s61, 128")
        a(f"s_cbranch_scc1 {lt}")
        a("s_sub_u32 s61, s61, 96")
        a("s_mul_i32 s61, s61, 25600")
        for e in range(3):
            a(f"v_mov_b32 v{t[e]}, v{vrr+e}")
        a(f"s_branch {lg}")
        a.label(lt)
        a("s_sub_u32 s61, s61, 128")
        a("s_mul_i32 s61, s61, 102400")
        for e in range(3):
            a(f"v_bfe_u32 v{t[3]}, v{vrr+e}, 2, 1")
            a(f"v_bfe_u32 v{t[4]}, v{vrr+e}, 3, 1")
            a(f"v_lshl_add_u32 v{t[3]}, v{t[3]}, 1, v{t[4]}")
            a(f"v_mul_u32_u24 v{t[3]}, 20, v{t[3]}")
            a(f"v_and_b32 v{t[4]}, 3, v{vrr+e}")
            a(f"v_add3_u32 v{t[e]}, v{t[3]}, v{t[4]}, 16")
        a.label(lg)
        a("s_add_u32 s61, s61, s60")
        a(slot_sgpr_expr)
        for e in range(3):
            a(f"v_mul_u32_u24 v{t[e]}, 1280, v{t[e]}")
            a(f"v_add_u32 v{t[e]}, v{t[e]}, v{vrc+e}")
        for e in range(3):
            a(f"buffer_load_dwordx4 v{t[e]}, s[64:67], s61 offen lds")
            if e < 2:
                a("s_add_u32 m0, m0, 1024")
                a("s_nop 0")

    a("s_waitcnt vmcnt(11)")
    a("s_barrier")
    issue()
    a("s_lshl_b32 s62, s52, 8")
    a("s_add_u32 s62, s62, s2")
    a("s_mul_i32 s69, s52, 3072")
    rt_fetch(f"s_add_u32 m0, s69, {LRT}", 62)
    a("s_add_u32 s63, s62, 1024")
    n2 = f"{name}_no2"
    a("s_cmp_ge_u32 s62, 64")
    a(f"s_cbranch_scc1 {n2}")
    rt_fetch(f"s_mov_b32 m0, {LRT + 4*3072}", 63)
    a.label(n2)
    a(f"buffer_load_dwordx2 {vr(vn,2)}, v{vz}, s[20:23], 0 offen sc1")
    srd(a, 64, 38, 640 * 2)
    a("s_mul_i32 s60, s50, 81920")
    a("s_mul_i32 s61, s51, 160")
    a("s_add_u32 s60, s60, s61")
    for it in range(5):
        a(f"buffer_load_dwordx2 {vr(XR+4*it,2)}, v{GA+it}, s[8:11], s60 offen")
        a(f"buffer_load_dwordx2 {vr(XR+4*it+2,2)}, v{BO+it}, s[64:67], s61 offen")
    nl = 3 + 1 + 10
    a(f"v_lshlrev_b32 v{t[8]}, 3, v1")

    def by_role(f0, f12, f3):
        l12, l3, le = a.uid("r12"), a.uid("r3"), a.uid("re")
        a("s_cmp_eq_u32 s52, 3")
        a(f"s_cbranch_scc1 {l3}")
        a("s_cmp_lg_u32 s52, 0")
        a(f"s_cbranch_scc1 {l12}")
        f0()
        a(f"s_branch {le}")
        a.label(l12)
        f12()
        a(f"s_branch {le}")
        a.label(l3)
        f3()
        a.label(le)

    def pub0():
        a(f"v_and_b32 v{t[0]}, 7, v1")
        a(f"v_lshlrev_b32 v{t[0]}, 4, v{t[0]}")
        a(f"v_add_u32 v{t[1]}, {LPUB}, v{t[0]}")
        a(f"ds_read_b128 {vr(D,4)}, v{t[1]}")
        a("s_lshl_b32 s60, s46, 4")
        a("s_add_u32 s60, s60, s47")
        a("s_lshl_b32 s62, s60, 3")
        a(f"s_add_u32 s62, s62, {WS_FSR}")
        a("s_lshl_b32 s60, s60, 7")
        a(f"s_add_u32 s60, s60, {WS_ST}")
        a("s_waitcnt lgkmcnt(0)")
        a(f"buffer_store_dwordx4 {vr(D,4)}, v{t[0]}, s[4:7], s60 offen sc1")

    def pub12():
        a("s_lshl_b32 s61, s52, 11")
        a(f"s_add_u32 s60, s61, {LPUB + 128 - 2048}")
        a(f"v_add_u32 v{t[1]}, s60, v{t[8]}")
        for r4 in range(4):
            a(f"ds_read_b64 {vr(D + 2*r4, 2)}, v{t[1]} offset:{r4*512}")
        a("s_lshl_b32 s60, s47, 4")
        a("s_add_u32 s60, s60, s46")
        a("s_lshl_b32 s62, s60, 3")
        a("s_add_u32 s62, s62, s61")
        a(f"s_add_u32 s62, s62, {WS_FSC - 2048}")
        a("s_lshl_b32 s60, s60, 10")
        a("s_lshr_b32 s61, s61, 2")
        a("s_add_u32 s60, s60, s61")
        a(f"s_add_u32 s60, s60, {WS_CS - 512}")
        a("s_waitcnt lgkmcnt(0)")
        for r4 in range(1, 4):
            a(f"v_pk_add_f32 {vr(D,2)}, {vr(D,2)}, {vr(D+2*r4,2)}")
        a(f"buffer_store_dwordx2 {vr(D,2)}, v{t[8]}, s[4:7], s60 offen sc1")

    def flag012():
        put_flag(a, "s62", vz, vn)

    def nonce3():
        a(f"v_mov_b32 v{t[0]}, {LNONCE}")
        a(f"ds_write_b64 v{t[0]}, {vr(vn,2)}")

    def xb_calc():
        for it in range(5):
            for h in range(2):
                x_, b_ = XR + 4*it + h, XR + 4*it + 2 + h
                a(f"v_lshlrev_b32 v{t[9]}, 16, v{x_}")
                a(f"v_lshlrev_b32 v{t[10]}, 16, v{b_}")
                a(f"v_add_f32 v{XB+it*4+2*h}, v{t[9]}, v{t[10]}")
                a(f"v_and_b32 v{t[9]}, 0xffff0000, v{x_}")
                a(f"v_and_b32 v{t[10]}, 0xffff0000, v{b_}")
                a(f"v_add_f32 v{XB+it*4+2*h+1}, v{t[9]}, v{t[10]}")

    def g1_0():
        a("s_lshl_b32 s60, s46, 7")
        a(f"s_add_u32 s60, s60, {WS_FSR}")
        poll(a, name + "_sr", t[0], "s60", D, vr(vn, 2))
        a("s_lshl_b32 s60, s46, 11")
        a(f"s_add_u32 s60, s60, {WS_ST}")
        a("s_waitcnt vmcnt(0)")
        a(f"buffer_load_dwordx4 {vr(D,4)}, v{vl16}, s[4:7], s60 offen sc1")
        a(f"buffer_load_dwordx4 {vr(D+4,4)}, v{vl16}, s[4:7], s60 offen offset:1024 sc1")

    def g1_12():
        a("s_lshl_b32 s61, s52, 11")
        a("s_lshl_b32 s60, s47, 7")
        a("s_add_u32 s60, s60, s61")
        a(f"s_add_u32 s60, s60, {WS_FSC - 2048}")
        poll(a, name + "_sc", t[0], "s60", D, vr(vn, 2))
        a("s_lshl_b32 s60, s47, 14")
        a("s_lshr_b32 s61, s61, 2")
        a("s_add_u32 s60, s60, s61")
        a(f"s_add_u32 s60, s60, {WS_CS - 512}")
        a("s_waitcnt vmcnt(0)")
        for m in range(16):
            a(f"buffer_load_dwordx2 {vr(D + 2*m, 2)}, v{t[8]}, s[4:7], s60 offen offset:{(m%4)*1024} sc1")
            if m % 4 == 3 and m < 15:
                a("s_add_u32 s60, s60, 4096")

    def g2_0():
        a(f"v_add_u32 v{t[0]}, {LSTAT}, v{vl16}")
        a(f"ds_write_b128 v{t[0]}, {vr(D,4)}")
        a(f"ds_write_b128 v{t[0]}, {vr(D+4,4)} offset:1024")

    def g2_12():
        a("s_lshl_b32 s61, s52, 9")
        a(f"s_add_u32 s61, s61, {LCS - 512}")
        a(f"v_add_u32 v{t[0]}, s61, v{t[8]}")
        for m in range(1, 16):
            a(f"v_pk_add_f32 {vr(D,2)}, {vr(D,2)}, {vr(D+2*m,2)}")
        a(f"ds_write_b64 v{t[0]}, {vr(D,2)}")

    nop = lambda: None
    a(f"s_waitcnt vmcnt({11 + nl})")
    a("s_barrier")
    issue()
    by_role(pub0, pub12, nop)
    a(f"s_waitcnt vmcnt({11 + nl})")
    a("s_barrier")
    issue()
    for i in range(64):
        a(f"v_accvgpr_write_b32 a{i}, 0")
    a("s_waitcnt vmcnt(11)")
    a("s_barrier")
    get_nonce()
    by_role(flag012, flag012, nonce3)
    issue()
    xb_calc()
    a(f"v_and_b32 v{t[0]}, 15, v1")
    a(f"v_lshlrev_b32 v{t[0]}, 3, v{t[0]}")
    a("s_mov_b32 s63, 4")
    bl = f"{name}_bl"
    a.label(bl)
    a("s_waitcnt vmcnt(11)")
    a("s_barrier")
    issue()
    a("s_add_u32 s63, s63, 1")
    a("s_cmp_lt_u32 s63, 8")
    a(f"s_cbranch_scc1 {bl}")
    a("s_waitcnt vmcnt(11)")
    a("s_barrier")
    by_role(g1_0, g1_12, lambda: a("s_waitcnt vmcnt(0)"))
    a("s_barrier")
    a("s_waitcnt vmcnt(0)")
    by_role(g2_0, g2_12, nop)
    stamp(a, 2)
    a("s_waitcnt lgkmcnt(0)")
    a("s_barrier")
    a("s_setprio 0")
    R.release(mark)
    vl16b, vt2, vt2b = vid, vid + 1, vid + 2
    pt = BO
    assert pt % 2 == 0
    F = R.alloc("F", 80, 4)
    accv = R.alloc("accv", 32, 4)
    WB = AD0
    assert WB % 2 == 0
    srd(a, 16, 40, 2048 * 640 * 2)
    a("s_mul_i32 s58, s50, 81920")
    a("s_mul_i32 s59, s51, 160")
    a("s_add_u32 s58, s58, s59")
    a("s_mul_i32 s60, s52, 25600")
    a(f"v_add_u32 v{t[4]}, s60, v{vl16}")
    a(f"s_mul_i32 s61, s52, {64*RS}")
    a(f"v_mul_u32_u24 v{t[6]}, {RS}, v2")
    a(f"v_lshl_add_u32 v{t[6]}, v3, 4, v{t[6]}")
    a(f"v_add_u32 v{t[6]}, s61, v{t[6]}")
    a(f"v_and_b32 v{t[7]}, 7, v1")
    a(f"v_lshlrev_b32 v{t[7]}, 3, v{t[7]}")
    a(f"v_mov_b32 v{t[8]}, {LFLAG}")

    def accreg(i, n):
        return ar(i, n) if i < 64 else vr(accv + i - 64, n)

    def set2():
        a(f"v_add_u32 v{vl16b}, 0x1000, v{vl16}")
        a(f"v_and_b32 v{vt2}, 15, v1")
        a(f"v_lshl_add_u32 v{vt2}, v3, 4, v{vt2}")
        a(f"v_lshlrev_b32 v{vt2}, 4, v{vt2}")
        a(f"v_add_u32 v{vt2b}, 0x1000, v{vt2}")
        a("s_mul_i32 s60, s52, 25600")
        a(f"v_add_u32 v{t[5]}, s60, v{vt2}")
        for i in range(32):
            a(f"v_mov_b32 v{accv+i}, 0")

    def rt_pack2():
        for i in range(12):
            a(f"v_lshl_or_b32 v{E+i}, v{E+2*i+1}, 16, v{E+2*i}")

    set2()
    a("s_mul_i32 s53, s50, 196608")
    a("s_mul_i32 s60, s52, 24576")
    a("s_add_u32 s53, s53, s60")
    a(f"s_add_u32 s53, s53, {WS_H}")
    a("s_add_u32 s54, s53, 98304")
    a("s_mul_i32 s56, s51, 136")
    a("s_mul_i32 s60, s52, 24")
    a("s_add_u32 s60, s60, s56")
    a("s_mul_i32 s55, s60, 2560")
    a(f"s_add_u32 s55, s55, {WS_WF}")
    a(f"v_bfe_u32 v{t[0]}, v1, 1, 2")
    a(f"v_lshlrev_b32 v{t[0]}, 5, v{t[0]}")
    a(f"v_and_b32 v{t[1]}, 1, v1")
    a(f"v_lshl_add_u32 v{t[0]}, v{t[1]}, 4, v{t[0]}")
    a("s_lshr_b32 s60, s50, 1")
    a("s_lshl_b32 s60, s60, 9")
    a("s_lshl_b32 s61, s52, 7")
    a("s_add_u32 s60, s60, s61")
    a("s_and_b32 s61, s50, 1")
    a("s_lshl_b32 s61, s61, 3")
    a("s_add_u32 s60, s60, s61")
    a(f"s_add_u32 s63, s60, {WS_FH}")
    a("s_mul_i32 s60, s51, 1088")
    a(f"s_add_u32 s64, s60, {WS_FW}")
    a("s_mul_i32 s60, s52, 24")
    a(f"v_min_u32 v{t[2]}, 23, v1")
    a(f"v_add_u32 v{t[2]}, s60, v{t[2]}")
    a(f"v_lshlrev_b32 v{t[2]}, 3, v{t[2]}")
    a("s_lshl_b32 s60, s52, 3")
    a("s_add_u32 s60, s60, 96")
    a(f"v_and_b32 v{t[3]}, 7, v1")
    a(f"v_add_u32 v{t[3]}, s60, v{t[3]}")
    a("s_lshl_b32 s60, s52, 1")
    a("s_add_u32 s60, s60, 128")
    a(f"v_and_b32 v{t[1]}, 1, v1")
    a(f"v_add_u32 v{t[1]}, s60, v{t[1]}")
    a("v_cmp_eq_u32 vcc, 0, v3")
    a("s_nop 1")
    a(f"v_cndmask_b32 v{t[3]}, v{t[1]}, v{t[3]}, vcc")
    a(f"v_lshlrev_b32 v{t[3]}, 3, v{t[3]}")
    stamp(a, 3)
    a("s_and_b32 s60, s52, 1")
    a("s_lshl_b32 s61, s46, 1")
    a("s_add_u32 s60, s60, s61")
    a("s_lshl_b32 s60, s60, 1")
    a("s_mul_i32 s60, s60, 96")
    a("s_mul_i32 s61, s47, 6")
    a("s_add_u32 s60, s60, s61")
    a("s_lshl_b32 s60, s60, 10")
    a(f"s_add_u32 s60, s60, {WS_H}")
    a("s_lshr_b32 s61, s52, 1")
    a("s_mul_i32 s65, s61, 98304")
    a("s_lshl_b32 s61, s61, 12")
    a("s_add_u32 s66, s60, s65")
    a("s_sub_u32 s67, s60, s65")
    a("s_add_u32 s67, s67, 98304")
    a("s_add_u32 s67, s67, s61")
    a("s_add_u32 s65, s66, s61")
    a("s_lshl_b32 s60, s46, 4")
    a("s_add_u32 s60, s60, s47")
    a("s_lshl_b32 s60, s60, 2")
    a("s_add_u32 s60, s60, s52")
    a("s_lshl_b32 s60, s60, 3")
    a(f"s_add_u32 s57, s60, {WS_FH}")
    a("s_mul_i32 s60, s52, 10240")
    a(f"s_add_u32 s60, s60, {LH}")
    a(f"v_add_u32 v{t[9]}, s60, v{vl16}")
    a(f"v_bfe_u32 v{t[10]}, v1, 2, 2")
    a(f"v_lshl_add_u32 v{t[10]}, v3, 2, v{t[10]}")
    a(f"v_mul_u32_u24 v{t[10]}, 192, v{t[10]}")
    a(f"v_bfe_u32 v{t[11]}, v1, 4, 1")
    a(f"v_lshl_add_u32 v{t[10]}, v{t[11]}, 5, v{t[10]}")
    a(f"v_and_b32 v{t[11]}, 3, v1")
    a(f"v_lshl_add_u32 v{t[10]}, v{t[11]}, 3, v{t[10]}")
    a(f"v_add_u32 v{t[11]}, {LRT + 4*3072}, v{t[10]}")
    a("s_mul_i32 s60, s52, 3072")
    a(f"s_add_u32 s60, s60, {LRT}")
    a(f"v_add_u32 v{t[10]}, s60, v{t[10]}")
    for un, adr in enumerate((t[10], t[11])):
        for nt in range(3):
            for h in range(2):
                a(f"ds_read_b64_tr_b16 {vr(F + 40 + un*12 + nt*4 + h*2, 2)}, v{adr} offset:{nt*64 + h*1536}")
    a("s_lshl_b32 s62, s52, 8")
    a("s_add_u32 s62, s62, s2")
    a("v_cmp_gt_u32 s[12:13], 16, v2")
    a("s_barrier")
    for e in range(6):
        a(f"ds_read_b128 {vr(F + e*4, 4)}, v{t[9]} offset:{e*1024}")
    a("s_waitcnt lgkmcnt(0)")
    for e, (sr_, off) in enumerate(((65, 0), (65, 1024), (67, 0), (67, 1024), (66, 2048), (66, 3072))):
        a(f"buffer_store_dwordx4 {vr(F + e*4, 4)}, v{vl16}, s[4:7], s{sr_} offen offset:{off} sc1")
        if X_PACE and e % 2 == 1:
            a("s_waitcnt vmcnt(0)")

    def rt_put(un):
        a("s_mul_i32 s61, s62, 2560")
        a(f"s_add_u32 s61, s61, {WS_WF}")
        b = F + 40 + un * 12
        a(f"buffer_store_dwordx4 {vr(b,4)}, v{vl16}, s[4:7], s61 offen sc1")
        a(f"buffer_store_dwordx4 {vr(b+4,4)}, v{vl16}, s[4:7], s61 offen offset:1024 sc1")
        a("s_mov_b64 exec, s[12:13]")
        a(f"buffer_store_dwordx4 {vr(b+8,4)}, v{vt2}, s[4:7], s61 offen offset:2048 sc1")
        a("s_mov_b64 exec, -1")
        a("s_lshl_b32 s61, s62, 3")
        a(f"s_add_u32 s61, s61, {WS_FW}")
        a("s_waitcnt vmcnt(0)")
        put_flag(a, "s61", vz, vn)
    rt_put(0)
    put_flag(a, "s57", vz, vn)
    n3 = f"{name}_no3"
    a("s_cmp_ge_u32 s62, 64")
    a(f"s_cbranch_scc1 {n3}")
    a("s_add_u32 s62, s62, 1024")
    rt_put(1)
    a.label(n3)
    stamp(a, 4)
    poll(a, name + "_fw", t[2], "s64", pt, vr(vn, 2), extra=t[3])
    poll(a, name + "_fh", t[0], "s63", pt, vr(vn, 2))
    stamp(a, 5)

    def wload(dst, sreg, off):
        for k, (va, vb) in enumerate(((vl16, vl16b), (vl16, vl16b), (vt2, vt2b))):
            o = off + k * 1024
            v = va if o < 4096 else vb
            a(f"buffer_load_dwordx4 {vr(dst + k*4, 4)}, v{v}, s[4:7], s{sreg} offen offset:{o % 4096} sc1")

    def gl_ops(b):
        base = F + b * 20
        return [f"buffer_load_dwordx4 {vr(base,4)}, v{vl16}, s[4:7], s53 offen sc1",
                f"buffer_load_dwordx4 {vr(base+4,4)}, v{vl16}, s[4:7], s54 offen sc1",
                f"buffer_load_dwordx4 {vr(base+8,4)}, v{vl16}, s[4:7], s55 offen sc1",
                f"buffer_load_dwordx4 {vr(base+12,4)}, v{vl16}, s[4:7], s55 offen offset:1024 sc1",
                f"buffer_load_dwordx4 {vr(base+16,4)}, v{vt2}, s[4:7], s55 offen offset:2048 sc1",
                "s_add_u32 s53, s53, 1024\ns_add_u32 s54, s54, 1024\ns_add_u32 s55, s55, 2560"]

    def gstep(b, nxt, wait):
        if X_NOG: return
        a(f"s_waitcnt vmcnt({wait})")
        base = F + b * 20
        ops = gl_ops(nxt) if nxt is not None else [None] * 6
        for k in range(6):
            c = accreg(k * 16, 16)
            a(f"v_mfma_f32_32x32x16_bf16 {c}, {vr(base + 8 + (k//2)*4, 4)}, {vr(base + (k%2)*4, 4)}, {c}")
            if ops[k]: a(ops[k])

    a("s_setprio 0")
    for b in range(2):
        for o in gl_ops(b): a(o)
    a("s_mov_b32 s60, 0")
    gl = f"{name}_gl"
    a.label(gl)
    for b in range(3):
        gstep(b, (b + 2) % 3, 5)
    a("s_add_u32 s60, s60, 1")
    a("s_cmp_lt_u32 s60, 7")
    a(f"s_cbranch_scc1 {gl}")
    gstep(0, 2, 5)
    gstep(1, None, 5)
    gstep(2, None, 0)
    stamp(a, 6)
    a("s_lshl_b32 s60, s52, 3")
    a("s_add_u32 s60, s60, s56")
    a("s_add_u32 s60, s60, 96")
    a("s_mul_i32 s53, s60, 2560")
    a(f"s_add_u32 s53, s53, {WS_WF}")
    a("s_lshl_b32 s60, s52, 1")
    a("s_add_u32 s60, s60, s56")
    a("s_add_u32 s60, s60, 128")
    a("s_mul_i32 s54, s60, 2560")
    a(f"s_add_u32 s54, s54, {WS_WF}")
    a("s_waitcnt vmcnt(0)")
    def wo_ld(e):
        if e < 20:
            v = vl16 if (e % 8) < 4 else vl16b
            if e and e % 8 == 0:
                a("s_add_u32 s53, s53, 8192")
            a(f"buffer_load_dwordx4 {vr(F + (e%4)*4, 4)}, v{v}, s[4:7], s53 offen offset:{(e%4)*1024} sc1")
        else:
            v = vl16 if e < 24 else vl16b
            a(f"buffer_load_dwordx4 {vr(F + (e%4)*4, 4)}, v{v}, s[4:7], s54 offen offset:{(e%4)*1024} sc1")
    for e in range(3):
        wo_ld(e)
    for e in range(25):
        a(f"s_waitcnt vmcnt({min(2, 24-e)}) lgkmcnt(0)")
        a(f"ds_write_b128 v{t[4]}, {vr(F + (e%4)*4, 4)} offset:{e*1024}")
        if e + 3 < 25:
            wo_ld(e + 3)
    a("s_mul_i32 s60, s50, 81920")
    a("s_lshl_b32 s53, s52, 13")
    a("s_add_u32 s53, s53, s60")
    a(f"s_add_u32 s53, s53, {WS_O}")
    a("s_add_u32 s54, s53, 40960")
    a("s_lshl_b32 s55, s52, 11")
    a("s_add_u32 s55, s55, s60")
    a(f"s_add_u32 s55, s55, {WS_O + 32768}")
    a("s_add_u32 s56, s55, 40960")
    a("s_lshl_b32 s60, s50, 8")
    a("s_lshl_b32 s61, s52, 6")
    a("s_add_u32 s60, s60, s61")
    a(f"s_add_u32 s63, s60, {WS_FO}")
    a("s_waitcnt lgkmcnt(0)")
    stamp(a, 7)
    a("s_barrier")
    a(f"ds_read_b32 v{t[2]}, v{t[8]}")
    a("s_waitcnt lgkmcnt(0)")
    a(f"v_readfirstlane_b32 s60, v{t[2]}")
    nr = f"{name}_noredo"
    a("s_cmp_eq_u32 s60, 0")
    a(f"s_cbranch_scc1 {nr}")
    a("s_barrier")
    a("s_barrier")
    a("s_barrier")
    a.label(nr)
    stamp(a, 8)

    def wread(n, dst):
        a(f"ds_read_b128 {vr(dst,4)}, v{t[4]} offset:{n*2560}")
        a(f"ds_read_b128 {vr(dst+4,4)}, v{t[4]} offset:{n*2560 + 1024}")
        a(f"ds_read_b128 {vr(dst+8,4)}, v{t[5]} offset:{n*2560 + 2048}")
    poll(a, name + "_fo", t[7], "s63", pt, vr(vn, 2))
    stamp(a, 9)
    for n in range(10):
        for rt in range(2):
            if n < 8:
                sreg, off = 53 + rt, n * 1024
            else:
                sreg, off = 55 + rt, (n - 8) * 1024
            v = vl16 if off < 4096 else vl16b
            a(f"buffer_load_dwordx4 {vr(F + (n*2+rt)*4, 4)}, v{v}, s[4:7], s{sreg} offen offset:{off % 4096} sc1")
    wread(0, WB)
    for n in range(10):
        a(f"s_waitcnt vmcnt({18 - 2*n}) lgkmcnt(0)")
        for nt in range(3):
            for rt in range(2):
                c = accreg((nt*2+rt)*16, 16)
                a(f"v_mfma_f32_32x32x16_bf16 {c}, {vr(WB + nt*4, 4)}, {vr(F + (n*2+rt)*4, 4)}, {c}")
            if n < 9:
                adr, off = (t[4], (n+1)*2560 + nt*1024) if nt < 2 else (t[5], (n+1)*2560 + 2048)
                a(f"ds_read_b128 {vr(WB + nt*4, 4)}, v{adr} offset:{off}")
    stamp(a, 10)
    a("s_barrier")
    a("s_nop 7")
    for nt in range(3):
        for rt in range(2):
            for q in range(4 if nt < 2 else 2):
                a(f"ds_write_b128 v{t[6]}, {accreg((nt*2+rt)*16 + q*4, 4)} offset:{rt*32*RS + nt*128 + q*32}")
    a("s_waitcnt lgkmcnt(0)")
    a("s_barrier")
    PD = F
    for it in range(5):
        for w in range(4):
            a(f"ds_read_b128 {vr(PD + it*16 + w*4, 4)}, v{LA+it} offset:{w*64*RS}")
    for it in range(5):
        a(f"s_waitcnt lgkmcnt({min(15, 4*(4-it))})")
        p = PD + it * 16
        for i in range(2):
            a(f"v_pk_add_f32 {vr(p+2*i,2)}, {vr(p+2*i,2)}, {vr(p+4+2*i,2)}")
            a(f"v_pk_add_f32 {vr(p+8+2*i,2)}, {vr(p+8+2*i,2)}, {vr(p+12+2*i,2)}")
        for i in range(2):
            a(f"v_pk_add_f32 {vr(p+2*i,2)}, {vr(p+2*i,2)}, {vr(XB+it*4+2*i,2)}")
        for i in range(2):
            a(f"v_pk_add_f32 {vr(p+2*i,2)}, {vr(p+2*i,2)}, {vr(p+8+2*i,2)}")
        a(f"v_cvt_pk_bf16_f32 v{p+4}, v{p}, v{p+1}")
        a(f"v_cvt_pk_bf16_f32 v{p+5}, v{p+2}, v{p+3}")
        a(f"buffer_store_dwordx2 {vr(p+4,2)}, v{GA+it}, s[16:19], s58 offen")
    stamp(a, 11)
    stamp_flush(a, 12, 4, 0, 4, 5)
    dbg_flush(a, 12, [7, 8, 9, 10, 11], 10, 4, 37, 4, 5)
    a("s_endpgm")
```

```python
import math
from asmlib import *
import asmlib

BLOCK = 512
ACCUM = 192
NAGPR = 64
VGPR = ACCUM + NAGPR

WS_QK = 0
WS_VT = 0x600000
WS_H = 0xA00000
WS_O = 0x1000000
WS_WF = 0x1300000
WS_FLAG = 0x1700000
WS_FQ = WS_FLAG
WS_FH = WS_FLAG + 0x2000
WS_FW = WS_FLAG + 0xA000
WS_FO = WS_FLAG + 0x6000
WS_FSR = WS_FLAG + 0x8000
WS_FSC = WS_FLAG + 0x9000
WS_ST = WS_FLAG + 0x10000
WS_CS = WS_FLAG + 0x20000
WS_BYTES = 268435456
GSTRIDE = 2048 * 48

LX = 0
LQ = 49152
L1 = 98304
LSTAT = 135168
LCS = 137216
LB1 = 138240
LNONCE = 138752
LFLAG = 138768
LRT = 138816
LPUB = LRT + 5 * 3072
F_LDS = LPUB + 128 + 4096
LWO = 0
LM = 102400
LC = 110592
RS = 336
LH = 49152

QSCALE = (20 ** -0.5) * math.log2(math.e)
EPS = 1e-5
SPIN_MAX = 100000
X_NOG = False
X_NOKV = False
X_P1 = False
X_PACE = False
X_PLAIN = False
X_NOCP = False


def ar(base, n=1):
    return f"a{base}" if n == 1 else f"a[{base}:{base+n-1}]"


def rbf(a, d, s):
    a(f"v_cvt_pk_bf16_f32 v{d}, v{s}, v{s}")
    a(f"v_lshlrev_b32 v{d}, 16, v{d}")


def poll(a, name, vaddr, soff, vtmp, nonce, extra=None):
    lp, go = a.uid(name + "_p"), a.uid(name + "_g")
    a(f"s_mov_b32 s68, {SPIN_MAX}")
    a.label(lp)
    a(f"buffer_load_dwordx2 {vr(vtmp,2)}, v{vaddr}, s[4:7], {soff} offen sc1")
    if extra:
        a(f"buffer_load_dwordx2 {vr(vtmp+2,2)}, v{extra}, s[4:7], {soff} offen sc1")
    a("s_sub_u32 s68, s68, 1")
    a("s_cmp_eq_u32 s68, 0")
    a(f"s_cbranch_scc1 {go}")
    a("s_waitcnt vmcnt(0)")
    a(f"v_cmp_ne_u64 vcc, {nonce}, {vr(vtmp,2)}")
    if extra:
        a(f"v_cmp_ne_u64 s[66:67], {nonce}, {vr(vtmp+2,2)}")
        a("s_or_b64 vcc, vcc, s[66:67]")
    a(f"s_cbranch_vccz {go}")
    a("s_sleep 4")
    a(f"s_branch {lp}")
    a.label(go)


def put_flag(a, soff, vz, vn):
    a("s_mov_b64 exec, 1")
    a(f"buffer_store_dwordx2 {vr(vn,2)}, v{vz}, s[4:7], {soff} offen sc1")
    a("s_mov_b64 exec, -1")


def decode(a, ps, vid, AD0, t, swave):
    idr = vid + ps
    AD, AD2 = AD0[2*ps], AD0[2*ps+1]
    a("s_lshl_b32 s60, s2, 2")
    a(f"s_add_u32 s60, s60, s{swave}")
    a("s_mul_i32 s60, s60, 170")
    a("s_mov_b32 s61, 197380")
    a("s_mov_b32 s63, 26843546")
    a("s_movk_i32 s69, 96")
    a(f"v_add_u32 v{idr}, s60, v1")
    if ps:
        a(f"v_add_u32 v{idr}, {64*ps}, v{idr}")
    if ps == 2:
        a("s_add_u32 s60, s60, 169")
        a(f"v_min_u32 v{idr}, s60, v{idr}")
    cb, rem, step, it, tile, n, hf, rA, dB, col = t[0], t[1], t[2], t[3], t[4], t[5], t[6], t[7], t[8], t[9]
    a(f"v_mul_hi_u32 v{cb}, v{idr}, s61")
    a(f"v_mul_u32_u24 v{rem}, 21760, v{cb}")
    a(f"v_sub_u32 v{rem}, v{idr}, v{rem}")
    a(f"v_mul_hi_u32 v{step}, v{rem}, s63")
    a(f"v_mul_u32_u24 v{it}, 160, v{step}")
    a(f"v_sub_u32 v{it}, v{rem}, v{it}")
    a(f"v_lshrrev_b32 v{tile}, 6, v{it}")
    a(f"v_cmp_eq_u32 vcc, 2, v{tile}")
    a(f"v_and_b32 v{n}, 31, v{it}")
    a(f"v_bfe_u32 v{hf}, v{it}, 5, 1")
    a(f"v_and_b32 v{rem}, 15, v{it}")
    a(f"v_bfe_u32 v{it}, v{it}, 4, 1")
    a(f"v_cndmask_b32 v{n}, v{n}, v{rem}, vcc")
    a(f"v_cndmask_b32 v{hf}, v{hf}, v{it}, vcc")
    a(f"v_mul_u32_u24 v{col}, 80, v{cb}")
    a(f"v_lshl_add_u32 v{col}, v{tile}, 5, v{col}")
    a(f"v_add_u32 v{col}, v{col}, v{n}")
    a(f"v_lshlrev_b32 v{rA}, 4, v{step}")
    a(f"v_lshl_add_u32 v{rA}, v{hf}, 2, v{rA}")
    a(f"v_mov_b32 v{dB}, 8")
    a(f"v_subrev_u32 v{rem}, 96, v{step}")
    a(f"v_mul_u32_u24 v{it}, 20, v{rem}")
    a(f"v_lshl_add_u32 v{it}, v{hf}, 2, v{it}")
    a(f"v_cmp_le_u32 s[64:65], s69, v{step}")
    a(f"v_cmp_le_u32 vcc, 0x80, v{step}")
    a(f"v_subrev_u32 v{rem}, 128, v{step}")
    a(f"v_cndmask_b32 v{rA}, v{rA}, v{it}, s[64:65]")
    a(f"v_mul_u32_u24 v{it}, 80, v{rem}")
    a(f"v_mul_u32_u24 v{rem}, 40, v{hf}")
    a(f"v_add3_u32 v{it}, v{it}, v{rem}, 16")
    a(f"v_cndmask_b32 v{rA}, v{rA}, v{it}, vcc")
    a(f"v_cndmask_b32 v{dB}, v{dB}, 20, vcc")
    a(f"v_mul_u32_u24 v{rA}, 1280, v{rA}")
    a(f"v_lshl_add_u32 v{rA}, v{col}, 1, v{rA}")
    a(f"v_mul_u32_u24 v{dB}, 1280, v{dB}")
    a(f"v_mov_b32 v{rem}, s36")
    a(f"v_mov_b32 v{it}, s28")
    a(f"v_cndmask_b32 v{rem}, v{rem}, v{it}, s[64:65]")
    a(f"v_mov_b32 v{n}, s37")
    a(f"v_mov_b32 v{it}, s29")
    a(f"v_cndmask_b32 v{n}, v{n}, v{it}, s[64:65]")
    a(f"v_add_co_u32 v{AD}, vcc, v{rem}, v{rA}")
    a("s_nop 1")
    a(f"v_addc_co_u32 v{AD+1}, vcc, 0, v{n}, vcc")
    a(f"v_add_co_u32 v{AD2}, vcc, v{AD}, v{dB}")
    a("s_nop 1")
    a(f"v_addc_co_u32 v{AD2+1}, vcc, 0, v{AD+1}, vcc")


def gen_f(a, name):
    asmlib.SB = 70
    kernel_header(a, name)
    done = f"{name}_done"
    a("s_cmp_ge_u32 s2, 256")
    a(f"s_cbranch_scc1 {done}")
    stamp(a, 0, True)
    stamp(a, 1)
    a("s_load_dwordx16 s[24:39], s[0:1], 0")
    a("s_load_dwordx4 s[40:43], s[0:1], 64")
    a("s_load_dwordx2 s[44:45], s[0:1], 80")
    if not X_NOCP:
        a("s_getpc_b64 s[60:61]")
        a("v_lshlrev_b32 v4, 6, v0")
        a("s_and_b32 s60, s60, 0xffffff00")
        a("v_mov_b32 v5, s61")
        a("v_add_co_u32 v4, vcc, s60, v4")
        a("v_cmp_gt_u32 s[62:63], CODE_LINES, v0")
        a("v_addc_co_u32 v5, vcc, 0, v5, vcc")
        a("s_mov_b64 exec, s[62:63]")
        a("global_load_dword v191, v[4:5], off")
        a("s_mov_b64 exec, -1")
    a("v_lshrrev_b32 v2, 6, v0")
    a("v_and_b32 v1, 63, v0")
    a("s_and_b32 s56, s2, 7")
    a("v_readfirstlane_b32 s3, v2")
    a("s_lshr_b32 s57, s2, 3")
    a("s_and_b32 s58, s57, 7")
    a("s_lshr_b32 s59, s57, 3")
    a("s_and_b32 s60, s56, 1")
    a("s_lshl_b32 s60, s60, 3")
    a("s_add_u32 s46, s60, s58")
    a("s_lshr_b32 s60, s56, 1")
    a("s_lshl_b32 s60, s60, 2")
    a("s_add_u32 s47, s60, s59")
    a("s_lshl_b32 s60, s56, 2")
    a("s_add_u32 s48, s60, s59")
    a("s_mov_b32 s49, s58")
    a("s_and_b32 s60, s56, 3")
    a("s_lshl_b32 s60, s60, 3")
    a("s_add_u32 s50, s60, s58")
    a("s_lshr_b32 s60, s56, 2")
    a("s_lshl_b32 s60, s60, 2")
    a("s_add_u32 s51, s60, s59")
    a("v_and_b32 v2, 31, v1")
    a("v_lshrrev_b32 v3, 5, v1")
    a("s_cmp_ge_u32 s3, 4")
    a(f"s_cbranch_scc0 {name}_A")
    gen_b(a, name)
    a.label(f"{name}_A")
    gen_a(a, name)
    a.label(done)
    a("s_endpgm")
    a.label(f"{name}_end")


def gen_a(a, name):
    R = Regs(4, ACCUM)
    t = [R.alloc(f"t{i}") for i in range(10)]
    vn = R.alloc("vn", 2, 2)
    vz = R.alloc("vz")
    vl16 = R.alloc("vl16")
    mark = R.mark()
    vxa = R.alloc("vxa", 8)
    vwa = R.alloc("vwa", 4)
    acc = R.alloc("acc", 112, 4)
    X = R.alloc("X", 16, 4)
    W = R.alloc("W", 32, 4)
    a("s_and_b32 s52, s3, 1")
    a("s_lshr_b32 s53, s3, 1")
    a("s_lshl_b32 s60, s52, 6")
    a("s_lshl_b32 s61, s53, 5")
    a("s_add_u32 s60, s60, s61")
    a(f"v_add_u32 v{t[0]}, s60, v2")
    a(f"v_lshrrev_b32 v{t[1]}, 1, v{t[0]}")
    a(f"v_and_b32 v{t[1]}, 7, v{t[1]}")
    a(f"v_xor_b32 v{t[1]}, v{t[1]}, v3")
    a(f"v_lshlrev_b32 v{t[1]}, 4, v{t[1]}")
    a(f"v_lshl_add_u32 v{vxa}, v{t[0]}, 7, v{t[1]}")
    for kk in range(1, 4):
        a(f"v_xor_b32 v{vxa+kk}, {kk << 5}, v{vxa}")
    for kk in range(4):
        a(f"v_xor_b32 v{vxa+4+kk}, 0x1000, v{vxa+kk}")
    a(f"v_bfe_u32 v{t[0]}, v1, 2, 2")
    a(f"v_and_b32 v{t[1]}, 3, v1")
    a(f"v_bfe_u32 v{t[2]}, v1, 4, 1")
    a(f"v_lshlrev_b32 v{t[4]}, 5, v{t[2]}")
    a(f"v_lshl_add_u32 v{t[4]}, v{t[1]}, 3, v{t[4]}")
    a(f"v_lshl_add_u32 v{t[5]}, v3, 3, v{t[0]}")
    a("s_mul_i32 s60, s53, 120")
    a(f"v_lshlrev_b32 v{t[6]}, 8, v{t[5]}")
    a(f"v_add_u32 v{t[6]}, {LQ}, v{t[6]}")
    for tt in range(2):
        a(f"v_add_u32 v{t[7]}, s60, v{t[4]}")
        if tt:
            a(f"v_add_u32 v{t[7]}, 64, v{t[7]}")
        a(f"v_lshrrev_b32 v{t[8]}, 6, v{t[7]}")
        a(f"v_xor_b32 v{t[8]}, v{t[8]}, v{t[0]}")
        a(f"v_and_b32 v{t[7]}, 63, v{t[7]}")
        a(f"v_lshl_add_u32 v{t[7]}, v{t[8]}, 6, v{t[7]}")
        a(f"v_add_u32 v{vwa+tt}, v{t[7]}, v{t[6]}")
    a(f"v_mul_u32_u24 v{t[6]}, 192, v{t[5]}")
    a(f"v_add3_u32 v{t[6]}, v{t[6]}, v{t[4]}, 64")
    a(f"v_add_u32 v{vwa+3}, {L1}, v{t[6]}")
    a("s_lshl_b32 s60, s53, 7")
    a("s_sub_u32 s60, s60, 64")
    a(f"v_add_u32 v{vwa+2}, s60, v{vwa+3}")
    a(f"v_mov_b32 v{vz}, 0")
    a(f"v_lshlrev_b32 v{vl16}, 4, v1")
    a("s_waitcnt lgkmcnt(0)")
    srd(a, 4, 44, WS_BYTES)
    D = acc
    ac = acc + 48
    l12, l3, lj = f"{name}_s12", f"{name}_s3", f"{name}_sj"
    for i in range(8):
        a(f"v_mov_b32 v{ac+i}, 0")
    a("s_cmp_eq_u32 s3, 3")
    a(f"s_cbranch_scc1 {l3}")
    a("s_cmp_lg_u32 s3, 0")
    a(f"s_cbranch_scc1 {l12}")
    srd(a, 8, 24, 2048 * 640 * 2)
    a(f"v_lshrrev_b32 v{t[8]}, 3, v1")
    a(f"v_mul_u32_u24 v{t[0]}, 1280, v{t[8]}")
    a(f"v_and_b32 v{t[1]}, 7, v1")
    a(f"v_lshl_add_u32 v{t[0]}, v{t[1]}, 4, v{t[0]}")
    a("s_lshl_b32 s60, s46, 4")
    a("s_add_u32 s60, s60, s47")
    a("s_mul_i32 s61, s60, 10240")
    for m in range(10):
        a(f"buffer_load_dwordx4 {vr(D + 4*m, 4)}, v{t[0]}, s[8:11], s61 offen offset:{m*128}")
    for m in range(40):
        if m % 4 == 0:
            a(f"s_waitcnt vmcnt({9 - m//4})")
        a(f"v_lshlrev_b32 v{t[0]}, 16, v{D+m}")
        a(f"v_and_b32 v{t[1]}, 0xffff0000, v{D+m}")
        a(f"v_add_f32 v{ac}, v{ac}, v{t[0]}")
        a(f"v_add_f32 v{ac+1}, v{ac+1}, v{t[1]}")
        a(f"v_fmac_f32 v{ac+2}, v{t[0]}, v{t[0]}")
        a(f"v_fmac_f32 v{ac+3}, v{t[1]}, v{t[1]}")
    sm, sq = ac, ac + 2
    a(f"v_add_f32 v{sm}, v{ac}, v{ac+1}")
    a(f"v_add_f32 v{sq}, v{ac+2}, v{ac+3}")
    for mod in ("quad_perm:[1,0,3,2]", "quad_perm:[2,3,0,1]", "row_half_mirror"):
        a("s_nop 1")
        a(f"v_add_f32_dpp v{t[0]}, v{sm}, v{sm} {mod} row_mask:0xf bank_mask:0xf")
        a(f"v_add_f32_dpp v{t[1]}, v{sq}, v{sq} {mod} row_mask:0xf bank_mask:0xf")
        a(f"v_mov_b32 v{sm}, v{t[0]}")
        a(f"v_mov_b32 v{sq}, v{t[1]}")
    mean, var, mbf, s1, r1, m2, s2, tmp_ = t[0], t[1], t[2], t[3], t[4], t[5], t[6], t[7]
    o = ac + 4
    a(f"s_mov_b32 s60, {hexf(1.0/640)}")
    a(f"s_mov_b32 s61, {hexf(EPS)}")
    a(f"v_mul_f32 v{mean}, s60, v{sm}")
    a(f"v_mul_f32 v{var}, s60, v{sq}")
    a(f"v_fma_f32 v{var}, -v{mean}, v{mean}, v{var}")
    a(f"v_max_f32 v{var}, 0, v{var}")
    rbf(a, mbf, mean)
    rbf(a, tmp_, var)
    a(f"v_add_f32 v{tmp_}, s61, v{tmp_}")
    rbf(a, tmp_, tmp_)
    a(f"v_sqrt_f32 v{tmp_}, v{tmp_}")
    a("s_nop 0")
    rbf(a, s1, tmp_)
    a(f"v_rcp_f32 v{r1}, v{s1}")
    a(f"v_sub_f32 v{o}, 0, v{mbf}")
    a(f"v_mov_b32 v{o+1}, v{r1}")
    a(f"v_sub_f32 v{tmp_}, v{mean}, v{mbf}")
    a(f"v_mul_f32 v{tmp_}, v{tmp_}, v{r1}")
    rbf(a, m2, tmp_)
    a(f"v_mul_f32 v{tmp_}, v{var}, v{r1}")
    a(f"v_mul_f32 v{tmp_}, v{tmp_}, v{r1}")
    rbf(a, tmp_, tmp_)
    a(f"v_add_f32 v{tmp_}, s61, v{tmp_}")
    rbf(a, tmp_, tmp_)
    a(f"v_sqrt_f32 v{tmp_}, v{tmp_}")
    a("s_nop 0")
    rbf(a, s2, tmp_)
    a(f"v_mul_f32 v{tmp_}, v{s1}, v{s2}")
    a(f"v_rcp_f32 v{o+2}, v{tmp_}")
    a(f"v_fma_f32 v{tmp_}, v{m2}, v{s1}, v{mbf}")
    a(f"v_mul_f32 v{o+3}, v{tmp_}, v{o+2}")
    a(f"v_sub_f32 v{o+3}, 0, v{o+3}")
    a(f"v_lshlrev_b32 v{t[8]}, 4, v{t[8]}")
    a(f"v_add_u32 v{t[8]}, {LPUB}, v{t[8]}")
    a(f"ds_write_b128 v{t[8]}, {vr(o,4)}")
    a(f"s_branch {lj}")
    a.label(l12)
    lq, lq2 = f"{name}_sq", f"{name}_sq2"
    a("s_cmp_eq_u32 s3, 1")
    a(f"s_cbranch_scc1 {lq}")
    srd(a, 8, 32, 640 * 1536 * 2)
    a("s_movk_i32 s62, 3072")
    a("s_mul_i32 s60, s47, 192")
    a(f"s_branch {lq2}")
    a.label(lq)
    srd(a, 8, 26, 640 * 1920 * 2)
    a("s_movk_i32 s62, 3840")
    a("s_mul_i32 s60, s47, 240")
    a.label(lq2)
    a("s_mul_i32 s61, s46, 40")
    a("s_mul_i32 s61, s61, s62")
    a("s_add_u32 s61, s61, s60")
    a(f"v_lshrrev_b32 v{t[8]}, 4, v1")
    a(f"v_mul_lo_u32 v{t[0]}, v{t[8]}, s62")
    a(f"v_and_b32 v{t[9]}, 15, v1")
    a(f"v_lshl_add_u32 v{t[0]}, v{t[9]}, 4, v{t[0]}")
    a("s_lshl_b32 s62, s62, 2")
    for m in range(10):
        a(f"buffer_load_dwordx4 {vr(D + 4*m, 4)}, v{t[0]}, s[8:11], s61 offen")
        if m < 9:
            a("s_add_u32 s61, s61, s62")
    for m in range(40):
        if m % 4 == 0:
            a(f"s_waitcnt vmcnt({9 - m//4})")
        a(f"v_lshlrev_b32 v{t[0]}, 16, v{D+m}")
        a(f"v_and_b32 v{t[1]}, 0xffff0000, v{D+m}")
        a(f"v_add_f32 v{ac + 2*(m%4)}, v{ac + 2*(m%4)}, v{t[0]}")
        a(f"v_add_f32 v{ac + 2*(m%4) + 1}, v{ac + 2*(m%4) + 1}, v{t[1]}")
    a("s_lshl_b32 s60, s3, 11")
    a(f"s_add_u32 s60, s60, {LPUB + 128 - 2048}")
    a(f"v_lshl_add_u32 v{t[8]}, v1, 5, s60")
    a(f"ds_write_b128 v{t[8]}, {vr(ac,4)}")
    a(f"ds_write_b128 v{t[8]}, {vr(ac+4,4)} offset:16")
    a(f"s_branch {lj}")
    a.label(l3)
    srd(a, 8, 34, 1536 * 2)
    a("s_mul_i32 s60, s47, 192")
    a(f"v_lshlrev_b32 v{t[0]}, 2, v1")
    a(f"buffer_load_dword v{D}, v{t[0]}, s[8:11], s60 offen")
    a(f"v_lshlrev_b32 v{t[0]}, 3, v1")
    a(f"v_add_u32 v{t[0]}, {LB1}, v{t[0]}")
    a(f"v_mov_b32 v{t[1]}, {LFLAG}")
    a(f"ds_write_b32 v{t[1]}, v{vz}")
    a("s_waitcnt vmcnt(0)")
    a(f"v_lshlrev_b32 v{ac}, 16, v{D}")
    a(f"v_and_b32 v{ac+1}, 0xffff0000, v{D}")
    a(f"ds_write_b64 v{t[0]}, {vr(ac,2)}")
    a.label(lj)
    a("s_waitcnt lgkmcnt(0)")
    for i in range(112):
        a(f"v_mov_b32 v{acc+i}, 0")
    a("s_movk_i32 s63, 16384")
    a("s_movk_i32 s65, 12288")

    def reads(kk):
        p = kk % 2
        for rt in range(2):
            a(f"ds_read_b128 {vr(X + p*8 + rt*4, 4)}, v{vxa + rt*4 + kk}")
        for tt in range(4):
            ks, hs = (4096, 1024) if tt < 2 else (3072, 768)
            for h in range(2):
                a(f"ds_read_b64_tr_b16 {vr(W + p*16 + tt*4 + h*2, 2)}, v{vwa+tt} offset:{kk*ks + h*hs}")

    def mf(p, k):
        tt, rt = (k // 2, k % 2) if k < 6 else (3, 0)
        c = acc + k * 16
        a(f"v_mfma_f32_32x32x16_bf16 {vr(c,16)}, {vr(W + p*16 + tt*4, 4)}, {vr(X + p*8 + rt*4, 4)}, {vr(c,16)}")

    a("s_mov_b32 s60, 0")
    a("s_mov_b32 s61, 0")
    a("s_mov_b32 s69, 0")
    a("s_barrier")
    stamp(a, 2)
    if asmlib.STAMP: a("s_waitcnt lgkmcnt(0)")
    reads(0)
    a("s_waitcnt lgkmcnt(0)")
    def read_ops(kk):
        p = kk % 2
        def xr(rt): return f"ds_read_b128 {vr(X + p*8 + rt*4, 4)}, v{vxa + rt*4 + kk}"
        def wr(tt, h):
            ks, hs = (4096, 1024) if tt < 2 else (3072, 768)
            return f"ds_read_b64_tr_b16 {vr(W + p*16 + tt*4 + h*2, 2)}, v{vwa+tt} offset:{kk*ks + h*hs}"
        return [xr(0), wr(0, 0), wr(0, 1), xr(1), wr(1, 0), wr(1, 1), wr(2, 0), wr(2, 1), wr(3, 0), wr(3, 1)]

    def stage(extra):
        for kk in range(4):
            p = kk % 2
            ops = read_ops((kk + 1) % 4)
            waits = {0: 7, 1: 8, 2: 8, 4: 10, 6: 10}
            if kk == 3:
                waits = {}
                a("s_waitcnt lgkmcnt(0)")
                skip = a.uid(f"{name}_a1last")
                if not extra:
                    a("s_cmp_eq_u32 s60, 9")
                    a(f"s_cbranch_scc1 {skip}")
                if X_P1:
                    a("s_memtime s[66:67]")
                    a("s_waitcnt lgkmcnt(0)")
                    a("s_sub_u32 s69, s69, s66")
                a("s_barrier")
                if X_P1:
                    a("s_memtime s[66:67]")
                    a("s_waitcnt lgkmcnt(0)")
                    a("s_add_u32 s69, s69, s66")
                a.label(skip)
            for k in range(7):
                if k in waits:
                    a(f"s_waitcnt lgkmcnt({waits[k]})")
                mf(p, k)
                if extra and kk * 7 + k < len(extra):
                    a(extra[kk * 7 + k])
                if k < 5:
                    a(ops[2*k])
                    a(ops[2*k+1])
                if kk == 2 and k == 4:
                    a("s_add_u32 s61, s61, 1")
                    a("s_cmp_eq_u32 s61, 3")
                    a("s_cselect_b32 s61, 0, s61")
                    a(f"s_cselect_b32 s62, {(-2*16384) & 0xffffffff:#x}, s63")
                    a(f"s_cselect_b32 s64, {(-2*12288) & 0xffffffff:#x}, s65")
                if kk == 2 and k == 5:
                    for r in range(vxa, vxa + 6):
                        a(f"v_add_u32 v{r}, s62, v{r}")
                if kk == 2 and k == 6:
                    for r in range(vxa + 6, vxa + 10):
                        a(f"v_add_u32 v{r}, s62, v{r}")
                    for r in (vwa + 2, vwa + 3):
                        a(f"v_add_u32 v{r}, s64, v{r}")

    loop = f"{name}_a1"
    a.raw(".p2align 6")
    a.label(loop)
    stage(None)
    a("s_add_u32 s60, s60, 1")
    a("s_cmp_lt_u32 s60, 10")
    a(f"s_cbranch_scc1 {loop}")
    assert vwa == vxa + 8
    a("s_waitcnt vmcnt(0) lgkmcnt(0)")
    stamp(a, 3)
    st = X
    rs = X + 8
    csr = W
    pk = vxa
    tmp = vxa + 4
    assert vxa % 2 == 0
    assert acc == vwa + 6
    sa = [vwa + 4, vwa + 5, t[7], t[8]]
    a("s_lshl_b32 s60, s52, 10")
    a("s_lshl_b32 s61, s53, 9")
    a("s_add_u32 s60, s60, s61")
    a(f"s_add_u32 s60, s60, {LSTAT}")
    a(f"v_lshl_add_u32 v{t[0]}, v2, 4, s60")
    a(f"v_xor_b32 v{t[9]}, 0x200, v{t[0]}")
    assert LSTAT % 1024 == 0
    a("s_mul_i32 s60, s53, 240")
    a(f"s_add_u32 s60, s60, {LCS}")
    a(f"v_lshl_add_u32 v{t[1]}, v3, 4, s60")
    a("s_mul_i32 s54, s47, 6")
    a("s_mul_i32 s60, s53, 3")
    a("s_add_u32 s54, s54, s60")
    a(f"s_mov_b32 s60, {hexf(QSCALE)}")
    for g in range(3):
        a(f"s_add_u32 s61, s54, {g}")
        a("s_cmp_lt_u32 s61, 32")
        a(f"s_cselect_b32 s{62+g}, s60, 1.0")
    a("s_mul_i32 s60, s3, 12288")
    a("s_mul_i32 s61, s53, 1536")
    a(f"v_mul_u32_u24 v{t[2]}, 48, v2")
    a(f"v_add_u32 v{t[2]}, s60, v{t[2]}")
    a(f"v_mul_u32_u24 v{t[3]}, 3040, v3")
    a(f"v_add_u32 v{t[4]}, s61, v{t[2]}")
    a(f"v_subrev_u32 v{t[2]}, s61, v{t[2]}")
    a(f"v_add_u32 v{t[2]}, 1536, v{t[2]}")
    a(f"v_lshl_add_u32 v{sa[0]}, v3, 3, v{t[4]}")
    a(f"v_add_u32 v{sa[1]}, v{t[3]}, v{t[4]}")
    a(f"v_lshl_add_u32 v{sa[2]}, v3, 3, v{t[2]}")
    a(f"v_add_u32 v{sa[3]}, v{t[3]}, v{t[2]}")
    a(f"v_mul_u32_u24 v{t[2]}, 48, v1")
    a(f"v_add_u32 v{t[2]}, s60, v{t[2]}")
    a(f"v_lshl_add_u32 v{t[3]}, v1, 4, s60")
    a(f"v_bfe_u32 v{t[5]}, v1, 2, 2")
    a(f"v_lshl_add_u32 v{t[5]}, v3, 3, v{t[5]}")
    a(f"v_mul_u32_u24 v{t[5]}, 48, v{t[5]}")
    a(f"v_bfe_u32 v{t[6]}, v1, 4, 1")
    a(f"v_lshl_add_u32 v{t[5]}, v{t[6]}, 5, v{t[5]}")
    a(f"v_and_b32 v{t[6]}, 3, v1")
    a(f"v_lshl_add_u32 v{t[5]}, v{t[6]}, 3, v{t[5]}")
    a(f"v_add_u32 v{t[5]}, s60, v{t[5]}")
    a("s_lshl_b32 s55, s46, 1")
    a("s_add_u32 s55, s55, s52")
    a("v_cmp_eq_u32 vcc, 1, v3")
    a("v_cmp_gt_u32 s[66:67], 21, v2")
    a(f"v_mov_b32 v{pk}, 0x3f803f80")
    a(f"v_mov_b32 v{pk+1}, 0x3f80")
    a(f"v_mov_b32 v{t[6]}, {LNONCE}")
    a("s_barrier")
    stamp(a, 4)
    if X_P1:
        a("s_waitcnt lgkmcnt(0)")
        a(f"s_add_u32 s{asmlib.SB+8}, s{asmlib.SB+2}, s69")
    a(f"ds_read_b128 {vr(st,4)}, v{t[0]}")
    a(f"ds_read_b128 {vr(st+4,4)}, v{t[9]}")
    for tp in range(2):
        for q in range(4):
            a(f"ds_read_b128 {vr(csr + tp*16 + q*4, 4)}, v{t[1]} offset:{tp*128 + q*32}")
    a(f"ds_read_b64 {vr(vn,2)}, v{t[6]}")
    for g in range(3):
        a(f"ds_write_b64 v{t[2]}, {vr(pk,2)} offset:{g*3072 + 40}")
    a("s_waitcnt lgkmcnt(12)" if not asmlib.STAMP else "s_waitcnt lgkmcnt(0)")
    for rt in range(2):
        for g in range(3):
            a(f"v_mul_f32 v{rs + rt*4 + g}, s{62+g}, v{st + rt*4 + 1}")
        a(f"v_cndmask_b32 v{rs + rt*4 + 3}, v{rs + rt*4}, v{rs + rt*4 + 1}, vcc")
    a("s_waitcnt lgkmcnt(3)")
    for tp in range(2):
        for rt in range(2):
            c = acc + (tp * 2 + rt) * 16
            for q in range(4):
                pc0 = 8 * tp + 2 * q
                g, d4 = pc0 // 5, pc0 % 5
                wrap = d4 == 4
                rsel = rs + rt * 4 + (3 if (wrap and g == 0) else g)
                rp, rsl = rsel & ~1, rsel & 1
                tb = tmp + (q % 2) * 4
                for i in range(2):
                    a(f"v_pk_fma_f32 {vr(tb+2*i,2)}, {vr(st + rt*4,2)}, {vr(csr + tp*16 + q*4 + 2*i,2)}, {vr(c + q*4 + 2*i,2)} op_sel_hi:[0,1,1]")
                for i in range(2):
                    a(f"v_pk_mul_f32 {vr(tb+2*i,2)}, {vr(tb+2*i,2)}, {vr(rp,2)} op_sel:[0,{rsl}] op_sel_hi:[1,{rsl}]")
                pb = pk + (q % 2) * 2
                a(f"v_cvt_pk_bf16_f32 v{pb}, v{tb}, v{tb+1}")
                a(f"v_cvt_pk_bf16_f32 v{pb+1}, v{tb+2}, v{tb+3}")
                a(f"ds_write_b64 v{sa[rt*2 + (1 if wrap else 0)]}, {vr(pb,2)} offset:{g*3072 + d4*8}")
    b1r = csr + 16

    def cb_reads(tsel):
        if tsel == 0:
            a("s_lshl_b32 s61, s53, 8")
        else:
            a("s_movk_i32 s61, 128")
        a(f"v_lshl_add_u32 v{t[8]}, v3, 4, s61")
        a(f"v_add_u32 v{t[9]}, {LCS + 512}, v{t[8]}")
        a(f"v_add_u32 v{t[8]}, {LB1}, v{t[8]}")
        for q in range(4):
            a(f"ds_read_b128 {vr(csr + q*4, 4)}, v{t[9]} offset:{q*32}")
            a(f"ds_read_b128 {vr(b1r + q*4, 4)}, v{t[8]} offset:{q*32}")

    a("s_waitcnt lgkmcnt(0)")
    for g in range(3):
        lv = f"{name}_v{g}"
        le = f"{name}_ve{g}"
        a(f"s_add_u32 s61, s54, {g}")
        a("s_cmp_ge_u32 s61, 64")
        a(f"s_cbranch_scc1 {lv}")
        for e in range(3):
            a(f"ds_read_b128 {vr(acc + g*16 + e*4, 4)}, v{t[3]} offset:{g*3072 + e*1024}")
        a("s_mul_i32 s60, s61, 98304")
        a("s_mul_i32 s61, s55, 3072")
        a("s_add_u32 s60, s60, s61")
        for e in range(3):
            a(f"s_waitcnt lgkmcnt({2-e})")
            a(f"buffer_store_dwordx4 {vr(acc + g*16 + e*4, 4)}, v{vl16}, s[4:7], s60 offen offset:{e*1024} sc1")
        a(f"s_branch {le}")
        a.label(lv)
        for e in range(4):
            for h in range(2):
                a(f"ds_read_b64_tr_b16 {vr(acc + g*16 + e*4 + h*2, 2)}, v{t[5]} offset:{g*3072 + e*768 + h*192}")
        a("s_sub_u32 s60, s61, 64")
        a("s_lshl_b32 s60, s60, 17")
        a("s_lshl_b32 s61, s55, 12")
        a("s_add_u32 s60, s60, s61")
        a(f"s_add_u32 s60, s60, {WS_VT}")
        a("s_mov_b64 exec, s[66:67]")
        for e in range(4):
            a(f"s_waitcnt lgkmcnt({6-2*e})")
            a(f"buffer_store_dwordx4 {vr(acc + g*16 + e*4, 4)}, v{vl16}, s[4:7], s60 offen offset:{e*1024} sc1")
        a("s_mov_b64 exec, -1")
        a.label(le)
    stamp(a, 5)
    cb_reads(0)
    u = acc + 48
    kc = t[0] if t[0] % 2 == 0 else t[1]
    assert kc + 1 in t
    k0 = -2.0 * math.log2(math.e) * math.sqrt(2.0 / math.pi)
    k1 = k0 * 0.044715
    a(f"v_mov_b32 v{kc}, {hexf(k1)}")
    a(f"v_mov_b32 v{kc+1}, {hexf(k0)}")
    a("s_mul_i32 s60, s3, 10240")
    a(f"s_add_u32 s60, s60, {LH}")
    a(f"v_add_u32 v{t[2]}, s60, v{vl16}")
    a("s_lshl_b32 s60, s47, 4")
    a("s_add_u32 s60, s60, s46")
    a("s_lshl_b32 s60, s60, 2")
    a("s_add_u32 s60, s60, s3")
    a("s_lshl_b32 s60, s60, 3")
    a(f"s_add_u32 s58, s60, {WS_FQ}")
    for k, (tile, rt) in enumerate(((4, 0), (5, 1), (6, 0))):
        c = acc + tile * 16
        sp = st + rt * 4 + 2
        if k != 1:
            a("s_waitcnt lgkmcnt(0)")
        for i in range(8):
            a(f"v_pk_fma_f32 {vr(u+2*i,2)}, {vr(sp,2)}, {vr(csr+2*i,2)}, {vr(b1r+2*i,2)} op_sel:[1,0,0] op_sel_hi:[1,1,1]")
        if k == 1:
            cb_reads(1)
        for i in range(8):
            a(f"v_pk_fma_f32 {vr(u+2*i,2)}, {vr(c+2*i,2)}, {vr(sp,2)}, {vr(u+2*i,2)} op_sel_hi:[1,0,1]")
        wv = c
        for i in range(8):
            a(f"v_pk_mul_f32 {vr(wv+2*i,2)}, {vr(u+2*i,2)}, {vr(u+2*i,2)}")
        for i in range(8):
            a(f"v_pk_fma_f32 {vr(wv+2*i,2)}, {vr(wv+2*i,2)}, {vr(kc,2)}, {vr(kc,2)} op_sel:[0,0,1] op_sel_hi:[1,0,1]")
        for i in range(8):
            a(f"v_pk_mul_f32 {vr(wv+2*i,2)}, {vr(wv+2*i,2)}, {vr(u+2*i,2)}")
        for i in range(16):
            a(f"v_exp_f32 v{wv+i}, v{wv+i}")
        if k == 1:
            a("s_waitcnt vmcnt(0)")
            put_flag(a, "s58", vz, vn)
            stamp(a, 6)
        for i in range(8):
            a(f"v_pk_add_f32 {vr(wv+2*i,2)}, {vr(wv+2*i,2)}, 1.0 op_sel_hi:[1,0]")
        for i in range(16):
            a(f"v_rcp_f32 v{wv+i}, v{wv+i}")
        for i in range(8):
            a(f"v_pk_mul_f32 {vr(u+2*i,2)}, {vr(u+2*i,2)}, {vr(wv+2*i,2)}")
        for i in range(8):
            a(f"v_cvt_pk_bf16_f32 v{wv+i}, v{u+2*i}, v{u+2*i+1}")
        a(f"ds_write_b128 v{t[2]}, {vr(wv,4)} offset:{k*2048}")
        a(f"ds_write_b128 v{t[2]}, {vr(wv+4,4)} offset:{k*2048 + 1024}")
    stamp(a, 7)
    R.release(mark)
    vk1 = R.alloc("vk1")
    vk2 = R.alloc("vk2")
    vvv = R.alloc("vvv")
    vq1 = R.alloc("vq1")
    vq2 = R.alloc("vq2")
    vmx = R.alloc("vmx", 2, 2)
    pk2 = R.alloc("pk2", 4, 2)
    S = R.alloc("S", 32, 4)
    P = R.alloc("P", 16, 4)
    K = R.alloc("K", 32, 4)
    V = R.alloc("V", 32, 4)
    Q = R.alloc("Q", 32, 4)
    AO = 0
    a(f"v_mul_u32_u24 v{t[0]}, 48, v2")
    a(f"v_lshl_add_u32 v{vq1}, v3, 4, v{t[0]}")
    a(f"v_lshlrev_b32 v{t[1]}, 30, v3")
    a(f"v_add3_u32 v{vq2}, v{t[0]}, v{t[1]}, 32")
    a(f"v_and_b32 v{t[2]}, 0x13, v2")
    a(f"v_bfe_u32 v{t[3]}, v2, 2, 1")
    a(f"v_lshl_or_b32 v{t[2]}, v{t[3]}, 3, v{t[2]}")
    a(f"v_bfe_u32 v{t[3]}, v2, 3, 1")
    a(f"v_lshl_or_b32 v{t[2]}, v{t[3]}, 2, v{t[2]}")
    a(f"v_mul_u32_u24 v{t[2]}, 48, v{t[2]}")
    a(f"v_lshl_add_u32 v{vk1}, v3, 4, v{t[2]}")
    a(f"v_add3_u32 v{vk2}, v{t[2]}, v{t[1]}, 32")
    a("v_cmp_lt_u32 vcc, 20, v2")
    a(f"v_mov_b32 v{t[3]}, 0x40000000")
    a("v_cmp_eq_u32 s[56:57], 0, v3")
    a(f"v_cndmask_b32 v{t[3]}, 0, v{t[3]}, vcc")
    a(f"v_add_u32 v{vvv}, v{t[3]}, v{vl16}")
    def gword(dst, add):
        a(f"s_add_u32 s60, s48, {add}")
        a("s_mul_i32 s61, s60, 43")
        a("s_lshr_b32 s61, s61, 8")
        a("s_mul_i32 s62, s61, 6")
        a("s_sub_u32 s62, s60, s62")
        a("s_cmp_ge_u32 s62, 3")
        a("s_cselect_b32 s62, 16, 0")
        a("s_lshl_b32 s61, s61, 9")
        a(f"s_add_u32 s{dst}, s61, s62")
    gword(63, 32)
    gword(64, 64)
    gword(65, 0)
    a(f"v_lshrrev_b32 v{t[4]}, 1, v2")
    a(f"v_lshlrev_b32 v{t[4]}, 5, v{t[4]}")
    a(f"v_and_b32 v{t[5]}, 1, v2")
    a(f"v_lshl_add_u32 v{t[4]}, v{t[5]}, 3, v{t[4]}")
    a(f"v_mov_b32 v{t[5]}, s63")
    a(f"v_mov_b32 v{t[6]}, s64")
    a(f"v_cndmask_b32 v{t[5]}, v{t[6]}, v{t[5]}, s[56:57]")
    a(f"v_add_u32 v{t[5]}, v{t[5]}, v{t[4]}")
    a(f"v_add_u32 v{t[4]}, s65, v{t[4]}")
    a(f"s_mul_i32 s60, s48, {GSTRIDE}")
    a(f"s_add_u32 s54, s60, {WS_QK + 32*GSTRIDE}")
    a("s_lshl_b32 s61, s49, 1")
    a("s_add_u32 s61, s61, s52")
    a("s_mul_i32 s61, s61, 6144")
    a("s_add_u32 s55, s60, s61")
    a("s_mul_i32 s61, s53, 49152")
    a("s_add_u32 s62, s54, s61")
    a("s_lshl_b32 s60, s48, 17")
    a("s_lshl_b32 s61, s53, 16")
    a("s_add_u32 s63, s60, s61")
    a(f"s_add_u32 s63, s63, {WS_VT}")
    for i in range(64):
        a(f"v_accvgpr_write_b32 a{AO+i}, 0")
    for qt in range(4):
        a(f"v_mov_b32 v{Q+qt*8+6}, 0")
        a(f"v_mov_b32 v{Q+qt*8+7}, 0")
    a(f"v_mov_b32 v{t[6]}, {LFLAG}")
    stamp(a, 8)
    a(f"s_mov_b32 s61, {WS_FQ}")
    poll(a, name + "_fq", t[5], "s61", pk2, vr(vn, 2), extra=t[4])
    stamp(a, 9)
    a("s_mov_b32 s58, 1")
    a("s_waitcnt vmcnt(0)")

    def kload(buf, soff, off=0, SC=" sc1"):
        a(f"buffer_load_dwordx4 {vr(K + buf*8, 4)}, v{vk1}, s[4:7], {soff} offen offset:{off}{SC}")
        a(f"buffer_load_dwordx4 {vr(K + buf*8 + 4, 4)}, v{vk2}, s[4:7], {soff} offen offset:{off}{SC}")

    def vload(buf, soff, off=0, SC=" sc1"):
        a(f"buffer_load_dwordx4 {vr(V + buf*8, 4)}, v{vvv}, s[4:7], {soff} offen offset:{off}{SC}")
        a(f"buffer_load_dwordx4 {vr(V + buf*8 + 4, 4)}, v{vvv}, s[4:7], {soff} offen offset:{off + 1024}{SC}")

    def qk(dst, kbuf, qt, part):
        c = "0" if part == 0 else vr(dst, 16)
        a(f"v_mfma_f32_32x32x16_bf16 {vr(dst,16)}, {vr(K + kbuf*8 + part*4, 4)}, {vr(Q + qt*8 + part*4, 4)}, {c}")

    def pv(qt, pb, vbuf, part):
        a(f"v_mfma_f32_32x32x16_bf16 {ar(AO + qt*16,16)}, {vr(V + vbuf*8 + part*4, 4)}, {vr(P + pb*8 + part*4, 4)}, {ar(AO + qt*16,16)}")

    def first_loads():
        kload(0, "s62")
        vload(0, "s63")
        kload(1, "s62", 1536)
        vload(1, "s63", 2048)
        a("s_add_u32 s64, s62, 3072")
        a("s_add_u32 s65, s63, 4096")
        kload(2, "s64")
        vload(2, "s65")

    for i in range(4):
        a("s_lshl_b32 s60, s53, 1")
        a(f"s_add_u32 s60, s60, {i}")
        a("s_and_b32 s60, s60, 3")
        a("s_mul_i32 s60, s60, 1536")
        a("s_add_u32 s60, s60, s55")
        a(f"buffer_load_dwordx4 {vr(Q + i*8, 4)}, v{vq1}, s[4:7], s60 offen sc1")
        a(f"buffer_load_dwordx2 {vr(Q + i*8 + 4, 2)}, v{vq2}, s[4:7], s60 offen sc1")
        if i == 0:
            kload(0, "s62")
    vload(0, "s63")
    kload(1, "s62", 1536)
    vload(1, "s63", 2048)
    a("s_add_u32 s64, s62, 3072")
    a("s_add_u32 s65, s63, 4096")
    kload(2, "s64")
    vload(2, "s65")
    first = f"{name}_first"
    a("s_waitcnt vmcnt(8) lgkmcnt(0)")
    a("s_barrier")
    a(f"s_branch {first}")
    restart = f"{name}_restart"
    a.label(restart)
    for i in range(64):
        a(f"v_accvgpr_write_b32 a{AO+i}, 0")
    a(f"v_mov_b32 v{vmx}, 0xff800000")
    a(f"v_mov_b32 v{vmx+1}, 0xff800000")
    a("s_mov_b32 s60, s54")
    a("s_mov_b32 s61, s58")
    a("s_lshl_b32 s64, s52, 12")
    a("s_lshl_b32 s65, s53, 10")
    a("s_add_u32 s64, s64, s65")
    a(f"s_add_u32 s64, s64, {LM}")
    a(f"v_lshl_add_u32 v{t[4]}, v1, 3, s64")
    mx = f"{name}_mx"
    a.label(mx)
    kload(3, "s60")
    a("s_waitcnt vmcnt(0)")
    for qt in range(2):
        qk(S + qt*16, 3, qt, 0)
        qk(S + qt*16, 3, qt, 1)
    a("s_nop 7")
    a("s_add_u32 s60, s60, 1536")
    a("s_sub_u32 s61, s61, 1")
    for qt in range(2):
        for i in range(8):
            a(f"v_max3_f32 v{vmx+qt}, v{S+qt*16+2*i}, v{S+qt*16+2*i+1}, v{vmx+qt}")
    a("s_cmp_lg_u32 s61, 0")
    a(f"s_cbranch_scc1 {mx}")
    for qt in range(2):
        m = vmx + qt
        a(f"v_mov_b32 v{t[2]}, v{m}")
        a(f"v_mov_b32 v{t[3]}, v{m}")
        a("s_nop 1")
        a(f"v_permlane32_swap_b32 v{t[2]}, v{t[3]}")
        a("s_nop 1")
        a(f"v_max_f32 v{m}, v{t[2]}, v{t[3]}")
        a(f"v_sub_f32 v{m}, 0, v{m}")
        a(f"v_and_b32 v{t[2]}, 0xffff0000, v{m}")
        a(f"v_sub_f32 v{m}, v{m}, v{t[2]}")
        a(f"v_and_b32 v{t[3]}, 0xffff0000, v{m}")
        a(f"v_sub_f32 v{m}, v{m}, v{t[3]}")
        a(f"v_lshrrev_b32 v{t[2]}, 16, v{t[2]}")
        a(f"v_or_b32 v{t[2]}, v{t[2]}, v{t[3]}")
        a(f"v_lshrrev_b32 v{t[3]}, 16, v{m}")
        a(f"v_cndmask_b32 v{pk2}, 0, v{t[2]}, s[56:57]")
        a(f"v_cndmask_b32 v{pk2+1}, 0, v{t[3]}, s[56:57]")
        a(f"ds_write_b64 v{t[4]}, {vr(pk2,2)} offset:{qt*512}")
        a(f"ds_write_b64 v{t[4]}, {vr(pk2,2)} offset:{qt*512 + 2048}")
    first_loads()
    a("s_waitcnt lgkmcnt(0)")
    a("s_barrier")
    for i in range(4):
        a(f"ds_read_b64 {vr(Q + i*8 + 6, 2)}, v{t[4]} offset:{i*512}")
    a.label(first)
    for i in range(4):
        a(f"v_mov_b32 v{V+28+i}, 0")
        a(f"v_mov_b32 v{P+12+i}, 0")
    a("s_waitcnt vmcnt(8) lgkmcnt(0)")
    stamp(a, 10)
    qk(S, 0, 0, 0)
    qk(S, 0, 0, 1)
    a("s_add_u32 s64, s62, 4608")
    a("s_add_u32 s65, s63, 6144")
    a("s_mov_b32 s60, 0")
    a("s_nop 6")

    def unit(uu, hooks):
        buf, u = uu // 4, uu % 4
        sb = u % 2
        Xs = S + sb * 16
        Y = S + (1 - sb) * 16
        nq = (u + 1) % 4
        kb = buf if u < 3 else (buf + 1) % 4
        pq = (u - 1) % 4
        pvb = buf if u > 0 else (buf - 1) % 4
        def e(r):
            for i in r: a(f"v_exp_f32 v{Xs+i}, v{Xs+i}")
        def c(r):
            for i in r: a(f"v_cvt_pk_bf16_f32 v{P+sb*8+i}, v{Xs+2*i}, v{Xs+2*i+1}")
        def h(k):
            if k in hooks: hooks[k]()
        h(0)
        qk(Y, kb, nq, 0)
        e(range(4))
        qk(Y, kb, nq, 1)
        e(range(4, 8))
        pv(pq, 1 - sb, pvb, 1)
        h(1)
        c(range(4))
        e(range(8, 12))
        pv(u, sb, buf, 0)
        h(2)
        e(range(12, 16))
        c(range(4, 8))

    loop = f"{name}_loop"
    a.raw(".p2align 6")
    a.label(loop)
    for uu in range(16):
        tl, u = uu // 4, uu % 4
        hk = {}
        if u == 0:
            if not X_NOKV:
                hk[1] = lambda tl=tl: kload((tl + 3) % 4, "s64", (tl % 2) * 1536, "")
                hk[2] = lambda tl=tl: vload((tl + 3) % 4, "s65", (tl % 2) * 2048, "")
        if u == 1 and tl % 2 == 1:
            hk[1] = lambda: a("s_add_u32 s64, s64, 3072")
            hk[2] = lambda: a("s_add_u32 s65, s65, 4096")
        if uu == 1:
            def hw():
                a("s_cmp_eq_u32 s60, 7")
                a("s_cselect_b32 s64, s62, s64")
            hk[1] = hw
            hk[2] = lambda: a("s_cselect_b32 s65, s63, s65")
        if u == 3:
            hk[0] = lambda: a("s_waitcnt vmcnt(8)")
        if uu == 14:
            hk[1] = lambda: a("s_add_u32 s60, s60, 1")
            hk[2] = lambda: a("s_cmp_lt_u32 s60, 8")
        unit(uu, hk)
    a(f"s_cbranch_scc1 {loop}")
    a("s_nop 1")
    pv(3, 1, 3, 1)
    stamp(a, 11)
    a("s_xor_b32 s60, s3, 2")
    a("s_mul_i32 s60, s60, 6144")
    a(f"s_add_u32 s60, s60, {LC}")
    a(f"v_add_u32 v{t[0]}, s60, v{vl16}")
    a("s_mul_i32 s60, s3, 6144")
    a(f"s_add_u32 s60, s60, {LC}")
    a(f"v_add_u32 v{t[3]}, s60, v{vl16}")
    a(f"s_mov_b32 s60, {hexf(2.0**100)}")
    a("s_nop 3")
    for j in range(3):
        a(f"ds_write_b128 v{t[0]}, {ar(AO + 32 + j*4, 4)} offset:{j*1024}")
    for i in range(4):
        a(f"v_accvgpr_read_b32 v{S+i}, a{AO + i*16 + 8}")
    for j in range(3):
        a(f"ds_write_b128 v{t[0]}, {ar(AO + 48 + j*4, 4)} offset:{3072 + j*1024}")
    a(f"v_min_f32 v{S+4}, v{S}, v{S+1}")
    a(f"v_min3_f32 v{S+4}, v{S+4}, v{S+2}, v{S+3}")
    for i in range(1, 4):
        a(f"v_add_f32 v{S}, v{S}, v{S+i}")
    a(f"s_mov_b32 s61, {hexf(2.0**-60)}")
    a(f"v_cmp_nge_f32 vcc, s60, v{S}")
    a(f"v_cmp_nle_f32 s[66:67], s61, v{S+4}")
    a("s_or_b64 vcc, vcc, s[66:67]")
    a("s_andn2_b64 vcc, vcc, s[56:57]")
    nb = f"{name}_notbad"
    if X_NOKV: a("s_branch " + nb)
    a("s_cbranch_vccz " + nb)
    a(f"v_mov_b32 v{t[7]}, 1")
    a(f"ds_write_b32 v{t[6]}, v{t[7]}")
    a.label(nb)
    a("s_lshl_b32 s60, s49, 3")
    a("s_lshl_b32 s61, s52, 2")
    a("s_add_u32 s60, s60, s61")
    a("s_lshl_b32 s61, s53, 1")
    a("s_add_u32 s60, s60, s61")
    a("s_lshr_b32 s66, s60, 1")
    a("s_mul_i32 s60, s60, 40960")
    a(f"s_add_u32 s60, s60, {WS_O}")
    a("s_lshl_b32 s64, s48, 10")
    a("s_add_u32 s64, s64, s60")
    a("s_lshr_b32 s65, s48, 2")
    a("s_add_u32 s65, s65, 32")
    a("s_lshl_b32 s65, s65, 10")
    a("s_add_u32 s65, s65, s60")
    a("s_bfe_u32 s60, s48, 0x10001")
    a("s_lshl_b32 s60, s60, 9")
    a("s_add_u32 s65, s65, s60")
    a("s_and_b32 s60, s48, 1")
    a("s_lshl_b32 s60, s60, 3")
    a("s_add_u32 s65, s65, s60")
    a("s_lshl_b32 s66, s66, 8")
    a("s_lshl_b32 s60, s48, 3")
    a("s_add_u32 s66, s66, s60")
    a(f"s_add_u32 s66, s66, {WS_FO}")
    a("s_waitcnt vmcnt(0)")
    for i in range(24):
        a(f"v_accvgpr_read_b32 v{P + i}, a{AO + (i//12)*16 + i%12}")
    a("s_waitcnt lgkmcnt(0)")
    a("s_barrier")
    a(f"ds_read_b32 v{t[7]}, v{t[6]}")
    for k in range(6):
        a(f"ds_read_b128 {vr(S + k*4, 4)}, v{t[3]} offset:{k*1024}")
    a("s_waitcnt lgkmcnt(6)")
    a(f"v_readfirstlane_b32 s60, v{t[7]}")
    fin = f"{name}_fin"
    a("s_cmp_eq_u32 s60, 0")
    a(f"s_cbranch_scc1 {fin}")
    a("s_cmp_eq_u32 s58, 64")
    a(f"s_cbranch_scc1 {fin}")
    a("s_mov_b32 s58, 64")
    a("s_waitcnt lgkmcnt(0)")
    a("s_barrier")
    a(f"s_branch {restart}")
    a.label(fin)
    a("s_waitcnt lgkmcnt(0)")
    for qt in range(2):
        o = S + qt * 12
        for i in range(6):
            a(f"v_pk_add_f32 {vr(o+2*i,2)}, {vr(o+2*i,2)}, {vr(P + qt*12 + 2*i,2)}")
        a(f"v_rcp_f32 v{t[0]}, v{o+8}")
        a("s_nop 0")
        a(f"v_mov_b32 v{t[1]}, v{t[0]}")
        a("s_nop 1")
        a(f"v_permlane32_swap_b32 v{t[0]}, v{t[1]}")
        a("s_nop 1")
        for i in range(12):
            a(f"v_mul_f32 v{o+i}, v{o+i}, v{t[1]}")
        pq_ = V + qt * 8
        for i in range(6):
            a(f"v_cvt_pk_bf16_f32 v{pq_+i}, v{o+2*i}, v{o+2*i+1}")
        a(f"buffer_store_dwordx4 {vr(pq_,4)}, v{vl16}, s[4:7], s64 offen sc1")
        a("s_mov_b64 exec, s[56:57]")
        a(f"buffer_store_dwordx2 {vr(pq_+4,2)}, v{vl16}, s[4:7], s65 offen sc1")
        a("s_mov_b64 exec, -1")
        if qt == 0:
            a("s_add_u32 s64, s64, 40960")
            a("s_add_u32 s65, s65, 40960")
    a("s_waitcnt vmcnt(0)")
    put_flag(a, "s66", vz, vn)
    stamp(a, 12)
    stamp_flush(a, 13, 4, 0, 4, 5)
    dbg_flush(a, 13, [2, 3, 6, 7, 9, 10, 11], 2, 0, 37, 4, 5)


def gen_b(a, name):
    R = Regs(4, ACCUM)
    t = [R.alloc(f"t{i}") for i in range(14)]
    vn = R.alloc("vn", 2, 2)
    vz = R.alloc("vz")
    vl16 = R.alloc("vl16")
    vl4 = R.alloc("vl4")
    vid = R.alloc("vid", 3)
    AD0 = R.alloc("AD", 12, 2)
    vrr = AD0
    vrc = AD0 + 3
    LA = R.alloc("LA", 5)
    GA = R.alloc("GA", 5)
    BO = R.alloc("BO", 5)
    XB = R.alloc("XB", 20, 2)
    mark = R.mark()
    vx = R.alloc("vx", 4)
    vq = R.alloc("vq", 4)
    v1_ = R.alloc("v1", 3)
    D = R.alloc("D", 44, 4)
    ac = R.alloc("ac", 8, 4)
    E = R.alloc("E", 24, 4)
    XR = R.alloc("XR", 20, 2)
    a("s_setprio 3")
    a("s_sub_u32 s52, s3, 4")
    a(f"v_lshrrev_b32 v{t[0]}, 3, v1")
    a(f"v_mul_u32_u24 v{t[0]}, 1280, v{t[0]}")
    a(f"v_and_b32 v{t[1]}, 7, v1")
    a(f"v_lshl_add_u32 v{t[12]}, v{t[1]}, 4, v{t[0]}")
    a(f"v_lshrrev_b32 v{t[2]}, 4, v1")
    a(f"v_xor_b32 v{t[3]}, v{t[1]}, v{t[2]}")
    a(f"v_xor_b32 v{t[4]}, 4, v{t[3]}")
    for e in range(4):
        a(f"v_lshl_add_u32 v{vx+e}, v{t[3 + (e%2)]}, 4, v{t[0]}")
        if e:
            a(f"v_add_u32 v{vx+e}, {e*(10240-1024)}, v{vx+e}")
    a(f"v_mul_u32_u24 v{t[0]}, 3840, v{t[2]}")
    a(f"v_and_b32 v{t[1]}, 15, v1")
    a(f"v_lshlrev_b32 v{t[3]}, 2, v{t[2]}")
    a(f"v_xor_b32 v{t[1]}, v{t[1]}, v{t[3]}")
    a(f"v_lshl_add_u32 v{vq}, v{t[1]}, 4, v{t[0]}")
    for e in range(1, 4):
        a(f"v_add_u32 v{vq+e}, {e*(4*3840-1024)}, v{vq}")
    for e in range(3):
        a(f"v_add_u32 v{t[0]}, {64*e}, v1")
        a(f"v_mul_u32_u24 v{t[1]}, 43691, v{t[0]}")
        a(f"v_lshrrev_b32 v{t[1]}, 19, v{t[1]}")
        a(f"v_mul_u32_u24 v{t[2]}, 12, v{t[1]}")
        a(f"v_sub_u32 v{t[2]}, v{t[0]}, v{t[2]}")
        a(f"v_mov_b32 v{vrr+e}, v{t[1]}")
        a(f"v_lshlrev_b32 v{vrc+e}, 4, v{t[2]}")
        a(f"v_mul_u32_u24 v{t[1]}, 3072, v{t[1]}")
        a(f"v_lshl_add_u32 v{v1_+e}, v{t[2]}, 4, v{t[1]}")
        if e:
            a(f"v_subrev_u32 v{v1_+e}, {1024*e}, v{v1_+e}")
    a("s_lshl_b32 s60, s46, 2")
    a("s_add_u32 s60, s60, s52")
    a("s_mul_i32 s53, s60, 40960")
    a("s_mul_i32 s54, s52, 61440")
    a("s_mul_i32 s60, s47, 240")
    a("s_add_u32 s54, s54, s60")
    a("s_mul_i32 s55, s52, 49152")
    a("s_mul_i32 s60, s47, 192")
    a("s_add_u32 s55, s55, s60")
    a("s_lshl_b32 s56, s52, 12")
    a("s_mul_i32 s57, s52, 3072")
    a(f"s_add_u32 s57, s57, {L1}")
    a("s_mov_b32 s58, 0")
    a("s_mov_b32 s59, 0")
    a(f"v_mov_b32 v{vz}, 0")
    a(f"v_lshlrev_b32 v{vl16}, 4, v1")
    a(f"v_lshlrev_b32 v{vl4}, 2, v1")
    a("s_waitcnt lgkmcnt(0)")
    srd(a, 8, 24, 2048 * 640 * 2)
    srd(a, 12, 26, 640 * 1920 * 2)
    srd(a, 16, 32, 640 * 1536 * 2)

    def issue():
        a("s_add_u32 m0, s56, s58")
        a("s_nop 0")
        for e in range(4):
            a(f"buffer_load_dwordx4 v{vx+e}, s[8:11], s53 offen offset:{e*1024} lds")
        a(f"s_add_u32 m0, m0, {LQ}")
        a("s_add_u32 s53, s53, 128")
        for e in range(4):
            a(f"buffer_load_dwordx4 v{vq+e}, s[12:15], s54 offen offset:{e*1024} lds")
        a("s_add_u32 m0, s57, s59")
        a("s_add_u32 s54, s54, 245760")
        for e in range(3):
            a(f"buffer_load_dwordx4 v{v1_+e}, s[16:19], s55 offen offset:{e*1024} lds")
        a("s_add_u32 s55, s55, 196608")
        a("s_add_u32 s58, s58, 16384")
        a("s_add_u32 s59, s59, 12288")
        a("s_cmp_eq_u32 s58, 49152")
        a("s_cselect_b32 s58, 0, s58")
        a("s_cselect_b32 s59, 0, s59")

    issue()
    srd(a, 4, 44, WS_BYTES)
    srd(a, 20, 42, 256)
    nn = f"{name}_nononce"
    a("s_lshl_b32 s60, s2, 2")
    a("s_add_u32 s60, s60, s52")
    a("s_cmp_lg_u32 s60, 3")
    a(f"s_cbranch_scc1 {nn}")
    a("s_memrealtime s[60:61]")
    a("s_waitcnt lgkmcnt(0)")
    a("s_or_b32 s60, s60, 1")
    a(f"v_mov_b32 v{vn}, s60")
    a(f"v_mov_b32 v{vn+1}, s61")
    a("s_mov_b64 exec, 1")
    a(f"buffer_store_dwordx2 {vr(vn,2)}, v{vz}, s[20:23], 0 offen sc1")
    a("s_mov_b64 exec, -1")
    a.label(nn)
    issue()

    def get_nonce():
        lp, go = a.uid(name + "_np"), a.uid(name + "_ng")
        a(f"s_mov_b32 s68, {SPIN_MAX}")
        a.label(lp)
        a(f"v_cmp_ne_u32 vcc, 0, v{vn}")
        a(f"s_cbranch_vccnz {go}")
        a("s_sub_u32 s68, s68, 1")
        a("s_cmp_eq_u32 s68, 0")
        a(f"s_cbranch_scc1 {go}")
        a(f"buffer_load_dwordx2 {vr(vn,2)}, v{vz}, s[20:23], 0 offen sc1")
        a("s_waitcnt vmcnt(0)")
        a(f"s_branch {lp}")
        a.label(go)

    def fprep():
        for it in range(5):
            a(f"v_add_u32 v{t[0]}, {it*256 - 256}, v0")
            a(f"v_mul_u32_u24 v{t[1]}, 52429, v{t[0]}")
            a(f"v_lshrrev_b32 v{t[1]}, 20, v{t[1]}")
            a(f"v_mul_u32_u24 v{t[2]}, 20, v{t[1]}")
            a(f"v_sub_u32 v{t[2]}, v{t[0]}, v{t[2]}")
            a(f"v_mul_u32_u24 v{t[3]}, {RS}, v{t[1]}")
            a(f"v_lshl_add_u32 v{LA+it}, v{t[2]}, 4, v{t[3]}")
            a(f"v_mul_u32_u24 v{t[3]}, 1280, v{t[1]}")
            a(f"v_lshl_add_u32 v{GA+it}, v{t[2]}, 3, v{t[3]}")
            a(f"v_lshlrev_b32 v{BO+it}, 3, v{t[2]}")

    fprep()

    def rt_fetch(slot_sgpr_expr, usg):
        lw, lt, lg = a.uid("rtw"), a.uid("rtt"), a.uid("rtg")
        a(f"s_mul_hi_u32 s60, s{usg}, {-(-2**32 // 136)}")
        a("s_mul_i32 s61, s60, 136")
        a(f"s_sub_u32 s61, s{usg}, s61")
        a("s_mul_i32 s60, s60, 160")
        a("s_cmp_ge_u32 s61, 96")
        a(f"s_cbranch_scc1 {lw}")
        srd(a, 64, 36, 1536 * 640 * 2)
        a("s_mul_i32 s61, s61, 20480")
        for e in range(3):
            a(f"v_mov_b32 v{t[e]}, v{vrr+e}")
        a(f"s_branch {lg}")
        a.label(lw)
        srd(a, 64, 28, 640 * 640 * 2)
        a("s_cmp_ge_u32 s61, 128")
        a(f"s_cbranch_scc1 {lt}")
        a("s_sub_u32 s61, s61, 96")
        a("s_mul_i32 s61, s61, 25600")
        for e in range(3):
            a(f"v_mov_b32 v{t[e]}, v{vrr+e}")
        a(f"s_branch {lg}")
        a.label(lt)
        a("s_sub_u32 s61, s61, 128")
        a("s_mul_i32 s61, s61, 102400")
        for e in range(3):
            a(f"v_bfe_u32 v{t[3]}, v{vrr+e}, 2, 1")
            a(f"v_bfe_u32 v{t[4]}, v{vrr+e}, 3, 1")
            a(f"v_lshl_add_u32 v{t[3]}, v{t[3]}, 1, v{t[4]}")
            a(f"v_mul_u32_u24 v{t[3]}, 20, v{t[3]}")
            a(f"v_and_b32 v{t[4]}, 3, v{vrr+e}")
            a(f"v_add3_u32 v{t[e]}, v{t[3]}, v{t[4]}, 16")
        a.label(lg)
        a("s_add_u32 s61, s61, s60")
        a(slot_sgpr_expr)
        for e in range(3):
            a(f"v_mul_u32_u24 v{t[e]}, 1280, v{t[e]}")
            a(f"v_add_u32 v{t[e]}, v{t[e]}, v{vrc+e}")
        for e in range(3):
            a(f"buffer_load_dwordx4 v{t[e]}, s[64:67], s61 offen lds")
            if e < 2:
                a("s_add_u32 m0, m0, 1024")
                a("s_nop 0")

    a("s_waitcnt vmcnt(11)")
    a("s_barrier")
    issue()
    a("s_lshl_b32 s62, s52, 8")
    a("s_add_u32 s62, s62, s2")
    a("s_mul_i32 s69, s52, 3072")
    rt_fetch(f"s_add_u32 m0, s69, {LRT}", 62)
    a("s_add_u32 s63, s62, 1024")
    n2 = f"{name}_no2"
    a("s_cmp_ge_u32 s62, 64")
    a(f"s_cbranch_scc1 {n2}")
    rt_fetch(f"s_mov_b32 m0, {LRT + 4*3072}", 63)
    a.label(n2)
    a(f"buffer_load_dwordx2 {vr(vn,2)}, v{vz}, s[20:23], 0 offen sc1")
    srd(a, 64, 38, 640 * 2)
    a("s_mul_i32 s60, s50, 81920")
    a("s_mul_i32 s61, s51, 160")
    a("s_add_u32 s60, s60, s61")
    for it in range(5):
        a(f"buffer_load_dwordx2 {vr(XR+4*it,2)}, v{GA+it}, s[8:11], s60 offen")
        a(f"buffer_load_dwordx2 {vr(XR+4*it+2,2)}, v{BO+it}, s[64:67], s61 offen")
    nl = 3 + 1 + 10
    a(f"v_lshlrev_b32 v{t[8]}, 3, v1")

    def by_role(f0, f12, f3):
        l12, l3, le = a.uid("r12"), a.uid("r3"), a.uid("re")
        a("s_cmp_eq_u32 s52, 3")
        a(f"s_cbranch_scc1 {l3}")
        a("s_cmp_lg_u32 s52, 0")
        a(f"s_cbranch_scc1 {l12}")
        f0()
        a(f"s_branch {le}")
        a.label(l12)
        f12()
        a(f"s_branch {le}")
        a.label(l3)
        f3()
        a.label(le)

    def pub0():
        a(f"v_and_b32 v{t[0]}, 7, v1")
        a(f"v_lshlrev_b32 v{t[0]}, 4, v{t[0]}")
        a(f"v_add_u32 v{t[1]}, {LPUB}, v{t[0]}")
        a(f"ds_read_b128 {vr(D,4)}, v{t[1]}")
        a("s_lshl_b32 s60, s46, 4")
        a("s_add_u32 s60, s60, s47")
        a("s_lshl_b32 s62, s60, 3")
        a(f"s_add_u32 s62, s62, {WS_FSR}")
        a("s_lshl_b32 s60, s60, 7")
        a(f"s_add_u32 s60, s60, {WS_ST}")
        a("s_waitcnt lgkmcnt(0)")
        a(f"buffer_store_dwordx4 {vr(D,4)}, v{t[0]}, s[4:7], s60 offen sc1")

    def pub12():
        a("s_lshl_b32 s61, s52, 11")
        a(f"s_add_u32 s60, s61, {LPUB + 128 - 2048}")
        a(f"v_add_u32 v{t[1]}, s60, v{t[8]}")
        for r4 in range(4):
            a(f"ds_read_b64 {vr(D + 2*r4, 2)}, v{t[1]} offset:{r4*512}")
        a("s_lshl_b32 s60, s47, 4")
        a("s_add_u32 s60, s60, s46")
        a("s_lshl_b32 s62, s60, 3")
        a("s_add_u32 s62, s62, s61")
        a(f"s_add_u32 s62, s62, {WS_FSC - 2048}")
        a("s_lshl_b32 s60, s60, 10")
        a("s_lshr_b32 s61, s61, 2")
        a("s_add_u32 s60, s60, s61")
        a(f"s_add_u32 s60, s60, {WS_CS - 512}")
        a("s_waitcnt lgkmcnt(0)")
        for r4 in range(1, 4):
            a(f"v_pk_add_f32 {vr(D,2)}, {vr(D,2)}, {vr(D+2*r4,2)}")
        a(f"buffer_store_dwordx2 {vr(D,2)}, v{t[8]}, s[4:7], s60 offen sc1")

    def flag012():
        put_flag(a, "s62", vz, vn)

    def nonce3():
        a(f"v_mov_b32 v{t[0]}, {LNONCE}")
        a(f"ds_write_b64 v{t[0]}, {vr(vn,2)}")

    def xb_calc():
        for it in range(5):
            for h in range(2):
                x_, b_ = XR + 4*it + h, XR + 4*it + 2 + h
                a(f"v_lshlrev_b32 v{t[9]}, 16, v{x_}")
                a(f"v_lshlrev_b32 v{t[10]}, 16, v{b_}")
                a(f"v_add_f32 v{XB+it*4+2*h}, v{t[9]}, v{t[10]}")
                a(f"v_and_b32 v{t[9]}, 0xffff0000, v{x_}")
                a(f"v_and_b32 v{t[10]}, 0xffff0000, v{b_}")
                a(f"v_add_f32 v{XB+it*4+2*h+1}, v{t[9]}, v{t[10]}")

    def g1_0():
        a("s_lshl_b32 s60, s46, 7")
        a(f"s_add_u32 s60, s60, {WS_FSR}")
        poll(a, name + "_sr", t[0], "s60", D, vr(vn, 2))
        a("s_lshl_b32 s60, s46, 11")
        a(f"s_add_u32 s60, s60, {WS_ST}")
        a("s_waitcnt vmcnt(0)")
        a(f"buffer_load_dwordx4 {vr(D,4)}, v{vl16}, s[4:7], s60 offen sc1")
        a(f"buffer_load_dwordx4 {vr(D+4,4)}, v{vl16}, s[4:7], s60 offen offset:1024 sc1")

    def g1_12():
        a("s_lshl_b32 s61, s52, 11")
        a("s_lshl_b32 s60, s47, 7")
        a("s_add_u32 s60, s60, s61")
        a(f"s_add_u32 s60, s60, {WS_FSC - 2048}")
        poll(a, name + "_sc", t[0], "s60", D, vr(vn, 2))
        a("s_lshl_b32 s60, s47, 14")
        a("s_lshr_b32 s61, s61, 2")
        a("s_add_u32 s60, s60, s61")
        a(f"s_add_u32 s60, s60, {WS_CS - 512}")
        a("s_waitcnt vmcnt(0)")
        for m in range(16):
            a(f"buffer_load_dwordx2 {vr(D + 2*m, 2)}, v{t[8]}, s[4:7], s60 offen offset:{(m%4)*1024} sc1")
            if m % 4 == 3 and m < 15:
                a("s_add_u32 s60, s60, 4096")

    def g2_0():
        a(f"v_add_u32 v{t[0]}, {LSTAT}, v{vl16}")
        a(f"ds_write_b128 v{t[0]}, {vr(D,4)}")
        a(f"ds_write_b128 v{t[0]}, {vr(D+4,4)} offset:1024")

    def g2_12():
        a("s_lshl_b32 s61, s52, 9")
        a(f"s_add_u32 s61, s61, {LCS - 512}")
        a(f"v_add_u32 v{t[0]}, s61, v{t[8]}")
        for m in range(1, 16):
            a(f"v_pk_add_f32 {vr(D,2)}, {vr(D,2)}, {vr(D+2*m,2)}")
        a(f"ds_write_b64 v{t[0]}, {vr(D,2)}")

    nop = lambda: None
    a(f"s_waitcnt vmcnt({11 + nl})")
    a("s_barrier")
    issue()
    by_role(pub0, pub12, nop)
    a(f"s_waitcnt vmcnt({11 + nl})")
    a("s_barrier")
    issue()
    for i in range(64):
        a(f"v_accvgpr_write_b32 a{i}, 0")
    a("s_waitcnt vmcnt(11)")
    a("s_barrier")
    get_nonce()
    by_role(flag012, flag012, nonce3)
    issue()
    xb_calc()
    a(f"v_and_b32 v{t[0]}, 15, v1")
    a(f"v_lshlrev_b32 v{t[0]}, 3, v{t[0]}")
    a("s_mov_b32 s63, 4")
    bl = f"{name}_bl"
    a.label(bl)
    a("s_waitcnt vmcnt(11)")
    a("s_barrier")
    issue()
    a("s_add_u32 s63, s63, 1")
    a("s_cmp_lt_u32 s63, 8")
    a(f"s_cbranch_scc1 {bl}")
    a("s_waitcnt vmcnt(11)")
    a("s_barrier")
    by_role(g1_0, g1_12, lambda: a("s_waitcnt vmcnt(0)"))
    a("s_barrier")
    a("s_waitcnt vmcnt(0)")
    by_role(g2_0, g2_12, nop)
    stamp(a, 2)
    a("s_waitcnt lgkmcnt(0)")
    a("s_barrier")
    a("s_setprio 0")
    R.release(mark)
    vl16b, vt2, vt2b = vid, vid + 1, vid + 2
    pt = BO
    assert pt % 2 == 0
    F = R.alloc("F", 80, 4)
    accv = R.alloc("accv", 32, 4)
    WB = AD0
    assert WB % 2 == 0
    srd(a, 16, 40, 2048 * 640 * 2)
    a("s_mul_i32 s58, s50, 81920")
    a("s_mul_i32 s59, s51, 160")
    a("s_add_u32 s58, s58, s59")
    a("s_mul_i32 s60, s52, 25600")
    a(f"v_add_u32 v{t[4]}, s60, v{vl16}")
    a(f"s_mul_i32 s61, s52, {64*RS}")
    a(f"v_mul_u32_u24 v{t[6]}, {RS}, v2")
    a(f"v_lshl_add_u32 v{t[6]}, v3, 4, v{t[6]}")
    a(f"v_add_u32 v{t[6]}, s61, v{t[6]}")
    a(f"v_and_b32 v{t[7]}, 7, v1")
    a(f"v_lshlrev_b32 v{t[7]}, 3, v{t[7]}")
    a(f"v_mov_b32 v{t[8]}, {LFLAG}")

    def accreg(i, n):
        return ar(i, n) if i < 64 else vr(accv + i - 64, n)

    def set2():
        a(f"v_add_u32 v{vl16b}, 0x1000, v{vl16}")
        a(f"v_and_b32 v{vt2}, 15, v1")
        a(f"v_lshl_add_u32 v{vt2}, v3, 4, v{vt2}")
        a(f"v_lshlrev_b32 v{vt2}, 4, v{vt2}")
        a(f"v_add_u32 v{vt2b}, 0x1000, v{vt2}")
        a("s_mul_i32 s60, s52, 25600")
        a(f"v_add_u32 v{t[5]}, s60, v{vt2}")
        for i in range(32):
            a(f"v_mov_b32 v{accv+i}, 0")

    def rt_pack2():
        for i in range(12):
            a(f"v_lshl_or_b32 v{E+i}, v{E+2*i+1}, 16, v{E+2*i}")

    set2()
    a("s_mul_i32 s53, s50, 196608")
    a("s_mul_i32 s60, s52, 24576")
    a("s_add_u32 s53, s53, s60")
    a(f"s_add_u32 s53, s53, {WS_H}")
    a("s_add_u32 s54, s53, 98304")
    a("s_mul_i32 s56, s51, 136")
    a("s_mul_i32 s60, s52, 24")
    a("s_add_u32 s60, s60, s56")
    a("s_mul_i32 s55, s60, 2560")
    a(f"s_add_u32 s55, s55, {WS_WF}")
    a(f"v_bfe_u32 v{t[0]}, v1, 1, 2")
    a(f"v_lshlrev_b32 v{t[0]}, 5, v{t[0]}")
    a(f"v_and_b32 v{t[1]}, 1, v1")
    a(f"v_lshl_add_u32 v{t[0]}, v{t[1]}, 4, v{t[0]}")
    a("s_lshr_b32 s60, s50, 1")
    a("s_lshl_b32 s60, s60, 9")
    a("s_lshl_b32 s61, s52, 7")
    a("s_add_u32 s60, s60, s61")
    a("s_and_b32 s61, s50, 1")
    a("s_lshl_b32 s61, s61, 3")
    a("s_add_u32 s60, s60, s61")
    a(f"s_add_u32 s63, s60, {WS_FH}")
    a("s_mul_i32 s60, s51, 1088")
    a(f"s_add_u32 s64, s60, {WS_FW}")
    a("s_mul_i32 s60, s52, 24")
    a(f"v_min_u32 v{t[2]}, 23, v1")
    a(f"v_add_u32 v{t[2]}, s60, v{t[2]}")
    a(f"v_lshlrev_b32 v{t[2]}, 3, v{t[2]}")
    a("s_lshl_b32 s60, s52, 3")
    a("s_add_u32 s60, s60, 96")
    a(f"v_and_b32 v{t[3]}, 7, v1")
    a(f"v_add_u32 v{t[3]}, s60, v{t[3]}")
    a("s_lshl_b32 s60, s52, 1")
    a("s_add_u32 s60, s60, 128")
    a(f"v_and_b32 v{t[1]}, 1, v1")
    a(f"v_add_u32 v{t[1]}, s60, v{t[1]}")
    a("v_cmp_eq_u32 vcc, 0, v3")
    a("s_nop 1")
    a(f"v_cndmask_b32 v{t[3]}, v{t[1]}, v{t[3]}, vcc")
    a(f"v_lshlrev_b32 v{t[3]}, 3, v{t[3]}")
    stamp(a, 3)
    a("s_and_b32 s60, s52, 1")
    a("s_lshl_b32 s61, s46, 1")
    a("s_add_u32 s60, s60, s61")
    a("s_lshl_b32 s60, s60, 1")
    a("s_mul_i32 s60, s60, 96")
    a("s_mul_i32 s61, s47, 6")
    a("s_add_u32 s60, s60, s61")
    a("s_lshl_b32 s60, s60, 10")
    a(f"s_add_u32 s60, s60, {WS_H}")
    a("s_lshr_b32 s61, s52, 1")
    a("s_mul_i32 s65, s61, 98304")
    a("s_lshl_b32 s61, s61, 12")
    a("s_add_u32 s66, s60, s65")
    a("s_sub_u32 s67, s60, s65")
    a("s_add_u32 s67, s67, 98304")
    a("s_add_u32 s67, s67, s61")
    a("s_add_u32 s65, s66, s61")
    a("s_lshl_b32 s60, s46, 4")
    a("s_add_u32 s60, s60, s47")
    a("s_lshl_b32 s60, s60, 2")
    a("s_add_u32 s60, s60, s52")
    a("s_lshl_b32 s60, s60, 3")
    a(f"s_add_u32 s57, s60, {WS_FH}")
    a("s_mul_i32 s60, s52, 10240")
    a(f"s_add_u32 s60, s60, {LH}")
    a(f"v_add_u32 v{t[9]}, s60, v{vl16}")
    a(f"v_bfe_u32 v{t[10]}, v1, 2, 2")
    a(f"v_lshl_add_u32 v{t[10]}, v3, 2, v{t[10]}")
    a(f"v_mul_u32_u24 v{t[10]}, 192, v{t[10]}")
    a(f"v_bfe_u32 v{t[11]}, v1, 4, 1")
    a(f"v_lshl_add_u32 v{t[10]}, v{t[11]}, 5, v{t[10]}")
    a(f"v_and_b32 v{t[11]}, 3, v1")
    a(f"v_lshl_add_u32 v{t[10]}, v{t[11]}, 3, v{t[10]}")
    a(f"v_add_u32 v{t[11]}, {LRT + 4*3072}, v{t[10]}")
    a("s_mul_i32 s60, s52, 3072")
    a(f"s_add_u32 s60, s60, {LRT}")
    a(f"v_add_u32 v{t[10]}, s60, v{t[10]}")
    for un, adr in enumerate((t[10], t[11])):
        for nt in range(3):
            for h in range(2):
                a(f"ds_read_b64_tr_b16 {vr(F + 40 + un*12 + nt*4 + h*2, 2)}, v{adr} offset:{nt*64 + h*1536}")
    a("s_lshl_b32 s62, s52, 8")
    a("s_add_u32 s62, s62, s2")
    a("v_cmp_gt_u32 s[12:13], 16, v2")
    a("s_barrier")
    for e in range(6):
        a(f"ds_read_b128 {vr(F + e*4, 4)}, v{t[9]} offset:{e*1024}")
    a("s_waitcnt lgkmcnt(0)")
    for e, (sr_, off) in enumerate(((65, 0), (65, 1024), (67, 0), (67, 1024), (66, 2048), (66, 3072))):
        a(f"buffer_store_dwordx4 {vr(F + e*4, 4)}, v{vl16}, s[4:7], s{sr_} offen offset:{off} sc1")
        if X_PACE and e % 2 == 1:
            a("s_waitcnt vmcnt(0)")

    def rt_put(un):
        a("s_mul_i32 s61, s62, 2560")
        a(f"s_add_u32 s61, s61, {WS_WF}")
        b = F + 40 + un * 12
        a(f"buffer_store_dwordx4 {vr(b,4)}, v{vl16}, s[4:7], s61 offen sc1")
        a(f"buffer_store_dwordx4 {vr(b+4,4)}, v{vl16}, s[4:7], s61 offen offset:1024 sc1")
        a("s_mov_b64 exec, s[12:13]")
        a(f"buffer_store_dwordx4 {vr(b+8,4)}, v{vt2}, s[4:7], s61 offen offset:2048 sc1")
        a("s_mov_b64 exec, -1")
        a("s_lshl_b32 s61, s62, 3")
        a(f"s_add_u32 s61, s61, {WS_FW}")
        a("s_waitcnt vmcnt(0)")
        put_flag(a, "s61", vz, vn)
    rt_put(0)
    put_flag(a, "s57", vz, vn)
    n3 = f"{name}_no3"
    a("s_cmp_ge_u32 s62, 64")
    a(f"s_cbranch_scc1 {n3}")
    a("s_add_u32 s62, s62, 1024")
    rt_put(1)
    a.label(n3)
    stamp(a, 4)
    poll(a, name + "_fw", t[2], "s64", pt, vr(vn, 2), extra=t[3])
    poll(a, name + "_fh", t[0], "s63", pt, vr(vn, 2))
    stamp(a, 5)

    def wload(dst, sreg, off):
        for k, (va, vb) in enumerate(((vl16, vl16b), (vl16, vl16b), (vt2, vt2b))):
            o = off + k * 1024
            v = va if o < 4096 else vb
            a(f"buffer_load_dwordx4 {vr(dst + k*4, 4)}, v{v}, s[4:7], s{sreg} offen offset:{o % 4096} sc1")

    def gl_ops(b):
        base = F + b * 20
        return [f"buffer_load_dwordx4 {vr(base,4)}, v{vl16}, s[4:7], s53 offen sc1",
                f"buffer_load_dwordx4 {vr(base+4,4)}, v{vl16}, s[4:7], s54 offen sc1",
                f"buffer_load_dwordx4 {vr(base+8,4)}, v{vl16}, s[4:7], s55 offen sc1",
                f"buffer_load_dwordx4 {vr(base+12,4)}, v{vl16}, s[4:7], s55 offen offset:1024 sc1",
                f"buffer_load_dwordx4 {vr(base+16,4)}, v{vt2}, s[4:7], s55 offen offset:2048 sc1",
                "s_add_u32 s53, s53, 1024\ns_add_u32 s54, s54, 1024\ns_add_u32 s55, s55, 2560"]

    def gstep(b, nxt, wait):
        if X_NOG: return
        a(f"s_waitcnt vmcnt({wait})")
        base = F + b * 20
        ops = gl_ops(nxt) if nxt is not None else [None] * 6
        for k in range(6):
            c = accreg(k * 16, 16)
            a(f"v_mfma_f32_32x32x16_bf16 {c}, {vr(base + 8 + (k//2)*4, 4)}, {vr(base + (k%2)*4, 4)}, {c}")
            if ops[k]: a(ops[k])

    a("s_setprio 0")
    for b in range(2):
        for o in gl_ops(b): a(o)
    a("s_mov_b32 s60, 0")
    gl = f"{name}_gl"
    a.label(gl)
    for b in range(3):
        gstep(b, (b + 2) % 3, 5)
    a("s_add_u32 s60, s60, 1")
    a("s_cmp_lt_u32 s60, 7")
    a(f"s_cbranch_scc1 {gl}")
    gstep(0, 2, 5)
    gstep(1, None, 5)
    gstep(2, None, 0)
    stamp(a, 6)
    a("s_lshl_b32 s60, s52, 3")
    a("s_add_u32 s60, s60, s56")
    a("s_add_u32 s60, s60, 96")
    a("s_mul_i32 s53, s60, 2560")
    a(f"s_add_u32 s53, s53, {WS_WF}")
    a("s_lshl_b32 s60, s52, 1")
    a("s_add_u32 s60, s60, s56")
    a("s_add_u32 s60, s60, 128")
    a("s_mul_i32 s54, s60, 2560")
    a(f"s_add_u32 s54, s54, {WS_WF}")
    a("s_waitcnt vmcnt(0)")
    def wo_ld(e):
        if e < 20:
            v = vl16 if (e % 8) < 4 else vl16b
            if e and e % 8 == 0:
                a("s_add_u32 s53, s53, 8192")
            a(f"buffer_load_dwordx4 {vr(F + (e%4)*4, 4)}, v{v}, s[4:7], s53 offen offset:{(e%4)*1024} sc1")
        else:
            v = vl16 if e < 24 else vl16b
            a(f"buffer_load_dwordx4 {vr(F + (e%4)*4, 4)}, v{v}, s[4:7], s54 offen offset:{(e%4)*1024} sc1")
    for e in range(3):
        wo_ld(e)
    for e in range(25):
        a(f"s_waitcnt vmcnt({min(2, 24-e)}) lgkmcnt(0)")
        a(f"ds_write_b128 v{t[4]}, {vr(F + (e%4)*4, 4)} offset:{e*1024}")
        if e + 3 < 25:
            wo_ld(e + 3)
    a("s_mul_i32 s60, s50, 81920")
    a("s_lshl_b32 s53, s52, 13")
    a("s_add_u32 s53, s53, s60")
    a(f"s_add_u32 s53, s53, {WS_O}")
    a("s_add_u32 s54, s53, 40960")
    a("s_lshl_b32 s55, s52, 11")
    a("s_add_u32 s55, s55, s60")
    a(f"s_add_u32 s55, s55, {WS_O + 32768}")
    a("s_add_u32 s56, s55, 40960")
    a("s_lshl_b32 s60, s50, 8")
    a("s_lshl_b32 s61, s52, 6")
    a("s_add_u32 s60, s60, s61")
    a(f"s_add_u32 s63, s60, {WS_FO}")
    a("s_waitcnt lgkmcnt(0)")
    stamp(a, 7)
    a("s_barrier")
    a(f"ds_read_b32 v{t[2]}, v{t[8]}")
    a("s_waitcnt lgkmcnt(0)")
    a(f"v_readfirstlane_b32 s60, v{t[2]}")
    nr = f"{name}_noredo"
    a("s_cmp_eq_u32 s60, 0")
    a(f"s_cbranch_scc1 {nr}")
    a("s_barrier")
    a("s_barrier")
    a("s_barrier")
    a.label(nr)
    stamp(a, 8)

    def wread(n, dst):
        a(f"ds_read_b128 {vr(dst,4)}, v{t[4]} offset:{n*2560}")
        a(f"ds_read_b128 {vr(dst+4,4)}, v{t[4]} offset:{n*2560 + 1024}")
        a(f"ds_read_b128 {vr(dst+8,4)}, v{t[5]} offset:{n*2560 + 2048}")
    poll(a, name + "_fo", t[7], "s63", pt, vr(vn, 2))
    stamp(a, 9)
    for n in range(10):
        for rt in range(2):
            if n < 8:
                sreg, off = 53 + rt, n * 1024
            else:
                sreg, off = 55 + rt, (n - 8) * 1024
            v = vl16 if off < 4096 else vl16b
            a(f"buffer_load_dwordx4 {vr(F + (n*2+rt)*4, 4)}, v{v}, s[4:7], s{sreg} offen offset:{off % 4096} sc1")
    wread(0, WB)
    for n in range(10):
        a(f"s_waitcnt vmcnt({18 - 2*n}) lgkmcnt(0)")
        for nt in range(3):
            for rt in range(2):
                c = accreg((nt*2+rt)*16, 16)
                a(f"v_mfma_f32_32x32x16_bf16 {c}, {vr(WB + nt*4, 4)}, {vr(F + (n*2+rt)*4, 4)}, {c}")
            if n < 9:
                adr, off = (t[4], (n+1)*2560 + nt*1024) if nt < 2 else (t[5], (n+1)*2560 + 2048)
                a(f"ds_read_b128 {vr(WB + nt*4, 4)}, v{adr} offset:{off}")
    stamp(a, 10)
    a("s_barrier")
    a("s_nop 7")
    for nt in range(3):
        for rt in range(2):
            for q in range(4 if nt < 2 else 2):
                a(f"ds_write_b128 v{t[6]}, {accreg((nt*2+rt)*16 + q*4, 4)} offset:{rt*32*RS + nt*128 + q*32}")
    a("s_waitcnt lgkmcnt(0)")
    a("s_barrier")
    PD = F
    for it in range(5):
        for w in range(4):
            a(f"ds_read_b128 {vr(PD + it*16 + w*4, 4)}, v{LA+it} offset:{w*64*RS}")
    for it in range(5):
        a(f"s_waitcnt lgkmcnt({min(15, 4*(4-it))})")
        p = PD + it * 16
        for i in range(2):
            a(f"v_pk_add_f32 {vr(p+2*i,2)}, {vr(p+2*i,2)}, {vr(p+4+2*i,2)}")
            a(f"v_pk_add_f32 {vr(p+8+2*i,2)}, {vr(p+8+2*i,2)}, {vr(p+12+2*i,2)}")
        for i in range(2):
            a(f"v_pk_add_f32 {vr(p+2*i,2)}, {vr(p+2*i,2)}, {vr(XB+it*4+2*i,2)}")
        for i in range(2):
            a(f"v_pk_add_f32 {vr(p+2*i,2)}, {vr(p+2*i,2)}, {vr(p+8+2*i,2)}")
        a(f"v_cvt_pk_bf16_f32 v{p+4}, v{p}, v{p+1}")
        a(f"v_cvt_pk_bf16_f32 v{p+5}, v{p+2}, v{p+3}")
        a(f"buffer_store_dwordx2 {vr(p+4,2)}, v{GA+it}, s[16:19], s58 offen")
    stamp(a, 11)
    stamp_flush(a, 12, 4, 0, 4, 5)
    dbg_flush(a, 12, [7, 8, 9, 10, 11], 10, 4, 37, 4, 5)
    a("s_endpgm")
```

```python
import math
from asmlib import *
import asmlib

BLOCK = 512
ACCUM = 192
NAGPR = 64
VGPR = ACCUM + NAGPR

WS_QK = 0
WS_VT = 0x600000
WS_H = 0xA00000
WS_O = 0x1000000
WS_WF = 0x1300000
WS_FLAG = 0x1700000
WS_FQ = WS_FLAG
WS_FH = WS_FLAG + 0x2000
WS_FW = WS_FLAG + 0xA000
WS_FO = WS_FLAG + 0x6000
WS_FSR = WS_FLAG + 0x8000
WS_FSC = WS_FLAG + 0x9000
WS_ST = WS_FLAG + 0x10000
WS_CS = WS_FLAG + 0x20000
WS_BYTES = 268435456
GSTRIDE = 2048 * 48

LX = 0
LQ = 49152
L1 = 98304
LSTAT = 135168
LCS = 137216
LB1 = 138240
LNONCE = 138752
LFLAG = 138768
LRT = 138816
LPUB = LRT + 5 * 3072
F_LDS = LPUB + 128 + 4096
LWO = 0
LM = 102400
LC = 110592
RS = 336
LH = 49152

QSCALE = (20 ** -0.5) * math.log2(math.e)
EPS = 1e-5
SPIN_MAX = 100000
X_NOG = False
X_NOKV = False
X_P1 = False
X_PACE = False
X_PLAIN = False
X_NOCP = False


def ar(base, n=1):
    return f"a{base}" if n == 1 else f"a[{base}:{base+n-1}]"


def rbf(a, d, s):
    a(f"v_cvt_pk_bf16_f32 v{d}, v{s}, v{s}")
    a(f"v_lshlrev_b32 v{d}, 16, v{d}")


def poll(a, name, vaddr, soff, vtmp, nonce, extra=None):
    lp, go = a.uid(name + "_p"), a.uid(name + "_g")
    a(f"s_mov_b32 s68, {SPIN_MAX}")
    a.label(lp)
    a(f"buffer_load_dwordx2 {vr(vtmp,2)}, v{vaddr}, s[4:7], {soff} offen sc1")
    if extra:
        a(f"buffer_load_dwordx2 {vr(vtmp+2,2)}, v{extra}, s[4:7], {soff} offen sc1")
    a("s_sub_u32 s68, s68, 1")
    a("s_cmp_eq_u32 s68, 0")
    a(f"s_cbranch_scc1 {go}")
    a("s_waitcnt vmcnt(0)")
    a(f"v_cmp_ne_u64 vcc, {nonce}, {vr(vtmp,2)}")
    if extra:
        a(f"v_cmp_ne_u64 s[66:67], {nonce}, {vr(vtmp+2,2)}")
        a("s_or_b64 vcc, vcc, s[66:67]")
    a(f"s_cbranch_vccz {go}")
    a("s_sleep 4")
    a(f"s_branch {lp}")
    a.label(go)


def put_flag(a, soff, vz, vn):
    a("s_mov_b64 exec, 1")
    a(f"buffer_store_dwordx2 {vr(vn,2)}, v{vz}, s[4:7], {soff} offen sc1")
    a("s_mov_b64 exec, -1")


def decode(a, ps, vid, AD0, t, swave):
    idr = vid + ps
    AD, AD2 = AD0[2*ps], AD0[2*ps+1]
    a("s_lshl_b32 s60, s2, 2")
    a(f"s_add_u32 s60, s60, s{swave}")
    a("s_mul_i32 s60, s60, 170")
    a("s_mov_b32 s61, 197380")
    a("s_mov_b32 s63, 26843546")
    a("s_movk_i32 s69, 96")
    a(f"v_add_u32 v{idr}, s60, v1")
    if ps:
        a(f"v_add_u32 v{idr}, {64*ps}, v{idr}")
    if ps == 2:
        a("s_add_u32 s60, s60, 169")
        a(f"v_min_u32 v{idr}, s60, v{idr}")
    cb, rem, step, it, tile, n, hf, rA, dB, col = t[0], t[1], t[2], t[3], t[4], t[5], t[6], t[7], t[8], t[9]
    a(f"v_mul_hi_u32 v{cb}, v{idr}, s61")
    a(f"v_mul_u32_u24 v{rem}, 21760, v{cb}")
    a(f"v_sub_u32 v{rem}, v{idr}, v{rem}")
    a(f"v_mul_hi_u32 v{step}, v{rem}, s63")
    a(f"v_mul_u32_u24 v{it}, 160, v{step}")
    a(f"v_sub_u32 v{it}, v{rem}, v{it}")
    a(f"v_lshrrev_b32 v{tile}, 6, v{it}")
    a(f"v_cmp_eq_u32 vcc, 2, v{tile}")
    a(f"v_and_b32 v{n}, 31, v{it}")
    a(f"v_bfe_u32 v{hf}, v{it}, 5, 1")
    a(f"v_and_b32 v{rem}, 15, v{it}")
    a(f"v_bfe_u32 v{it}, v{it}, 4, 1")
    a(f"v_cndmask_b32 v{n}, v{n}, v{rem}, vcc")
    a(f"v_cndmask_b32 v{hf}, v{hf}, v{it}, vcc")
    a(f"v_mul_u32_u24 v{col}, 80, v{cb}")
    a(f"v_lshl_add_u32 v{col}, v{tile}, 5, v{col}")
    a(f"v_add_u32 v{col}, v{col}, v{n}")
    a(f"v_lshlrev_b32 v{rA}, 4, v{step}")
    a(f"v_lshl_add_u32 v{rA}, v{hf}, 2, v{rA}")
    a(f"v_mov_b32 v{dB}, 8")
    a(f"v_subrev_u32 v{rem}, 96, v{step}")
    a(f"v_mul_u32_u24 v{it}, 20, v{rem}")
    a(f"v_lshl_add_u32 v{it}, v{hf}, 2, v{it}")
    a(f"v_cmp_le_u32 s[64:65], s69, v{step}")
    a(f"v_cmp_le_u32 vcc, 0x80, v{step}")
    a(f"v_subrev_u32 v{rem}, 128, v{step}")
    a(f"v_cndmask_b32 v{rA}, v{rA}, v{it}, s[64:65]")
    a(f"v_mul_u32_u24 v{it}, 80, v{rem}")
    a(f"v_mul_u32_u24 v{rem}, 40, v{hf}")
    a(f"v_add3_u32 v{it}, v{it}, v{rem}, 16")
    a(f"v_cndmask_b32 v{rA}, v{rA}, v{it}, vcc")
    a(f"v_cndmask_b32 v{dB}, v{dB}, 20, vcc")
    a(f"v_mul_u32_u24 v{rA}, 1280, v{rA}")
    a(f"v_lshl_add_u32 v{rA}, v{col}, 1, v{rA}")
    a(f"v_mul_u32_u24 v{dB}, 1280, v{dB}")
    a(f"v_mov_b32 v{rem}, s36")
    a(f"v_mov_b32 v{it}, s28")
    a(f"v_cndmask_b32 v{rem}, v{rem}, v{it}, s[64:65]")
    a(f"v_mov_b32 v{n}, s37")
    a(f"v_mov_b32 v{it}, s29")
    a(f"v_cndmask_b32 v{n}, v{n}, v{it}, s[64:65]")
    a(f"v_add_co_u32 v{AD}, vcc, v{rem}, v{rA}")
    a("s_nop 1")
    a(f"v_addc_co_u32 v{AD+1}, vcc, 0, v{n}, vcc")
    a(f"v_add_co_u32 v{AD2}, vcc, v{AD}, v{dB}")
    a("s_nop 1")
    a(f"v_addc_co_u32 v{AD2+1}, vcc, 0, v{AD+1}, vcc")


def gen_f(a, name):
    asmlib.SB = 70
    kernel_header(a, name)
    done = f"{name}_done"
    a("s_cmp_ge_u32 s2, 256")
    a(f"s_cbranch_scc1 {done}")
    stamp(a, 0, True)
    stamp(a, 1)
    a("s_load_dwordx16 s[24:39], s[0:1], 0")
    a("s_load_dwordx4 s[40:43], s[0:1], 64")
    a("s_load_dwordx2 s[44:45], s[0:1], 80")
    if not X_NOCP:
        a("s_getpc_b64 s[60:61]")
        a("v_lshlrev_b32 v4, 6, v0")
        a("s_and_b32 s60, s60, 0xffffff00")
        a("v_mov_b32 v5, s61")
        a("v_add_co_u32 v4, vcc, s60, v4")
        a("v_cmp_gt_u32 s[62:63], CODE_LINES, v0")
        a("v_addc_co_u32 v5, vcc, 0, v5, vcc")
        a("s_mov_b64 exec, s[62:63]")
        a("global_load_dword v191, v[4:5], off")
        a("s_mov_b64 exec, -1")
    a("v_lshrrev_b32 v2, 6, v0")
    a("v_and_b32 v1, 63, v0")
    a("s_and_b32 s56, s2, 7")
    a("v_readfirstlane_b32 s3, v2")
    a("s_lshr_b32 s57, s2, 3")
    a("s_and_b32 s58, s57, 7")
    a("s_lshr_b32 s59, s57, 3")
    a("s_and_b32 s60, s56, 1")
    a("s_lshl_b32 s60, s60, 3")
    a("s_add_u32 s46, s60, s58")
    a("s_lshr_b32 s60, s56, 1")
    a("s_lshl_b32 s60, s60, 2")
    a("s_add_u32 s47, s60, s59")
    a("s_lshl_b32 s60, s56, 2")
    a("s_add_u32 s48, s60, s59")
    a("s_mov_b32 s49, s58")
    a("s_and_b32 s60, s56, 3")
    a("s_lshl_b32 s60, s60, 3")
    a("s_add_u32 s50, s60, s58")
    a("s_lshr_b32 s60, s56, 2")
    a("s_lshl_b32 s60, s60, 2")
    a("s_add_u32 s51, s60, s59")
    a("v_and_b32 v2, 31, v1")
    a("v_lshrrev_b32 v3, 5, v1")
    a("s_cmp_ge_u32 s3, 4")
    a(f"s_cbranch_scc0 {name}_A")
    gen_b(a, name)
    a.label(f"{name}_A")
    gen_a(a, name)
    a.label(done)
    a("s_endpgm")
    a.label(f"{name}_end")


def gen_a(a, name):
    R = Regs(4, ACCUM)
    t = [R.alloc(f"t{i}") for i in range(10)]
    vn = R.alloc("vn", 2, 2)
    vz = R.alloc("vz")
    vl16 = R.alloc("vl16")
    mark = R.mark()
    vxa = R.alloc("vxa", 8)
    vwa = R.alloc("vwa", 4)
    acc = R.alloc("acc", 112, 4)
    X = R.alloc("X", 16, 4)
    W = R.alloc("W", 32, 4)
    a("s_and_b32 s52, s3, 1")
    a("s_lshr_b32 s53, s3, 1")
    a("s_lshl_b32 s60, s52, 6")
    a("s_lshl_b32 s61, s53, 5")
    a("s_add_u32 s60, s60, s61")
    a(f"v_add_u32 v{t[0]}, s60, v2")
    a(f"v_lshrrev_b32 v{t[1]}, 1, v{t[0]}")
    a(f"v_and_b32 v{t[1]}, 7, v{t[1]}")
    a(f"v_xor_b32 v{t[1]}, v{t[1]}, v3")
    a(f"v_lshlrev_b32 v{t[1]}, 4, v{t[1]}")
    a(f"v_lshl_add_u32 v{vxa}, v{t[0]}, 7, v{t[1]}")
    for kk in range(1, 4):
        a(f"v_xor_b32 v{vxa+kk}, {kk << 5}, v{vxa}")
    for kk in range(4):
        a(f"v_xor_b32 v{vxa+4+kk}, 0x1000, v{vxa+kk}")
    a(f"v_bfe_u32 v{t[0]}, v1, 2, 2")
    a(f"v_and_b32 v{t[1]}, 3, v1")
    a(f"v_bfe_u32 v{t[2]}, v1, 4, 1")
    a(f"v_lshlrev_b32 v{t[4]}, 5, v{t[2]}")
    a(f"v_lshl_add_u32 v{t[4]}, v{t[1]}, 3, v{t[4]}")
    a(f"v_lshl_add_u32 v{t[5]}, v3, 3, v{t[0]}")
    a("s_mul_i32 s60, s53, 120")
    a(f"v_lshlrev_b32 v{t[6]}, 8, v{t[5]}")
    a(f"v_add_u32 v{t[6]}, {LQ}, v{t[6]}")
    for tt in range(2):
        a(f"v_add_u32 v{t[7]}, s60, v{t[4]}")
        if tt:
            a(f"v_add_u32 v{t[7]}, 64, v{t[7]}")
        a(f"v_lshrrev_b32 v{t[8]}, 6, v{t[7]}")
        a(f"v_xor_b32 v{t[8]}, v{t[8]}, v{t[0]}")
        a(f"v_and_b32 v{t[7]}, 63, v{t[7]}")
        a(f"v_lshl_add_u32 v{t[7]}, v{t[8]}, 6, v{t[7]}")
        a(f"v_add_u32 v{vwa+tt}, v{t[7]}, v{t[6]}")
    a(f"v_mul_u32_u24 v{t[6]}, 192, v{t[5]}")
    a(f"v_add3_u32 v{t[6]}, v{t[6]}, v{t[4]}, 64")
    a(f"v_add_u32 v{vwa+3}, {L1}, v{t[6]}")
    a("s_lshl_b32 s60, s53, 7")
    a("s_sub_u32 s60, s60, 64")
    a(f"v_add_u32 v{vwa+2}, s60, v{vwa+3}")
    a(f"v_mov_b32 v{vz}, 0")
    a(f"v_lshlrev_b32 v{vl16}, 4, v1")
    a("s_waitcnt lgkmcnt(0)")
    srd(a, 4, 44, WS_BYTES)
    D = acc
    ac = acc + 48
    l12, l3, lj = f"{name}_s12", f"{name}_s3", f"{name}_sj"
    for i in range(8):
        a(f"v_mov_b32 v{ac+i}, 0")
    a("s_cmp_eq_u32 s3, 3")
    a(f"s_cbranch_scc1 {l3}")
    a("s_cmp_lg_u32 s3, 0")
    a(f"s_cbranch_scc1 {l12}")
    srd(a, 8, 24, 2048 * 640 * 2)
    a(f"v_lshrrev_b32 v{t[8]}, 3, v1")
    a(f"v_mul_u32_u24 v{t[0]}, 1280, v{t[8]}")
    a(f"v_and_b32 v{t[1]}, 7, v1")
    a(f"v_lshl_add_u32 v{t[0]}, v{t[1]}, 4, v{t[0]}")
    a("s_lshl_b32 s60, s46, 4")
    a("s_add_u32 s60, s60, s47")
    a("s_mul_i32 s61, s60, 10240")
    for m in range(10):
        a(f"buffer_load_dwordx4 {vr(D + 4*m, 4)}, v{t[0]}, s[8:11], s61 offen offset:{m*128}")
    for m in range(40):
        if m % 4 == 0:
            a(f"s_waitcnt vmcnt({9 - m//4})")
        a(f"v_lshlrev_b32 v{t[0]}, 16, v{D+m}")
        a(f"v_and_b32 v{t[1]}, 0xffff0000, v{D+m}")
        a(f"v_add_f32 v{ac}, v{ac}, v{t[0]}")
        a(f"v_add_f32 v{ac+1}, v{ac+1}, v{t[1]}")
        a(f"v_fmac_f32 v{ac+2}, v{t[0]}, v{t[0]}")
        a(f"v_fmac_f32 v{ac+3}, v{t[1]}, v{t[1]}")
    sm, sq = ac, ac + 2
    a(f"v_add_f32 v{sm}, v{ac}, v{ac+1}")
    a(f"v_add_f32 v{sq}, v{ac+2}, v{ac+3}")
    for mod in ("quad_perm:[1,0,3,2]", "quad_perm:[2,3,0,1]", "row_half_mirror"):
        a("s_nop 1")
        a(f"v_add_f32_dpp v{t[0]}, v{sm}, v{sm} {mod} row_mask:0xf bank_mask:0xf")
        a(f"v_add_f32_dpp v{t[1]}, v{sq}, v{sq} {mod} row_mask:0xf bank_mask:0xf")
        a(f"v_mov_b32 v{sm}, v{t[0]}")
        a(f"v_mov_b32 v{sq}, v{t[1]}")
    mean, var, mbf, s1, r1, m2, s2, tmp_ = t[0], t[1], t[2], t[3], t[4], t[5], t[6], t[7]
    o = ac + 4
    a(f"s_mov_b32 s60, {hexf(1.0/640)}")
    a(f"s_mov_b32 s61, {hexf(EPS)}")
    a(f"v_mul_f32 v{mean}, s60, v{sm}")
    a(f"v_mul_f32 v{var}, s60, v{sq}")
    a(f"v_fma_f32 v{var}, -v{mean}, v{mean}, v{var}")
    a(f"v_max_f32 v{var}, 0, v{var}")
    rbf(a, mbf, mean)
    rbf(a, tmp_, var)
    a(f"v_add_f32 v{tmp_}, s61, v{tmp_}")
    rbf(a, tmp_, tmp_)
    a(f"v_sqrt_f32 v{tmp_}, v{tmp_}")
    a("s_nop 0")
    rbf(a, s1, tmp_)
    a(f"v_rcp_f32 v{r1}, v{s1}")
    a(f"v_sub_f32 v{o}, 0, v{mbf}")
    a(f"v_mov_b32 v{o+1}, v{r1}")
    a(f"v_sub_f32 v{tmp_}, v{mean}, v{mbf}")
    a(f"v_mul_f32 v{tmp_}, v{tmp_}, v{r1}")
    rbf(a, m2, tmp_)
    a(f"v_mul_f32 v{tmp_}, v{var}, v{r1}")
    a(f"v_mul_f32 v{tmp_}, v{tmp_}, v{r1}")
    rbf(a, tmp_, tmp_)
    a(f"v_add_f32 v{tmp_}, s61, v{tmp_}")
    rbf(a, tmp_, tmp_)
    a(f"v_sqrt_f32 v{tmp_}, v{tmp_}")
    a("s_nop 0")
    rbf(a, s2, tmp_)
    a(f"v_mul_f32 v{tmp_}, v{s1}, v{s2}")
    a(f"v_rcp_f32 v{o+2}, v{tmp_}")
    a(f"v_fma_f32 v{tmp_}, v{m2}, v{s1}, v{mbf}")
    a(f"v_mul_f32 v{o+3}, v{tmp_}, v{o+2}")
    a(f"v_sub_f32 v{o+3}, 0, v{o+3}")
    a(f"v_lshlrev_b32 v{t[8]}, 4, v{t[8]}")
    a(f"v_add_u32 v{t[8]}, {LPUB}, v{t[8]}")
    a(f"ds_write_b128 v{t[8]}, {vr(o,4)}")
    a(f"s_branch {lj}")
    a.label(l12)
    lq, lq2 = f"{name}_sq", f"{name}_sq2"
    a("s_cmp_eq_u32 s3, 1")
    a(f"s_cbranch_scc1 {lq}")
    srd(a, 8, 32, 640 * 1536 * 2)
    a("s_movk_i32 s62, 3072")
    a("s_mul_i32 s60, s47, 192")
    a(f"s_branch {lq2}")
    a.label(lq)
    srd(a, 8, 26, 640 * 1920 * 2)
    a("s_movk_i32 s62, 3840")
    a("s_mul_i32 s60, s47, 240")
    a.label(lq2)
    a("s_mul_i32 s61, s46, 40")
    a("s_mul_i32 s61, s61, s62")
    a("s_add_u32 s61, s61, s60")
    a(f"v_lshrrev_b32 v{t[8]}, 4, v1")
    a(f"v_mul_lo_u32 v{t[0]}, v{t[8]}, s62")
    a(f"v_and_b32 v{t[9]}, 15, v1")
    a(f"v_lshl_add_u32 v{t[0]}, v{t[9]}, 4, v{t[0]}")
    a("s_lshl_b32 s62, s62, 2")
    for m in range(10):
        a(f"buffer_load_dwordx4 {vr(D + 4*m, 4)}, v{t[0]}, s[8:11], s61 offen")
        if m < 9:
            a("s_add_u32 s61, s61, s62")
    for m in range(40):
        if m % 4 == 0:
            a(f"s_waitcnt vmcnt({9 - m//4})")
        a(f"v_lshlrev_b32 v{t[0]}, 16, v{D+m}")
        a(f"v_and_b32 v{t[1]}, 0xffff0000, v{D+m}")
        a(f"v_add_f32 v{ac + 2*(m%4)}, v{ac + 2*(m%4)}, v{t[0]}")
        a(f"v_add_f32 v{ac + 2*(m%4) + 1}, v{ac + 2*(m%4) + 1}, v{t[1]}")
    a("s_lshl_b32 s60, s3, 11")
    a(f"s_add_u32 s60, s60, {LPUB + 128 - 2048}")
    a(f"v_lshl_add_u32 v{t[8]}, v1, 5, s60")
    a(f"ds_write_b128 v{t[8]}, {vr(ac,4)}")
    a(f"ds_write_b128 v{t[8]}, {vr(ac+4,4)} offset:16")
    a(f"s_branch {lj}")
    a.label(l3)
    srd(a, 8, 34, 1536 * 2)
    a("s_mul_i32 s60, s47, 192")
    a(f"v_lshlrev_b32 v{t[0]}, 2, v1")
    a(f"buffer_load_dword v{D}, v{t[0]}, s[8:11], s60 offen")
    a(f"v_lshlrev_b32 v{t[0]}, 3, v1")
    a(f"v_add_u32 v{t[0]}, {LB1}, v{t[0]}")
    a(f"v_mov_b32 v{t[1]}, {LFLAG}")
    a(f"ds_write_b32 v{t[1]}, v{vz}")
    a("s_waitcnt vmcnt(0)")
    a(f"v_lshlrev_b32 v{ac}, 16, v{D}")
    a(f"v_and_b32 v{ac+1}, 0xffff0000, v{D}")
    a(f"ds_write_b64 v{t[0]}, {vr(ac,2)}")
    a.label(lj)
    a("s_waitcnt lgkmcnt(0)")
    for i in range(112):
        a(f"v_mov_b32 v{acc+i}, 0")
    a("s_movk_i32 s63, 16384")
    a("s_movk_i32 s65, 12288")

    def reads(kk):
        p = kk % 2
        for rt in range(2):
            a(f"ds_read_b128 {vr(X + p*8 + rt*4, 4)}, v{vxa + rt*4 + kk}")
        for tt in range(4):
            ks, hs = (4096, 1024) if tt < 2 else (3072, 768)
            for h in range(2):
                a(f"ds_read_b64_tr_b16 {vr(W + p*16 + tt*4 + h*2, 2)}, v{vwa+tt} offset:{kk*ks + h*hs}")

    def mf(p, k):
        tt, rt = (k // 2, k % 2) if k < 6 else (3, 0)
        c = acc + k * 16
        a(f"v_mfma_f32_32x32x16_bf16 {vr(c,16)}, {vr(W + p*16 + tt*4, 4)}, {vr(X + p*8 + rt*4, 4)}, {vr(c,16)}")

    a("s_mov_b32 s60, 0")
    a("s_mov_b32 s61, 0")
    a("s_mov_b32 s69, 0")
    a("s_barrier")
    stamp(a, 2)
    if asmlib.STAMP: a("s_waitcnt lgkmcnt(0)")
    reads(0)
    a("s_waitcnt lgkmcnt(0)")
    def read_ops(kk):
        p = kk % 2
        def xr(rt): return f"ds_read_b128 {vr(X + p*8 + rt*4, 4)}, v{vxa + rt*4 + kk}"
        def wr(tt, h):
            ks, hs = (4096, 1024) if tt < 2 else (3072, 768)
            return f"ds_read_b64_tr_b16 {vr(W + p*16 + tt*4 + h*2, 2)}, v{vwa+tt} offset:{kk*ks + h*hs}"
        return [xr(0), wr(0, 0), wr(0, 1), xr(1), wr(1, 0), wr(1, 1), wr(2, 0), wr(2, 1), wr(3, 0), wr(3, 1)]

    def stage(extra):
        for kk in range(4):
            p = kk % 2
            ops = read_ops((kk + 1) % 4)
            waits = {0: 7, 1: 8, 2: 8, 4: 10, 6: 10}
            if kk == 3:
                waits = {}
                a("s_waitcnt lgkmcnt(0)")
                skip = a.uid(f"{name}_a1last")
                if not extra:
                    a("s_cmp_eq_u32 s60, 9")
                    a(f"s_cbranch_scc1 {skip}")
                if X_P1:
                    a("s_memtime s[66:67]")
                    a("s_waitcnt lgkmcnt(0)")
                    a("s_sub_u32 s69, s69, s66")
                a("s_barrier")
                if X_P1:
                    a("s_memtime s[66:67]")
                    a("s_waitcnt lgkmcnt(0)")
                    a("s_add_u32 s69, s69, s66")
                a.label(skip)
            for k in range(7):
                if k in waits:
                    a(f"s_waitcnt lgkmcnt({waits[k]})")
                mf(p, k)
                if extra and kk * 7 + k < len(extra):
                    a(extra[kk * 7 + k])
                if k < 5:
                    a(ops[2*k])
                    a(ops[2*k+1])
                if kk == 2 and k == 4:
                    a("s_add_u32 s61, s61, 1")
                    a("s_cmp_eq_u32 s61, 3")
                    a("s_cselect_b32 s61, 0, s61")
                    a(f"s_cselect_b32 s62, {(-2*16384) & 0xffffffff:#x}, s63")
                    a(f"s_cselect_b32 s64, {(-2*12288) & 0xffffffff:#x}, s65")
                if kk == 2 and k == 5:
                    for r in range(vxa, vxa + 6):
                        a(f"v_add_u32 v{r}, s62, v{r}")
                if kk == 2 and k == 6:
                    for r in range(vxa + 6, vxa + 10):
                        a(f"v_add_u32 v{r}, s62, v{r}")
                    for r in (vwa + 2, vwa + 3):
                        a(f"v_add_u32 v{r}, s64, v{r}")

    loop = f"{name}_a1"
    a.raw(".p2align 6")
    a.label(loop)
    stage(None)
    a("s_add_u32 s60, s60, 1")
    a("s_cmp_lt_u32 s60, 10")
    a(f"s_cbranch_scc1 {loop}")
    assert vwa == vxa + 8
    a("s_waitcnt vmcnt(0) lgkmcnt(0)")
    stamp(a, 3)
    st = X
    rs = X + 8
    csr = W
    pk = vxa
    tmp = vxa + 4
    assert vxa % 2 == 0
    assert acc == vwa + 6
    sa = [vwa + 4, vwa + 5, t[7], t[8]]
    a("s_lshl_b32 s60, s52, 10")
    a("s_lshl_b32 s61, s53, 9")
    a("s_add_u32 s60, s60, s61")
    a(f"s_add_u32 s60, s60, {LSTAT}")
    a(f"v_lshl_add_u32 v{t[0]}, v2, 4, s60")
    a(f"v_xor_b32 v{t[9]}, 0x200, v{t[0]}")
    assert LSTAT % 1024 == 0
    a("s_mul_i32 s60, s53, 240")
    a(f"s_add_u32 s60, s60, {LCS}")
    a(f"v_lshl_add_u32 v{t[1]}, v3, 4, s60")
    a("s_mul_i32 s54, s47, 6")
    a("s_mul_i32 s60, s53, 3")
    a("s_add_u32 s54, s54, s60")
    a(f"s_mov_b32 s60, {hexf(QSCALE)}")
    for g in range(3):
        a(f"s_add_u32 s61, s54, {g}")
        a("s_cmp_lt_u32 s61, 32")
        a(f"s_cselect_b32 s{62+g}, s60, 1.0")
    a("s_mul_i32 s60, s3, 12288")
    a("s_mul_i32 s61, s53, 1536")
    a(f"v_mul_u32_u24 v{t[2]}, 48, v2")
    a(f"v_add_u32 v{t[2]}, s60, v{t[2]}")
    a(f"v_mul_u32_u24 v{t[3]}, 3040, v3")
    a(f"v_add_u32 v{t[4]}, s61, v{t[2]}")
    a(f"v_subrev_u32 v{t[2]}, s61, v{t[2]}")
    a(f"v_add_u32 v{t[2]}, 1536, v{t[2]}")
    a(f"v_lshl_add_u32 v{sa[0]}, v3, 3, v{t[4]}")
    a(f"v_add_u32 v{sa[1]}, v{t[3]}, v{t[4]}")
    a(f"v_lshl_add_u32 v{sa[2]}, v3, 3, v{t[2]}")
    a(f"v_add_u32 v{sa[3]}, v{t[3]}, v{t[2]}")
    a(f"v_mul_u32_u24 v{t[2]}, 48, v1")
    a(f"v_add_u32 v{t[2]}, s60, v{t[2]}")
    a(f"v_lshl_add_u32 v{t[3]}, v1, 4, s60")
    a(f"v_bfe_u32 v{t[5]}, v1, 2, 2")
    a(f"v_lshl_add_u32 v{t[5]}, v3, 3, v{t[5]}")
    a(f"v_mul_u32_u24 v{t[5]}, 48, v{t[5]}")
    a(f"v_bfe_u32 v{t[6]}, v1, 4, 1")
    a(f"v_lshl_add_u32 v{t[5]}, v{t[6]}, 5, v{t[5]}")
    a(f"v_and_b32 v{t[6]}, 3, v1")
    a(f"v_lshl_add_u32 v{t[5]}, v{t[6]}, 3, v{t[5]}")
    a(f"v_add_u32 v{t[5]}, s60, v{t[5]}")
    a("s_lshl_b32 s55, s46, 1")
    a("s_add_u32 s55, s55, s52")
    a("v_cmp_eq_u32 vcc, 1, v3")
    a("v_cmp_gt_u32 s[66:67], 21, v2")
    a(f"v_mov_b32 v{pk}, 0x3f803f80")
    a(f"v_mov_b32 v{pk+1}, 0x3f80")
    a(f"v_mov_b32 v{t[6]}, {LNONCE}")
    a("s_barrier")
    stamp(a, 4)
    if X_P1:
        a("s_waitcnt lgkmcnt(0)")
        a(f"s_add_u32 s{asmlib.SB+8}, s{asmlib.SB+2}, s69")
    a(f"ds_read_b128 {vr(st,4)}, v{t[0]}")
    a(f"ds_read_b128 {vr(st+4,4)}, v{t[9]}")
    for tp in range(2):
        for q in range(4):
            a(f"ds_read_b128 {vr(csr + tp*16 + q*4, 4)}, v{t[1]} offset:{tp*128 + q*32}")
    a(f"ds_read_b64 {vr(vn,2)}, v{t[6]}")
    for g in range(3):
        a(f"ds_write_b64 v{t[2]}, {vr(pk,2)} offset:{g*3072 + 40}")
    a("s_waitcnt lgkmcnt(12)" if not asmlib.STAMP else "s_waitcnt lgkmcnt(0)")
    for rt in range(2):
        for g in range(3):
            a(f"v_mul_f32 v{rs + rt*4 + g}, s{62+g}, v{st + rt*4 + 1}")
        a(f"v_cndmask_b32 v{rs + rt*4 + 3}, v{rs + rt*4}, v{rs + rt*4 + 1}, vcc")
    a("s_waitcnt lgkmcnt(3)")
    for tp in range(2):
        for rt in range(2):
            c = acc + (tp * 2 + rt) * 16
            for q in range(4):
                pc0 = 8 * tp + 2 * q
                g, d4 = pc0 // 5, pc0 % 5
                wrap = d4 == 4
                rsel = rs + rt * 4 + (3 if (wrap and g == 0) else g)
                rp, rsl = rsel & ~1, rsel & 1
                tb = tmp + (q % 2) * 4
                for i in range(2):
                    a(f"v_pk_fma_f32 {vr(tb+2*i,2)}, {vr(st + rt*4,2)}, {vr(csr + tp*16 + q*4 + 2*i,2)}, {vr(c + q*4 + 2*i,2)} op_sel_hi:[0,1,1]")
                for i in range(2):
                    a(f"v_pk_mul_f32 {vr(tb+2*i,2)}, {vr(tb+2*i,2)}, {vr(rp,2)} op_sel:[0,{rsl}] op_sel_hi:[1,{rsl}]")
                pb = pk + (q % 2) * 2
                a(f"v_cvt_pk_bf16_f32 v{pb}, v{tb}, v{tb+1}")
                a(f"v_cvt_pk_bf16_f32 v{pb+1}, v{tb+2}, v{tb+3}")
                a(f"ds_write_b64 v{sa[rt*2 + (1 if wrap else 0)]}, {vr(pb,2)} offset:{g*3072 + d4*8}")
    b1r = csr + 16

    def cb_reads(tsel):
        if tsel == 0:
            a("s_lshl_b32 s61, s53, 8")
        else:
            a("s_movk_i32 s61, 128")
        a(f"v_lshl_add_u32 v{t[8]}, v3, 4, s61")
        a(f"v_add_u32 v{t[9]}, {LCS + 512}, v{t[8]}")
        a(f"v_add_u32 v{t[8]}, {LB1}, v{t[8]}")
        for q in range(4):
            a(f"ds_read_b128 {vr(csr + q*4, 4)}, v{t[9]} offset:{q*32}")
            a(f"ds_read_b128 {vr(b1r + q*4, 4)}, v{t[8]} offset:{q*32}")

    a("s_waitcnt lgkmcnt(0)")
    for g in range(3):
        lv = f"{name}_v{g}"
        le = f"{name}_ve{g}"
        a(f"s_add_u32 s61, s54, {g}")
        a("s_cmp_ge_u32 s61, 64")
        a(f"s_cbranch_scc1 {lv}")
        for e in range(3):
            a(f"ds_read_b128 {vr(acc + g*16 + e*4, 4)}, v{t[3]} offset:{g*3072 + e*1024}")
        a("s_mul_i32 s60, s61, 98304")
        a("s_mul_i32 s61, s55, 3072")
        a("s_add_u32 s60, s60, s61")
        for e in range(3):
            a(f"s_waitcnt lgkmcnt({2-e})")
            a(f"buffer_store_dwordx4 {vr(acc + g*16 + e*4, 4)}, v{vl16}, s[4:7], s60 offen offset:{e*1024} sc1")
        a(f"s_branch {le}")
        a.label(lv)
        for e in range(4):
            for h in range(2):
                a(f"ds_read_b64_tr_b16 {vr(acc + g*16 + e*4 + h*2, 2)}, v{t[5]} offset:{g*3072 + e*768 + h*192}")
        a("s_sub_u32 s60, s61, 64")
        a("s_lshl_b32 s60, s60, 17")
        a("s_lshl_b32 s61, s55, 12")
        a("s_add_u32 s60, s60, s61")
        a(f"s_add_u32 s60, s60, {WS_VT}")
        a("s_mov_b64 exec, s[66:67]")
        for e in range(4):
            a(f"s_waitcnt lgkmcnt({6-2*e})")
            a(f"buffer_store_dwordx4 {vr(acc + g*16 + e*4, 4)}, v{vl16}, s[4:7], s60 offen offset:{e*1024} sc1")
        a("s_mov_b64 exec, -1")
        a.label(le)
    stamp(a, 5)
    cb_reads(0)
    u = acc + 48
    kc = t[0] if t[0] % 2 == 0 else t[1]
    assert kc + 1 in t
    k0 = -2.0 * math.log2(math.e) * math.sqrt(2.0 / math.pi)
    k1 = k0 * 0.044715
    a(f"v_mov_b32 v{kc}, {hexf(k1)}")
    a(f"v_mov_b32 v{kc+1}, {hexf(k0)}")
    a("s_mul_i32 s60, s3, 10240")
    a(f"s_add_u32 s60, s60, {LH}")
    a(f"v_add_u32 v{t[2]}, s60, v{vl16}")
    a("s_lshl_b32 s60, s47, 4")
    a("s_add_u32 s60, s60, s46")
    a("s_lshl_b32 s60, s60, 2")
    a("s_add_u32 s60, s60, s3")
    a("s_lshl_b32 s60, s60, 3")
    a(f"s_add_u32 s58, s60, {WS_FQ}")
    for k, (tile, rt) in enumerate(((4, 0), (5, 1), (6, 0))):
        c = acc + tile * 16
        sp = st + rt * 4 + 2
        if k != 1:
            a("s_waitcnt lgkmcnt(0)")
        for i in range(8):
            a(f"v_pk_fma_f32 {vr(u+2*i,2)}, {vr(sp,2)}, {vr(csr+2*i,2)}, {vr(b1r+2*i,2)} op_sel:[1,0,0] op_sel_hi:[1,1,1]")
        if k == 1:
            cb_reads(1)
        for i in range(8):
            a(f"v_pk_fma_f32 {vr(u+2*i,2)}, {vr(c+2*i,2)}, {vr(sp,2)}, {vr(u+2*i,2)} op_sel_hi:[1,0,1]")
        wv = c
        for i in range(8):
            a(f"v_pk_mul_f32 {vr(wv+2*i,2)}, {vr(u+2*i,2)}, {vr(u+2*i,2)}")
        for i in range(8):
            a(f"v_pk_fma_f32 {vr(wv+2*i,2)}, {vr(wv+2*i,2)}, {vr(kc,2)}, {vr(kc,2)} op_sel:[0,0,1] op_sel_hi:[1,0,1]")
        for i in range(8):
            a(f"v_pk_mul_f32 {vr(wv+2*i,2)}, {vr(wv+2*i,2)}, {vr(u+2*i,2)}")
        for i in range(16):
            a(f"v_exp_f32 v{wv+i}, v{wv+i}")
        if k == 1:
            a("s_waitcnt vmcnt(0)")
            put_flag(a, "s58", vz, vn)
            stamp(a, 6)
        for i in range(8):
            a(f"v_pk_add_f32 {vr(wv+2*i,2)}, {vr(wv+2*i,2)}, 1.0 op_sel_hi:[1,0]")
        for i in range(16):
            a(f"v_rcp_f32 v{wv+i}, v{wv+i}")
        for i in range(8):
            a(f"v_pk_mul_f32 {vr(u+2*i,2)}, {vr(u+2*i,2)}, {vr(wv+2*i,2)}")
        for i in range(8):
            a(f"v_cvt_pk_bf16_f32 v{wv+i}, v{u+2*i}, v{u+2*i+1}")
        a(f"ds_write_b128 v{t[2]}, {vr(wv,4)} offset:{k*2048}")
        a(f"ds_write_b128 v{t[2]}, {vr(wv+4,4)} offset:{k*2048 + 1024}")
    stamp(a, 7)
    R.release(mark)
    vk1 = R.alloc("vk1")
    vk2 = R.alloc("vk2")
    vvv = R.alloc("vvv")
    vq1 = R.alloc("vq1")
    vq2 = R.alloc("vq2")
    vmx = R.alloc("vmx", 2, 2)
    pk2 = R.alloc("pk2", 4, 2)
    S = R.alloc("S", 32, 4)
    P = R.alloc("P", 16, 4)
    K = R.alloc("K", 32, 4)
    V = R.alloc("V", 32, 4)
    Q = R.alloc("Q", 32, 4)
    AO = 0
    a(f"v_mul_u32_u24 v{t[0]}, 48, v2")
    a(f"v_lshl_add_u32 v{vq1}, v3, 4, v{t[0]}")
    a(f"v_lshlrev_b32 v{t[1]}, 30, v3")
    a(f"v_add3_u32 v{vq2}, v{t[0]}, v{t[1]}, 32")
    a(f"v_and_b32 v{t[2]}, 0x13, v2")
    a(f"v_bfe_u32 v{t[3]}, v2, 2, 1")
    a(f"v_lshl_or_b32 v{t[2]}, v{t[3]}, 3, v{t[2]}")
    a(f"v_bfe_u32 v{t[3]}, v2, 3, 1")
    a(f"v_lshl_or_b32 v{t[2]}, v{t[3]}, 2, v{t[2]}")
    a(f"v_mul_u32_u24 v{t[2]}, 48, v{t[2]}")
    a(f"v_lshl_add_u32 v{vk1}, v3, 4, v{t[2]}")
    a(f"v_add3_u32 v{vk2}, v{t[2]}, v{t[1]}, 32")
    a("v_cmp_lt_u32 vcc, 20, v2")
    a(f"v_mov_b32 v{t[3]}, 0x40000000")
    a("v_cmp_eq_u32 s[56:57], 0, v3")
    a(f"v_cndmask_b32 v{t[3]}, 0, v{t[3]}, vcc")
    a(f"v_add_u32 v{vvv}, v{t[3]}, v{vl16}")
    def gword(dst, add):
        a(f"s_add_u32 s60, s48, {add}")
        a("s_mul_i32 s61, s60, 43")
        a("s_lshr_b32 s61, s61, 8")
        a("s_mul_i32 s62, s61, 6")
        a("s_sub_u32 s62, s60, s62")
        a("s_cmp_ge_u32 s62, 3")
        a("s_cselect_b32 s62, 16, 0")
        a("s_lshl_b32 s61, s61, 9")
        a(f"s_add_u32 s{dst}, s61, s62")
    gword(63, 32)
    gword(64, 64)
    gword(65, 0)
    a(f"v_lshrrev_b32 v{t[4]}, 1, v2")
    a(f"v_lshlrev_b32 v{t[4]}, 5, v{t[4]}")
    a(f"v_and_b32 v{t[5]}, 1, v2")
    a(f"v_lshl_add_u32 v{t[4]}, v{t[5]}, 3, v{t[4]}")
    a(f"v_mov_b32 v{t[5]}, s63")
    a(f"v_mov_b32 v{t[6]}, s64")
    a(f"v_cndmask_b32 v{t[5]}, v{t[6]}, v{t[5]}, s[56:57]")
    a(f"v_add_u32 v{t[5]}, v{t[5]}, v{t[4]}")
    a(f"v_add_u32 v{t[4]}, s65, v{t[4]}")
    a(f"s_mul_i32 s60, s48, {GSTRIDE}")
    a(f"s_add_u32 s54, s60, {WS_QK + 32*GSTRIDE}")
    a("s_lshl_b32 s61, s49, 1")
    a("s_add_u32 s61, s61, s52")
    a("s_mul_i32 s61, s61, 6144")
    a("s_add_u32 s55, s60, s61")
    a("s_mul_i32 s61, s53, 49152")
    a("s_add_u32 s62, s54, s61")
    a("s_lshl_b32 s60, s48, 17")
    a("s_lshl_b32 s61, s53, 16")
    a("s_add_u32 s63, s60, s61")
    a(f"s_add_u32 s63, s63, {WS_VT}")
    for i in range(64):
        a(f"v_accvgpr_write_b32 a{AO+i}, 0")
    def kpads():
        for b in range(4):
            a(f"v_mov_b32 v{K+b*8+6}, 0x3f803f80")
            a(f"v_mov_b32 v{K+b*8+7}, 0x3f80")
    for qt in range(4):
        a(f"v_mov_b32 v{Q+qt*8+6}, 0")
        a(f"v_mov_b32 v{Q+qt*8+7}, 0")
    kpads()
    a(f"v_mov_b32 v{t[6]}, {LFLAG}")
    stamp(a, 8)
    a(f"s_mov_b32 s61, {WS_FQ}")
    poll(a, name + "_fq", t[5], "s61", pk2, vr(vn, 2), extra=t[4])
    stamp(a, 9)
    a("s_mov_b32 s58, 1")
    for i in range(4):
        a("s_lshl_b32 s60, s53, 1")
        a(f"s_add_u32 s60, s60, {i}")
        a("s_and_b32 s60, s60, 3")
        a("s_mul_i32 s60, s60, 1536")
        a(f"s_add_u32 s{66 + i}, s60, s55")

    def kload(buf, soff, off=0, SC=" sc1"):
        a(f"buffer_load_dwordx4 {vr(K + buf*8, 4)}, v{vk1}, s[4:7], {soff} offen offset:{off}{SC}")
        a(f"buffer_load_dwordx2 {vr(K + buf*8 + 4, 2)}, v{vk2}, s[4:7], {soff} offen offset:{off}{SC}")

    def vload(buf, soff, off=0, SC=" sc1"):
        a(f"buffer_load_dwordx4 {vr(V + buf*8, 4)}, v{vvv}, s[4:7], {soff} offen offset:{off}{SC}")
        a(f"buffer_load_dwordx4 {vr(V + buf*8 + 4, 4)}, v{vvv}, s[4:7], {soff} offen offset:{off + 1024}{SC}")

    def qk(dst, kbuf, qt, part):
        c = "0" if part == 0 else vr(dst, 16)
        a(f"v_mfma_f32_32x32x16_bf16 {vr(dst,16)}, {vr(K + kbuf*8 + part*4, 4)}, {vr(Q + qt*8 + part*4, 4)}, {c}")

    def pv(qt, pb, vbuf, part):
        a(f"v_mfma_f32_32x32x16_bf16 {ar(AO + qt*16,16)}, {vr(V + vbuf*8 + part*4, 4)}, {vr(P + pb*8 + part*4, 4)}, {ar(AO + qt*16,16)}")

    def first_loads():
        kload(0, "s62")
        vload(0, "s63")
        kload(1, "s62", 1536)
        vload(1, "s63", 2048)
        a("s_add_u32 s64, s62, 3072")
        a("s_add_u32 s65, s63, 4096")
        kload(2, "s64")
        vload(2, "s65")

    kload(0, "s62")
    for i in range(4):
        a(f"buffer_load_dwordx4 {vr(Q + i*8, 4)}, v{vq1}, s[4:7], s{66 + i} offen sc1")
        a(f"buffer_load_dwordx2 {vr(Q + i*8 + 4, 2)}, v{vq2}, s[4:7], s{66 + i} offen sc1")
        if i == 1:
            vload(0, "s63")
    kload(1, "s62", 1536)
    vload(1, "s63", 2048)
    a("s_add_u32 s64, s62, 3072")
    a("s_add_u32 s65, s63, 4096")
    kload(2, "s64")
    vload(2, "s65")
    first = f"{name}_first"
    a("s_waitcnt vmcnt(12) lgkmcnt(0)")
    a("s_barrier")
    a(f"s_branch {first}")
    restart = f"{name}_restart"
    a.label(restart)
    kpads()
    for i in range(64):
        a(f"v_accvgpr_write_b32 a{AO+i}, 0")
    a(f"v_mov_b32 v{vmx}, 0xff800000")
    a(f"v_mov_b32 v{vmx+1}, 0xff800000")
    a("s_mov_b32 s60, s54")
    a("s_mov_b32 s61, s58")
    a("s_lshl_b32 s64, s52, 12")
    a("s_lshl_b32 s65, s53, 10")
    a("s_add_u32 s64, s64, s65")
    a(f"s_add_u32 s64, s64, {LM}")
    a(f"v_lshl_add_u32 v{t[4]}, v1, 3, s64")
    mx = f"{name}_mx"
    a.label(mx)
    kload(3, "s60")
    a("s_waitcnt vmcnt(0)")
    for qt in range(2):
        qk(S + qt*16, 3, qt, 0)
        qk(S + qt*16, 3, qt, 1)
    a("s_nop 7")
    a("s_add_u32 s60, s60, 1536")
    a("s_sub_u32 s61, s61, 1")
    for qt in range(2):
        for i in range(8):
            a(f"v_max3_f32 v{vmx+qt}, v{S+qt*16+2*i}, v{S+qt*16+2*i+1}, v{vmx+qt}")
    a("s_cmp_lg_u32 s61, 0")
    a(f"s_cbranch_scc1 {mx}")
    for qt in range(2):
        m = vmx + qt
        a(f"v_mov_b32 v{t[2]}, v{m}")
        a(f"v_mov_b32 v{t[3]}, v{m}")
        a("s_nop 1")
        a(f"v_permlane32_swap_b32 v{t[2]}, v{t[3]}")
        a("s_nop 1")
        a(f"v_max_f32 v{m}, v{t[2]}, v{t[3]}")
        a(f"v_sub_f32 v{m}, 0, v{m}")
        a(f"v_and_b32 v{t[2]}, 0xffff0000, v{m}")
        a(f"v_sub_f32 v{m}, v{m}, v{t[2]}")
        a(f"v_and_b32 v{t[3]}, 0xffff0000, v{m}")
        a(f"v_sub_f32 v{m}, v{m}, v{t[3]}")
        a(f"v_lshrrev_b32 v{t[2]}, 16, v{t[2]}")
        a(f"v_or_b32 v{t[2]}, v{t[2]}, v{t[3]}")
        a(f"v_lshrrev_b32 v{t[3]}, 16, v{m}")
        a(f"v_cndmask_b32 v{pk2}, 0, v{t[2]}, s[56:57]")
        a(f"v_cndmask_b32 v{pk2+1}, 0, v{t[3]}, s[56:57]")
        a(f"ds_write_b64 v{t[4]}, {vr(pk2,2)} offset:{qt*512}")
        a(f"ds_write_b64 v{t[4]}, {vr(pk2,2)} offset:{qt*512 + 2048}")
    first_loads()
    a("s_waitcnt lgkmcnt(0)")
    a("s_barrier")
    for i in range(4):
        a(f"ds_read_b64 {vr(Q + i*8 + 6, 2)}, v{t[4]} offset:{i*512}")
    a("s_waitcnt vmcnt(8) lgkmcnt(0)")
    a.label(first)
    for i in range(4):
        a(f"v_mov_b32 v{V+28+i}, 0")
        a(f"v_mov_b32 v{P+12+i}, 0")
    stamp(a, 10)
    qk(S, 0, 0, 0)
    qk(S, 0, 0, 1)
    a("s_add_u32 s64, s62, 4608")
    a("s_add_u32 s65, s63, 6144")
    a("s_mov_b32 s60, 0")
    a("s_nop 6")

    def unit(uu, hooks):
        buf, u = uu // 4, uu % 4
        sb = u % 2
        Xs = S + sb * 16
        Y = S + (1 - sb) * 16
        nq = (u + 1) % 4
        kb = buf if u < 3 else (buf + 1) % 4
        pq = (u - 1) % 4
        pvb = buf if u > 0 else (buf - 1) % 4
        def e(r):
            for i in r: a(f"v_exp_f32 v{Xs+i}, v{Xs+i}")
        def c(r):
            for i in r: a(f"v_cvt_pk_bf16_f32 v{P+sb*8+i}, v{Xs+2*i}, v{Xs+2*i+1}")
        def h(k):
            if k in hooks: hooks[k]()
        h(0)
        qk(Y, kb, nq, 0)
        e(range(4))
        qk(Y, kb, nq, 1)
        e(range(4, 8))
        pv(pq, 1 - sb, pvb, 1)
        h(1)
        c(range(4))
        e(range(8, 12))
        pv(u, sb, buf, 0)
        h(2)
        e(range(12, 16))
        c(range(4, 8))

    loop = f"{name}_loop"
    a.raw(".p2align 6")
    a.label(loop)
    for uu in range(16):
        tl, u = uu // 4, uu % 4
        hk = {}
        if u == 0:
            if not X_NOKV:
                hk[1] = lambda tl=tl: kload((tl + 3) % 4, "s64", (tl % 2) * 1536, "")
                hk[2] = lambda tl=tl: vload((tl + 3) % 4, "s65", (tl % 2) * 2048, "")
        if u == 1 and tl % 2 == 1:
            hk[1] = lambda: a("s_add_u32 s64, s64, 3072")
            hk[2] = lambda: a("s_add_u32 s65, s65, 4096")
        if uu == 1:
            def hw():
                a("s_cmp_eq_u32 s60, 7")
                a("s_cselect_b32 s64, s62, s64")
            hk[0] = lambda: a("s_waitcnt vmcnt(12)")
            hk[1] = hw
            hk[2] = lambda: a("s_cselect_b32 s65, s63, s65")
        if u == 3:
            hk[0] = lambda: a("s_waitcnt vmcnt(8)")
        if uu == 14:
            hk[1] = lambda: a("s_add_u32 s60, s60, 1")
            hk[2] = lambda: a("s_cmp_lt_u32 s60, 8")
        unit(uu, hk)
    a(f"s_cbranch_scc1 {loop}")
    a("s_nop 1")
    pv(3, 1, 3, 1)
    stamp(a, 11)
    a("s_xor_b32 s60, s3, 2")
    a("s_mul_i32 s60, s60, 6144")
    a(f"s_add_u32 s60, s60, {LC}")
    a(f"v_add_u32 v{t[0]}, s60, v{vl16}")
    a("s_mul_i32 s60, s3, 6144")
    a(f"s_add_u32 s60, s60, {LC}")
    a(f"v_add_u32 v{t[3]}, s60, v{vl16}")
    a(f"s_mov_b32 s60, {hexf(2.0**100)}")
    a("s_nop 3")
    for j in range(3):
        a(f"ds_write_b128 v{t[0]}, {ar(AO + 32 + j*4, 4)} offset:{j*1024}")
    for i in range(4):
        a(f"v_accvgpr_read_b32 v{S+i}, a{AO + i*16 + 8}")
    for j in range(3):
        a(f"ds_write_b128 v{t[0]}, {ar(AO + 48 + j*4, 4)} offset:{3072 + j*1024}")
    a(f"v_min_f32 v{S+4}, v{S}, v{S+1}")
    a(f"v_min3_f32 v{S+4}, v{S+4}, v{S+2}, v{S+3}")
    for i in range(1, 4):
        a(f"v_add_f32 v{S}, v{S}, v{S+i}")
    a(f"s_mov_b32 s61, {hexf(2.0**-60)}")
    a(f"v_cmp_nge_f32 vcc, s60, v{S}")
    a(f"v_cmp_nle_f32 s[66:67], s61, v{S+4}")
    a("s_or_b64 vcc, vcc, s[66:67]")
    a("s_andn2_b64 vcc, vcc, s[56:57]")
    nb = f"{name}_notbad"
    if X_NOKV: a("s_branch " + nb)
    a("s_cbranch_vccz " + nb)
    a(f"v_mov_b32 v{t[7]}, 1")
    a(f"ds_write_b32 v{t[6]}, v{t[7]}")
    a.label(nb)
    a("s_lshl_b32 s60, s49, 3")
    a("s_lshl_b32 s61, s52, 2")
    a("s_add_u32 s60, s60, s61")
    a("s_lshl_b32 s61, s53, 1")
    a("s_add_u32 s60, s60, s61")
    a("s_lshr_b32 s66, s60, 1")
    a("s_mul_i32 s60, s60, 40960")
    a(f"s_add_u32 s60, s60, {WS_O}")
    a("s_lshl_b32 s64, s48, 10")
    a("s_add_u32 s64, s64, s60")
    a("s_lshr_b32 s65, s48, 2")
    a("s_add_u32 s65, s65, 32")
    a("s_lshl_b32 s65, s65, 10")
    a("s_add_u32 s65, s65, s60")
    a("s_bfe_u32 s60, s48, 0x10001")
    a("s_lshl_b32 s60, s60, 9")
    a("s_add_u32 s65, s65, s60")
    a("s_and_b32 s60, s48, 1")
    a("s_lshl_b32 s60, s60, 3")
    a("s_add_u32 s65, s65, s60")
    a("s_lshl_b32 s66, s66, 8")
    a("s_lshl_b32 s60, s48, 3")
    a("s_add_u32 s66, s66, s60")
    a(f"s_add_u32 s66, s66, {WS_FO}")
    a("s_waitcnt vmcnt(0)")
    for i in range(24):
        a(f"v_accvgpr_read_b32 v{P + i}, a{AO + (i//12)*16 + i%12}")
    a("s_waitcnt lgkmcnt(0)")
    a("s_barrier")
    a(f"ds_read_b32 v{t[7]}, v{t[6]}")
    for k in range(6):
        a(f"ds_read_b128 {vr(S + k*4, 4)}, v{t[3]} offset:{k*1024}")
    a("s_waitcnt lgkmcnt(6)")
    a(f"v_readfirstlane_b32 s60, v{t[7]}")
    fin = f"{name}_fin"
    a("s_cmp_eq_u32 s60, 0")
    a(f"s_cbranch_scc1 {fin}")
    a("s_cmp_eq_u32 s58, 64")
    a(f"s_cbranch_scc1 {fin}")
    a("s_mov_b32 s58, 64")
    a("s_waitcnt lgkmcnt(0)")
    a("s_barrier")
    a(f"s_branch {restart}")
    a.label(fin)
    a("s_waitcnt lgkmcnt(0)")
    for qt in range(2):
        o = S + qt * 12
        for i in range(6):
            a(f"v_pk_add_f32 {vr(o+2*i,2)}, {vr(o+2*i,2)}, {vr(P + qt*12 + 2*i,2)}")
        a(f"v_rcp_f32 v{t[0]}, v{o+8}")
        a("s_nop 0")
        a(f"v_mov_b32 v{t[1]}, v{t[0]}")
        a("s_nop 1")
        a(f"v_permlane32_swap_b32 v{t[0]}, v{t[1]}")
        a("s_nop 1")
        for i in range(12):
            a(f"v_mul_f32 v{o+i}, v{o+i}, v{t[1]}")
        pq_ = V + qt * 8
        for i in range(6):
            a(f"v_cvt_pk_bf16_f32 v{pq_+i}, v{o+2*i}, v{o+2*i+1}")
        a(f"buffer_store_dwordx4 {vr(pq_,4)}, v{vl16}, s[4:7], s64 offen sc1")
        a("s_mov_b64 exec, s[56:57]")
        a(f"buffer_store_dwordx2 {vr(pq_+4,2)}, v{vl16}, s[4:7], s65 offen sc1")
        a("s_mov_b64 exec, -1")
        if qt == 0:
            a("s_add_u32 s64, s64, 40960")
            a("s_add_u32 s65, s65, 40960")
    a("s_waitcnt vmcnt(0)")
    put_flag(a, "s66", vz, vn)
    stamp(a, 12)
    stamp_flush(a, 13, 4, 0, 4, 5)
    dbg_flush(a, 13, [2, 3, 6, 7, 9, 10, 11], 2, 0, 37, 4, 5)


def gen_b(a, name):
    R = Regs(4, ACCUM)
    t = [R.alloc(f"t{i}") for i in range(14)]
    vn = R.alloc("vn", 2, 2)
    vz = R.alloc("vz")
    vl16 = R.alloc("vl16")
    vl4 = R.alloc("vl4")
    vid = R.alloc("vid", 3)
    AD0 = R.alloc("AD", 12, 2)
    vrr = AD0
    vrc = AD0 + 3
    LA = R.alloc("LA", 5)
    GA = R.alloc("GA", 5)
    BO = R.alloc("BO", 5)
    XB = R.alloc("XB", 20, 2)
    mark = R.mark()
    vx = R.alloc("vx", 4)
    vq = R.alloc("vq", 4)
    v1_ = R.alloc("v1", 3)
    D = R.alloc("D", 44, 4)
    ac = R.alloc("ac", 8, 4)
    E = R.alloc("E", 24, 4)
    XR = R.alloc("XR", 20, 2)
    a("s_setprio 3")
    a("s_sub_u32 s52, s3, 4")
    a(f"v_lshrrev_b32 v{t[0]}, 3, v1")
    a(f"v_mul_u32_u24 v{t[0]}, 1280, v{t[0]}")
    a(f"v_and_b32 v{t[1]}, 7, v1")
    a(f"v_lshl_add_u32 v{t[12]}, v{t[1]}, 4, v{t[0]}")
    a(f"v_lshrrev_b32 v{t[2]}, 4, v1")
    a(f"v_xor_b32 v{t[3]}, v{t[1]}, v{t[2]}")
    a(f"v_xor_b32 v{t[4]}, 4, v{t[3]}")
    for e in range(4):
        a(f"v_lshl_add_u32 v{vx+e}, v{t[3 + (e%2)]}, 4, v{t[0]}")
        if e:
            a(f"v_add_u32 v{vx+e}, {e*(10240-1024)}, v{vx+e}")
    a(f"v_mul_u32_u24 v{t[0]}, 3840, v{t[2]}")
    a(f"v_and_b32 v{t[1]}, 15, v1")
    a(f"v_lshlrev_b32 v{t[3]}, 2, v{t[2]}")
    a(f"v_xor_b32 v{t[1]}, v{t[1]}, v{t[3]}")
    a(f"v_lshl_add_u32 v{vq}, v{t[1]}, 4, v{t[0]}")
    for e in range(1, 4):
        a(f"v_add_u32 v{vq+e}, {e*(4*3840-1024)}, v{vq}")
    for e in range(3):
        a(f"v_add_u32 v{t[0]}, {64*e}, v1")
        a(f"v_mul_u32_u24 v{t[1]}, 43691, v{t[0]}")
        a(f"v_lshrrev_b32 v{t[1]}, 19, v{t[1]}")
        a(f"v_mul_u32_u24 v{t[2]}, 12, v{t[1]}")
        a(f"v_sub_u32 v{t[2]}, v{t[0]}, v{t[2]}")
        a(f"v_mov_b32 v{vrr+e}, v{t[1]}")
        a(f"v_lshlrev_b32 v{vrc+e}, 4, v{t[2]}")
        a(f"v_mul_u32_u24 v{t[1]}, 3072, v{t[1]}")
        a(f"v_lshl_add_u32 v{v1_+e}, v{t[2]}, 4, v{t[1]}")
        if e:
            a(f"v_subrev_u32 v{v1_+e}, {1024*e}, v{v1_+e}")
    a("s_lshl_b32 s60, s46, 2")
    a("s_add_u32 s60, s60, s52")
    a("s_mul_i32 s53, s60, 40960")
    a("s_mul_i32 s54, s52, 61440")
    a("s_mul_i32 s60, s47, 240")
    a("s_add_u32 s54, s54, s60")
    a("s_mul_i32 s55, s52, 49152")
    a("s_mul_i32 s60, s47, 192")
    a("s_add_u32 s55, s55, s60")
    a("s_lshl_b32 s56, s52, 12")
    a("s_mul_i32 s57, s52, 3072")
    a(f"s_add_u32 s57, s57, {L1}")
    a("s_mov_b32 s58, 0")
    a("s_mov_b32 s59, 0")
    a(f"v_mov_b32 v{vz}, 0")
    a(f"v_lshlrev_b32 v{vl16}, 4, v1")
    a(f"v_lshlrev_b32 v{vl4}, 2, v1")
    a("s_waitcnt lgkmcnt(0)")
    srd(a, 8, 24, 2048 * 640 * 2)
    srd(a, 12, 26, 640 * 1920 * 2)
    srd(a, 16, 32, 640 * 1536 * 2)

    def issue():
        a("s_add_u32 m0, s56, s58")
        a("s_nop 0")
        for e in range(4):
            a(f"buffer_load_dwordx4 v{vx+e}, s[8:11], s53 offen offset:{e*1024} lds")
        a(f"s_add_u32 m0, m0, {LQ}")
        a("s_add_u32 s53, s53, 128")
        for e in range(4):
            a(f"buffer_load_dwordx4 v{vq+e}, s[12:15], s54 offen offset:{e*1024} lds")
        a("s_add_u32 m0, s57, s59")
        a("s_add_u32 s54, s54, 245760")
        for e in range(3):
            a(f"buffer_load_dwordx4 v{v1_+e}, s[16:19], s55 offen offset:{e*1024} lds")
        a("s_add_u32 s55, s55, 196608")
        a("s_add_u32 s58, s58, 16384")
        a("s_add_u32 s59, s59, 12288")
        a("s_cmp_eq_u32 s58, 49152")
        a("s_cselect_b32 s58, 0, s58")
        a("s_cselect_b32 s59, 0, s59")

    issue()
    srd(a, 4, 44, WS_BYTES)
    srd(a, 20, 42, 256)
    nn = f"{name}_nononce"
    a("s_lshl_b32 s60, s2, 2")
    a("s_add_u32 s60, s60, s52")
    a("s_cmp_lg_u32 s60, 3")
    a(f"s_cbranch_scc1 {nn}")
    a("s_memrealtime s[60:61]")
    a("s_waitcnt lgkmcnt(0)")
    a("s_or_b32 s60, s60, 1")
    a(f"v_mov_b32 v{vn}, s60")
    a(f"v_mov_b32 v{vn+1}, s61")
    a("s_mov_b64 exec, 1")
    a(f"buffer_store_dwordx2 {vr(vn,2)}, v{vz}, s[20:23], 0 offen sc1")
    a("s_mov_b64 exec, -1")
    a.label(nn)
    issue()

    def get_nonce():
        lp, go = a.uid(name + "_np"), a.uid(name + "_ng")
        a(f"s_mov_b32 s68, {SPIN_MAX}")
        a.label(lp)
        a(f"v_cmp_ne_u32 vcc, 0, v{vn}")
        a(f"s_cbranch_vccnz {go}")
        a("s_sub_u32 s68, s68, 1")
        a("s_cmp_eq_u32 s68, 0")
        a(f"s_cbranch_scc1 {go}")
        a(f"buffer_load_dwordx2 {vr(vn,2)}, v{vz}, s[20:23], 0 offen sc1")
        a("s_waitcnt vmcnt(0)")
        a(f"s_branch {lp}")
        a.label(go)

    def fprep():
        for it in range(5):
            a(f"v_add_u32 v{t[0]}, {it*256 - 256}, v0")
            a(f"v_mul_u32_u24 v{t[1]}, 52429, v{t[0]}")
            a(f"v_lshrrev_b32 v{t[1]}, 20, v{t[1]}")
            a(f"v_mul_u32_u24 v{t[2]}, 20, v{t[1]}")
            a(f"v_sub_u32 v{t[2]}, v{t[0]}, v{t[2]}")
            a(f"v_mul_u32_u24 v{t[3]}, {RS}, v{t[1]}")
            a(f"v_lshl_add_u32 v{LA+it}, v{t[2]}, 4, v{t[3]}")
            a(f"v_mul_u32_u24 v{t[3]}, 1280, v{t[1]}")
            a(f"v_lshl_add_u32 v{GA+it}, v{t[2]}, 3, v{t[3]}")
            a(f"v_lshlrev_b32 v{BO+it}, 3, v{t[2]}")

    fprep()

    def rt_fetch(slot_sgpr_expr, usg):
        lw, lt, lg = a.uid("rtw"), a.uid("rtt"), a.uid("rtg")
        a(f"s_mul_hi_u32 s60, s{usg}, {-(-2**32 // 136)}")
        a("s_mul_i32 s61, s60, 136")
        a(f"s_sub_u32 s61, s{usg}, s61")
        a("s_mul_i32 s60, s60, 160")
        a("s_cmp_ge_u32 s61, 96")
        a(f"s_cbranch_scc1 {lw}")
        srd(a, 64, 36, 1536 * 640 * 2)
        a("s_mul_i32 s61, s61, 20480")
        for e in range(3):
            a(f"v_mov_b32 v{t[e]}, v{vrr+e}")
        a(f"s_branch {lg}")
        a.label(lw)
        srd(a, 64, 28, 640 * 640 * 2)
        a("s_cmp_ge_u32 s61, 128")
        a(f"s_cbranch_scc1 {lt}")
        a("s_sub_u32 s61, s61, 96")
        a("s_mul_i32 s61, s61, 25600")
        for e in range(3):
            a(f"v_mov_b32 v{t[e]}, v{vrr+e}")
        a(f"s_branch {lg}")
        a.label(lt)
        a("s_sub_u32 s61, s61, 128")
        a("s_mul_i32 s61, s61, 102400")
        for e in range(3):
            a(f"v_bfe_u32 v{t[3]}, v{vrr+e}, 2, 1")
            a(f"v_bfe_u32 v{t[4]}, v{vrr+e}, 3, 1")
            a(f"v_lshl_add_u32 v{t[3]}, v{t[3]}, 1, v{t[4]}")
            a(f"v_mul_u32_u24 v{t[3]}, 20, v{t[3]}")
            a(f"v_and_b32 v{t[4]}, 3, v{vrr+e}")
            a(f"v_add3_u32 v{t[e]}, v{t[3]}, v{t[4]}, 16")
        a.label(lg)
        a("s_add_u32 s61, s61, s60")
        a(slot_sgpr_expr)
        for e in range(3):
            a(f"v_mul_u32_u24 v{t[e]}, 1280, v{t[e]}")
            a(f"v_add_u32 v{t[e]}, v{t[e]}, v{vrc+e}")
        for e in range(3):
            a(f"buffer_load_dwordx4 v{t[e]}, s[64:67], s61 offen lds")
            if e < 2:
                a("s_add_u32 m0, m0, 1024")
                a("s_nop 0")

    a("s_waitcnt vmcnt(11)")
    a("s_barrier")
    issue()
    a("s_lshl_b32 s62, s52, 8")
    a("s_add_u32 s62, s62, s2")
    a("s_mul_i32 s69, s52, 3072")
    rt_fetch(f"s_add_u32 m0, s69, {LRT}", 62)
    a("s_add_u32 s63, s62, 1024")
    n2 = f"{name}_no2"
    a("s_cmp_ge_u32 s62, 64")
    a(f"s_cbranch_scc1 {n2}")
    rt_fetch(f"s_mov_b32 m0, {LRT + 4*3072}", 63)
    a.label(n2)
    a(f"buffer_load_dwordx2 {vr(vn,2)}, v{vz}, s[20:23], 0 offen sc1")
    srd(a, 64, 38, 640 * 2)
    a("s_mul_i32 s60, s50, 81920")
    a("s_mul_i32 s61, s51, 160")
    a("s_add_u32 s60, s60, s61")
    for it in range(5):
        a(f"buffer_load_dwordx2 {vr(XR+4*it,2)}, v{GA+it}, s[8:11], s60 offen")
        a(f"buffer_load_dwordx2 {vr(XR+4*it+2,2)}, v{BO+it}, s[64:67], s61 offen")
    nl = 3 + 1 + 10
    a(f"v_lshlrev_b32 v{t[8]}, 3, v1")

    def by_role(f0, f12, f3):
        l12, l3, le = a.uid("r12"), a.uid("r3"), a.uid("re")
        a("s_cmp_eq_u32 s52, 3")
        a(f"s_cbranch_scc1 {l3}")
        a("s_cmp_lg_u32 s52, 0")
        a(f"s_cbranch_scc1 {l12}")
        f0()
        a(f"s_branch {le}")
        a.label(l12)
        f12()
        a(f"s_branch {le}")
        a.label(l3)
        f3()
        a.label(le)

    def pub0():
        a(f"v_and_b32 v{t[0]}, 7, v1")
        a(f"v_lshlrev_b32 v{t[0]}, 4, v{t[0]}")
        a(f"v_add_u32 v{t[1]}, {LPUB}, v{t[0]}")
        a(f"ds_read_b128 {vr(D,4)}, v{t[1]}")
        a("s_lshl_b32 s60, s46, 4")
        a("s_add_u32 s60, s60, s47")
        a("s_lshl_b32 s62, s60, 3")
        a(f"s_add_u32 s62, s62, {WS_FSR}")
        a("s_lshl_b32 s60, s60, 7")
        a(f"s_add_u32 s60, s60, {WS_ST}")
        a("s_waitcnt lgkmcnt(0)")
        a(f"buffer_store_dwordx4 {vr(D,4)}, v{t[0]}, s[4:7], s60 offen sc1")

    def pub12():
        a("s_lshl_b32 s61, s52, 11")
        a(f"s_add_u32 s60, s61, {LPUB + 128 - 2048}")
        a(f"v_add_u32 v{t[1]}, s60, v{t[8]}")
        for r4 in range(4):
            a(f"ds_read_b64 {vr(D + 2*r4, 2)}, v{t[1]} offset:{r4*512}")
        a("s_lshl_b32 s60, s47, 4")
        a("s_add_u32 s60, s60, s46")
        a("s_lshl_b32 s62, s60, 3")
        a("s_add_u32 s62, s62, s61")
        a(f"s_add_u32 s62, s62, {WS_FSC - 2048}")
        a("s_lshl_b32 s60, s60, 10")
        a("s_lshr_b32 s61, s61, 2")
        a("s_add_u32 s60, s60, s61")
        a(f"s_add_u32 s60, s60, {WS_CS - 512}")
        a("s_waitcnt lgkmcnt(0)")
        for r4 in range(1, 4):
            a(f"v_pk_add_f32 {vr(D,2)}, {vr(D,2)}, {vr(D+2*r4,2)}")
        a(f"buffer_store_dwordx2 {vr(D,2)}, v{t[8]}, s[4:7], s60 offen sc1")

    def flag012():
        put_flag(a, "s62", vz, vn)

    def nonce3():
        a(f"v_mov_b32 v{t[0]}, {LNONCE}")
        a(f"ds_write_b64 v{t[0]}, {vr(vn,2)}")

    def xb_calc():
        for it in range(5):
            for h in range(2):
                x_, b_ = XR + 4*it + h, XR + 4*it + 2 + h
                a(f"v_lshlrev_b32 v{t[9]}, 16, v{x_}")
                a(f"v_lshlrev_b32 v{t[10]}, 16, v{b_}")
                a(f"v_add_f32 v{XB+it*4+2*h}, v{t[9]}, v{t[10]}")
                a(f"v_and_b32 v{t[9]}, 0xffff0000, v{x_}")
                a(f"v_and_b32 v{t[10]}, 0xffff0000, v{b_}")
                a(f"v_add_f32 v{XB+it*4+2*h+1}, v{t[9]}, v{t[10]}")

    def g1_0():
        a("s_lshl_b32 s60, s46, 7")
        a(f"s_add_u32 s60, s60, {WS_FSR}")
        poll(a, name + "_sr", t[0], "s60", D, vr(vn, 2))
        a("s_lshl_b32 s60, s46, 11")
        a(f"s_add_u32 s60, s60, {WS_ST}")
        a("s_waitcnt vmcnt(0)")
        a(f"buffer_load_dwordx4 {vr(D,4)}, v{vl16}, s[4:7], s60 offen sc1")
        a(f"buffer_load_dwordx4 {vr(D+4,4)}, v{vl16}, s[4:7], s60 offen offset:1024 sc1")

    def g1_12():
        a("s_lshl_b32 s61, s52, 11")
        a("s_lshl_b32 s60, s47, 7")
        a("s_add_u32 s60, s60, s61")
        a(f"s_add_u32 s60, s60, {WS_FSC - 2048}")
        poll(a, name + "_sc", t[0], "s60", D, vr(vn, 2))
        a("s_lshl_b32 s60, s47, 14")
        a("s_lshr_b32 s61, s61, 2")
        a("s_add_u32 s60, s60, s61")
        a(f"s_add_u32 s60, s60, {WS_CS - 512}")
        a("s_waitcnt vmcnt(0)")
        for m in range(16):
            a(f"buffer_load_dwordx2 {vr(D + 2*m, 2)}, v{t[8]}, s[4:7], s60 offen offset:{(m%4)*1024} sc1")
            if m % 4 == 3 and m < 15:
                a("s_add_u32 s60, s60, 4096")

    def g2_0():
        a(f"v_add_u32 v{t[0]}, {LSTAT}, v{vl16}")
        a(f"ds_write_b128 v{t[0]}, {vr(D,4)}")
        a(f"ds_write_b128 v{t[0]}, {vr(D+4,4)} offset:1024")

    def g2_12():
        a("s_lshl_b32 s61, s52, 9")
        a(f"s_add_u32 s61, s61, {LCS - 512}")
        a(f"v_add_u32 v{t[0]}, s61, v{t[8]}")
        for m in range(1, 16):
            a(f"v_pk_add_f32 {vr(D,2)}, {vr(D,2)}, {vr(D+2*m,2)}")
        a(f"ds_write_b64 v{t[0]}, {vr(D,2)}")

    nop = lambda: None
    a(f"s_waitcnt vmcnt({11 + nl})")
    a("s_barrier")
    issue()
    by_role(pub0, pub12, nop)
    a(f"s_waitcnt vmcnt({11 + nl})")
    a("s_barrier")
    issue()
    for i in range(64):
        a(f"v_accvgpr_write_b32 a{i}, 0")
    a("s_waitcnt vmcnt(11)")
    a("s_barrier")
    get_nonce()
    by_role(flag012, flag012, nonce3)
    issue()
    xb_calc()
    a(f"v_and_b32 v{t[0]}, 15, v1")
    a(f"v_lshlrev_b32 v{t[0]}, 3, v{t[0]}")
    a("s_mov_b32 s63, 4")
    bl = f"{name}_bl"
    a.label(bl)
    a("s_waitcnt vmcnt(11)")
    a("s_barrier")
    issue()
    a("s_add_u32 s63, s63, 1")
    a("s_cmp_lt_u32 s63, 8")
    a(f"s_cbranch_scc1 {bl}")
    a("s_waitcnt vmcnt(11)")
    a("s_barrier")
    by_role(g1_0, g1_12, lambda: a("s_waitcnt vmcnt(0)"))
    a("s_barrier")
    a("s_waitcnt vmcnt(0)")
    by_role(g2_0, g2_12, nop)
    stamp(a, 2)
    a("s_waitcnt lgkmcnt(0)")
    a("s_barrier")
    a("s_setprio 0")
    R.release(mark)
    vl16b, vt2, vt2b = vid, vid + 1, vid + 2
    pt = BO
    assert pt % 2 == 0
    F = R.alloc("F", 80, 4)
    accv = R.alloc("accv", 32, 4)
    WB = AD0
    assert WB % 2 == 0
    srd(a, 16, 40, 2048 * 640 * 2)
    a("s_mul_i32 s58, s50, 81920")
    a("s_mul_i32 s59, s51, 160")
    a("s_add_u32 s58, s58, s59")
    a("s_mul_i32 s60, s52, 25600")
    a(f"v_add_u32 v{t[4]}, s60, v{vl16}")
    a("s_mul_i32 s61, s52, 25600")
    a(f"v_mul_u32_u24 v{t[6]}, {RS}, v2")
    a(f"v_lshl_add_u32 v{t[6]}, v3, 4, v{t[6]}")
    a(f"v_add_u32 v{t[6]}, s61, v{t[6]}")
    a(f"v_and_b32 v{t[7]}, 7, v1")
    a(f"v_lshlrev_b32 v{t[7]}, 3, v{t[7]}")
    a(f"v_mov_b32 v{t[8]}, {LFLAG}")

    def accreg(i, n):
        return ar(i, n) if i < 64 else vr(accv + i - 64, n)

    def set2():
        a(f"v_add_u32 v{vl16b}, 0x1000, v{vl16}")
        a(f"v_and_b32 v{vt2}, 15, v1")
        a(f"v_lshl_add_u32 v{vt2}, v3, 4, v{vt2}")
        a(f"v_lshlrev_b32 v{vt2}, 4, v{vt2}")
        a(f"v_add_u32 v{vt2b}, 0x1000, v{vt2}")
        a("s_mul_i32 s60, s52, 25600")
        a(f"v_add_u32 v{t[5]}, s60, v{vt2}")
        for i in range(32):
            a(f"v_mov_b32 v{accv+i}, 0")

    def rt_pack2():
        for i in range(12):
            a(f"v_lshl_or_b32 v{E+i}, v{E+2*i+1}, 16, v{E+2*i}")

    set2()
    a("s_mul_i32 s53, s50, 196608")
    a("s_mul_i32 s60, s52, 24576")
    a("s_add_u32 s53, s53, s60")
    a(f"s_add_u32 s53, s53, {WS_H}")
    a("s_add_u32 s54, s53, 98304")
    a("s_mul_i32 s56, s51, 136")
    a("s_mul_i32 s60, s52, 24")
    a("s_add_u32 s60, s60, s56")
    a("s_mul_i32 s55, s60, 2560")
    a(f"s_add_u32 s55, s55, {WS_WF}")
    a(f"v_bfe_u32 v{t[0]}, v1, 1, 2")
    a(f"v_lshlrev_b32 v{t[0]}, 5, v{t[0]}")
    a(f"v_and_b32 v{t[1]}, 1, v1")
    a(f"v_lshl_add_u32 v{t[0]}, v{t[1]}, 4, v{t[0]}")
    a("s_lshr_b32 s60, s50, 1")
    a("s_lshl_b32 s60, s60, 9")
    a("s_lshl_b32 s61, s52, 7")
    a("s_add_u32 s60, s60, s61")
    a("s_and_b32 s61, s50, 1")
    a("s_lshl_b32 s61, s61, 3")
    a("s_add_u32 s60, s60, s61")
    a(f"s_add_u32 s63, s60, {WS_FH}")
    a("s_mul_i32 s60, s51, 1088")
    a(f"s_add_u32 s64, s60, {WS_FW}")
    a("s_mul_i32 s60, s52, 24")
    a(f"v_min_u32 v{t[2]}, 23, v1")
    a(f"v_add_u32 v{t[2]}, s60, v{t[2]}")
    a(f"v_lshlrev_b32 v{t[2]}, 3, v{t[2]}")
    a("s_lshl_b32 s60, s52, 3")
    a("s_add_u32 s60, s60, 96")
    a(f"v_and_b32 v{t[3]}, 7, v1")
    a(f"v_add_u32 v{t[3]}, s60, v{t[3]}")
    a("s_lshl_b32 s60, s52, 1")
    a("s_add_u32 s60, s60, 128")
    a(f"v_and_b32 v{t[1]}, 1, v1")
    a(f"v_add_u32 v{t[1]}, s60, v{t[1]}")
    a("v_cmp_eq_u32 vcc, 0, v3")
    a("s_nop 1")
    a(f"v_cndmask_b32 v{t[3]}, v{t[1]}, v{t[3]}, vcc")
    a(f"v_lshlrev_b32 v{t[3]}, 3, v{t[3]}")
    stamp(a, 3)
    a("s_and_b32 s60, s52, 1")
    a("s_lshl_b32 s61, s46, 1")
    a("s_add_u32 s60, s60, s61")
    a("s_lshl_b32 s60, s60, 1")
    a("s_mul_i32 s60, s60, 96")
    a("s_mul_i32 s61, s47, 6")
    a("s_add_u32 s60, s60, s61")
    a("s_lshl_b32 s60, s60, 10")
    a(f"s_add_u32 s60, s60, {WS_H}")
    a("s_lshr_b32 s61, s52, 1")
    a("s_mul_i32 s65, s61, 98304")
    a("s_lshl_b32 s61, s61, 12")
    a("s_add_u32 s66, s60, s65")
    a("s_sub_u32 s67, s60, s65")
    a("s_add_u32 s67, s67, 98304")
    a("s_add_u32 s67, s67, s61")
    a("s_add_u32 s65, s66, s61")
    a("s_lshl_b32 s60, s46, 4")
    a("s_add_u32 s60, s60, s47")
    a("s_lshl_b32 s60, s60, 2")
    a("s_add_u32 s60, s60, s52")
    a("s_lshl_b32 s60, s60, 3")
    a(f"s_add_u32 s57, s60, {WS_FH}")
    a("s_mul_i32 s60, s52, 10240")
    a(f"s_add_u32 s60, s60, {LH}")
    a(f"v_add_u32 v{t[9]}, s60, v{vl16}")
    a(f"v_bfe_u32 v{t[10]}, v1, 2, 2")
    a(f"v_lshl_add_u32 v{t[10]}, v3, 2, v{t[10]}")
    a(f"v_mul_u32_u24 v{t[10]}, 192, v{t[10]}")
    a(f"v_bfe_u32 v{t[11]}, v1, 4, 1")
    a(f"v_lshl_add_u32 v{t[10]}, v{t[11]}, 5, v{t[10]}")
    a(f"v_and_b32 v{t[11]}, 3, v1")
    a(f"v_lshl_add_u32 v{t[10]}, v{t[11]}, 3, v{t[10]}")
    a(f"v_add_u32 v{t[11]}, {LRT + 4*3072}, v{t[10]}")
    a("s_mul_i32 s60, s52, 3072")
    a(f"s_add_u32 s60, s60, {LRT}")
    a(f"v_add_u32 v{t[10]}, s60, v{t[10]}")
    for un, adr in enumerate((t[10], t[11])):
        for nt in range(3):
            for h in range(2):
                a(f"ds_read_b64_tr_b16 {vr(F + 40 + un*12 + nt*4 + h*2, 2)}, v{adr} offset:{nt*64 + h*1536}")
    a("s_lshl_b32 s62, s52, 8")
    a("s_add_u32 s62, s62, s2")
    a("v_cmp_gt_u32 s[12:13], 16, v2")
    a("s_barrier")
    for e in range(6):
        a(f"ds_read_b128 {vr(F + e*4, 4)}, v{t[9]} offset:{e*1024}")
    a("s_waitcnt lgkmcnt(0)")
    for e, (sr_, off) in enumerate(((65, 0), (65, 1024), (67, 0), (67, 1024), (66, 2048), (66, 3072))):
        a(f"buffer_store_dwordx4 {vr(F + e*4, 4)}, v{vl16}, s[4:7], s{sr_} offen offset:{off} sc1")
        if X_PACE and e % 2 == 1:
            a("s_waitcnt vmcnt(0)")

    def rt_put(un):
        a("s_mul_i32 s61, s62, 2560")
        a(f"s_add_u32 s61, s61, {WS_WF}")
        b = F + 40 + un * 12
        a(f"buffer_store_dwordx4 {vr(b,4)}, v{vl16}, s[4:7], s61 offen sc1")
        a(f"buffer_store_dwordx4 {vr(b+4,4)}, v{vl16}, s[4:7], s61 offen offset:1024 sc1")
        a("s_mov_b64 exec, s[12:13]")
        a(f"buffer_store_dwordx4 {vr(b+8,4)}, v{vt2}, s[4:7], s61 offen offset:2048 sc1")
        a("s_mov_b64 exec, -1")
        a("s_lshl_b32 s61, s62, 3")
        a(f"s_add_u32 s61, s61, {WS_FW}")
        a("s_waitcnt vmcnt(0)")
        put_flag(a, "s61", vz, vn)
    rt_put(0)
    put_flag(a, "s57", vz, vn)
    n3 = f"{name}_no3"
    a("s_cmp_ge_u32 s62, 64")
    a(f"s_cbranch_scc1 {n3}")
    a("s_add_u32 s62, s62, 1024")
    rt_put(1)
    a.label(n3)
    stamp(a, 4)
    poll(a, name + "_fw", t[2], "s64", pt, vr(vn, 2), extra=t[3])
    poll(a, name + "_fh", t[0], "s63", pt, vr(vn, 2))
    stamp(a, 5)

    def wload(dst, sreg, off):
        for k, (va, vb) in enumerate(((vl16, vl16b), (vl16, vl16b), (vt2, vt2b))):
            o = off + k * 1024
            v = va if o < 4096 else vb
            a(f"buffer_load_dwordx4 {vr(dst + k*4, 4)}, v{v}, s[4:7], s{sreg} offen offset:{o % 4096} sc1")

    def gl_ops(b):
        base = F + b * 20
        return [f"buffer_load_dwordx4 {vr(base,4)}, v{vl16}, s[4:7], s53 offen sc1",
                f"buffer_load_dwordx4 {vr(base+4,4)}, v{vl16}, s[4:7], s54 offen sc1",
                f"buffer_load_dwordx4 {vr(base+8,4)}, v{vl16}, s[4:7], s55 offen sc1",
                f"buffer_load_dwordx4 {vr(base+12,4)}, v{vl16}, s[4:7], s55 offen offset:1024 sc1",
                f"buffer_load_dwordx4 {vr(base+16,4)}, v{vt2}, s[4:7], s55 offen offset:2048 sc1",
                "s_add_u32 s53, s53, 1024\ns_add_u32 s54, s54, 1024\ns_add_u32 s55, s55, 2560"]

    def gstep(b, nxt, wait):
        if X_NOG: return
        a(f"s_waitcnt vmcnt({wait})")
        base = F + b * 20
        ops = gl_ops(nxt) if nxt is not None else [None] * 6
        for k in range(6):
            c = accreg(k * 16, 16)
            a(f"v_mfma_f32_32x32x16_bf16 {c}, {vr(base + 8 + (k//2)*4, 4)}, {vr(base + (k%2)*4, 4)}, {c}")
            if ops[k]: a(ops[k])

    a("s_setprio 0")
    for b in range(2):
        for o in gl_ops(b): a(o)
    a("s_mov_b32 s60, 0")
    gl = f"{name}_gl"
    a.label(gl)
    for b in range(3):
        gstep(b, (b + 2) % 3, 5)
    a("s_add_u32 s60, s60, 1")
    a("s_cmp_lt_u32 s60, 7")
    a(f"s_cbranch_scc1 {gl}")
    gstep(0, 2, 5)
    gstep(1, None, 5)
    gstep(2, None, 0)
    stamp(a, 6)
    a("s_lshl_b32 s60, s52, 3")
    a("s_add_u32 s60, s60, s56")
    a("s_add_u32 s60, s60, 96")
    a("s_mul_i32 s53, s60, 2560")
    a(f"s_add_u32 s53, s53, {WS_WF}")
    a("s_lshl_b32 s60, s52, 1")
    a("s_add_u32 s60, s60, s56")
    a("s_add_u32 s60, s60, 128")
    a("s_mul_i32 s54, s60, 2560")
    a(f"s_add_u32 s54, s54, {WS_WF}")
    a("s_waitcnt vmcnt(0)")
    def wo_ld(e):
        if e < 20:
            v = vl16 if (e % 8) < 4 else vl16b
            if e and e % 8 == 0:
                a("s_add_u32 s53, s53, 8192")
            a(f"buffer_load_dwordx4 {vr(F + (e%4)*4, 4)}, v{v}, s[4:7], s53 offen offset:{(e%4)*1024} sc1")
        else:
            v = vl16 if e < 24 else vl16b
            a(f"buffer_load_dwordx4 {vr(F + (e%4)*4, 4)}, v{v}, s[4:7], s54 offen offset:{(e%4)*1024} sc1")
    for e in range(3):
        wo_ld(e)
    for e in range(25):
        a(f"s_waitcnt vmcnt({min(2, 24-e)}) lgkmcnt(0)")
        a(f"ds_write_b128 v{t[4]}, {vr(F + (e%4)*4, 4)} offset:{e*1024}")
        if e + 3 < 25:
            wo_ld(e + 3)
    a("s_mul_i32 s60, s50, 81920")
    a("s_lshl_b32 s53, s52, 13")
    a("s_add_u32 s53, s53, s60")
    a(f"s_add_u32 s53, s53, {WS_O}")
    a("s_add_u32 s54, s53, 40960")
    a("s_lshl_b32 s55, s52, 11")
    a("s_add_u32 s55, s55, s60")
    a(f"s_add_u32 s55, s55, {WS_O + 32768}")
    a("s_add_u32 s56, s55, 40960")
    a("s_lshl_b32 s60, s50, 8")
    a("s_lshl_b32 s61, s52, 6")
    a("s_add_u32 s60, s60, s61")
    a(f"s_add_u32 s63, s60, {WS_FO}")
    a("s_waitcnt lgkmcnt(0)")
    stamp(a, 7)
    a("s_barrier")
    a(f"ds_read_b32 v{t[2]}, v{t[8]}")
    a("s_waitcnt lgkmcnt(0)")
    a(f"v_readfirstlane_b32 s60, v{t[2]}")
    nr = f"{name}_noredo"
    a("s_cmp_eq_u32 s60, 0")
    a(f"s_cbranch_scc1 {nr}")
    a("s_barrier")
    a("s_barrier")
    a("s_barrier")
    a.label(nr)
    stamp(a, 8)

    def wread(n, dst):
        a(f"ds_read_b128 {vr(dst,4)}, v{t[4]} offset:{n*2560}")
        a(f"ds_read_b128 {vr(dst+4,4)}, v{t[4]} offset:{n*2560 + 1024}")
        a(f"ds_read_b128 {vr(dst+8,4)}, v{t[5]} offset:{n*2560 + 2048}")
    poll(a, name + "_fo", t[7], "s63", pt, vr(vn, 2))
    stamp(a, 9)
    if asmlib.STAMP: a("s_waitcnt lgkmcnt(0)")
    for n in range(10):
        for rt in range(2):
            if n < 8:
                sreg, off = 53 + rt, n * 1024
            else:
                sreg, off = 55 + rt, (n - 8) * 1024
            v = vl16 if off < 4096 else vl16b
            a(f"buffer_load_dwordx4 {vr(F + (n*2+rt)*4, 4)}, v{v}, s[4:7], s{sreg} offen offset:{off % 4096} sc1")
    wread(0, WB)
    for n in range(10):
        a(f"s_waitcnt vmcnt({18 - 2*n})")
        for nt in range(3):
            a(f"s_waitcnt lgkmcnt({2 if n < 9 else 2 - nt})")
            for rt in range(2):
                c = accreg((nt*2+rt)*16, 16)
                a(f"v_mfma_f32_32x32x16_bf16 {c}, {vr(WB + nt*4, 4)}, {vr(F + (n*2+rt)*4, 4)}, {c}")
            if n < 9:
                adr, off = (t[4], (n+1)*2560 + nt*1024) if nt < 2 else (t[5], (n+1)*2560 + 2048)
                a(f"ds_read_b128 {vr(WB + nt*4, 4)}, v{adr} offset:{off}")
    stamp(a, 10)
    a("s_nop 7")
    for nt in range(3):
        for rt in range(2):
            for q in range(4 if nt < 2 else 2):
                a(f"ds_write_b128 v{t[6]}, {accreg((nt*2+rt)*16 + q*4, 4)} offset:{rt*32*RS + nt*128 + q*32}")
    a("s_waitcnt lgkmcnt(0)")
    a("s_barrier")
    PD = F
    for it in range(5):
        a(f"v_add_u32 v{t[9 + it]}, {2*25600}, v{LA+it}")
    for it in range(5):
        for w in range(4):
            adr = LA + it if w < 2 else t[9 + it]
            a(f"ds_read_b128 {vr(PD + it*16 + w*4, 4)}, v{adr} offset:{(w%2)*25600}")
    for it in range(5):
        a(f"s_waitcnt lgkmcnt({min(15, 4*(4-it))})")
        p = PD + it * 16
        for i in range(2):
            a(f"v_pk_add_f32 {vr(p+2*i,2)}, {vr(p+2*i,2)}, {vr(p+4+2*i,2)}")
            a(f"v_pk_add_f32 {vr(p+8+2*i,2)}, {vr(p+8+2*i,2)}, {vr(p+12+2*i,2)}")
        for i in range(2):
            a(f"v_pk_add_f32 {vr(p+2*i,2)}, {vr(p+2*i,2)}, {vr(XB+it*4+2*i,2)}")
        for i in range(2):
            a(f"v_pk_add_f32 {vr(p+2*i,2)}, {vr(p+2*i,2)}, {vr(p+8+2*i,2)}")
        a(f"v_cvt_pk_bf16_f32 v{p+4}, v{p}, v{p+1}")
        a(f"v_cvt_pk_bf16_f32 v{p+5}, v{p+2}, v{p+3}")
        a(f"buffer_store_dwordx2 {vr(p+4,2)}, v{GA+it}, s[16:19], s58 offen")
    stamp(a, 11)
    stamp_flush(a, 12, 4, 0, 4, 5)
    dbg_flush(a, 12, [7, 8, 9, 10, 11], 10, 4, 37, 4, 5)
    a("s_endpgm")
```
